```python
import torch

def _softmax(x, axis=-1):
    return torch.softmax(x, dim=axis)
def _gelu(x):
    return torch.nn.functional.gelu(x, approximate="tanh")
def _silu(x):
    return torch.nn.functional.silu(x)
def _sigmoid(x):
    return torch.sigmoid(x)
def _layernorm(x, axis=-1, eps=1e-5):
    m = x.mean(dim=axis, keepdim=True)
    v = x.var(dim=axis, keepdim=True, unbiased=False)
    return (x - m) / torch.sqrt(v + eps)
def _scatter_add(tgt, idx, src, axis=0):
    return tgt.clone().index_add_(axis, idx, src)
def _segment_sum(src, seg, n):
    out = torch.zeros((n,) + src.shape[1:], dtype=src.dtype)
    return out.index_add_(0, seg, src)
def _pad(x, pw):
    flat = tuple(v for pair in reversed(pw) for v in pair)
    return torch.nn.functional.pad(x, flat)

kernel_name = 'standalone__memory_aug_memorizing_tr__prompt'

def setup_inputs():

    _w = (lambda a: (lambda t: t.to(torch.bfloat16) if t.is_floating_point() else t)(torch.as_tensor(a)))
    B, H, S, D = 1, 32, 2048, 192
    M, K = 2048, 8
    return {
        "q": _w((lambda *s: torch.randn(*s, dtype=torch.bfloat16) * 0.8)(B, H, S, D)),
        "k": _w((lambda *s: torch.randn(*s, dtype=torch.bfloat16) * 0.8)(B, H, S, D)),
        "v": _w((lambda *s: torch.randn(*s, dtype=torch.bfloat16) * 0.05)(B, H, S, D)),
        "mem_k": _w((lambda *s: torch.randn(*s, dtype=torch.bfloat16) * 0.8)(B, H, M, D)),
        "mem_v": _w((lambda *s: torch.randn(*s, dtype=torch.bfloat16) * 0.05)(B, H, M, D)),
        "idx": _w(torch.randint(0, M, (B, H, S, K)).to(torch.int64)),
        "gate_bias": _w((lambda *s: torch.randn(*s, dtype=torch.bfloat16) * 0.2)(H)),
    }

def reference(q, k, v, mem_k, mem_v, idx, gate_bias):
    B, H, S, D = q.shape
    K = idx.shape[-1]
    scale = D ** -0.5
    sl = torch.einsum("bhqd,bhkd->bhqk", q, k) * scale
    cm = torch.tril(torch.ones((S, S), dtype=q.dtype))
    sl = torch.where(cm[None, None] > 0, sl, -1e9)
    pl = _softmax(sl, axis=-1)
    ol = torch.einsum("bhqk,bhkd->bhqd", pl, v)
    idx_e = (lambda x, n, axis: torch.repeat_interleave(x, n, dim=axis))(idx.reshape(B, H, S * K)[..., None], D, axis=-1)
    mk = (lambda x, i, axis: torch.take_along_dim(x, i, dim=axis))(mem_k, idx_e, axis=2).reshape(B, H, S, K, D)
    mv = (lambda x, i, axis: torch.take_along_dim(x, i, dim=axis))(mem_v, idx_e, axis=2).reshape(B, H, S, K, D)
    sm = torch.einsum("bhqd,bhqkd->bhqk", q, mk) * scale
    pm = _softmax(sm, axis=-1)
    om = torch.einsum("bhqk,bhqkd->bhqd", pm, mv)
    g = _sigmoid(gate_bias)[None, :, None, None]
    return g * om + (1 - g) * ol
```

```python
import re

class Asm:
    def __init__(self):
        self.lines = []
    def __call__(self, s=""):
        for l in s.split("\n"):
            self.lines.append(l)
    def label(self, name):
        self.lines.append(name + ":")
    def text(self):
        return "\n".join(self.lines) + "\n"

_reg_re = re.compile(r"^(-|abs\()?\(?([vas])(\d+)\)?$")
_rng_re = re.compile(r"^([vas])\[(\d+):(\d+)\]$")

def regs_of(tok):
    tok = tok.strip()
    if tok.startswith("-"): tok = tok[1:]
    if tok.startswith("abs(") and tok.endswith(")"): tok = tok[4:-1]
    if tok.startswith("|") and tok.endswith("|"): tok = tok[1:-1]
    m = _rng_re.match(tok)
    if m:
        return [m.group(1) + str(i) for i in range(int(m.group(2)), int(m.group(3)) + 1)]
    m = re.match(r"^([vas])(\d+)$", tok)
    if m: return [tok]
    if tok == "vcc": return ["vcc"]
    if tok == "exec": return ["exec"]
    if tok == "m0": return ["m0"]
    return []

class Inst:
    __slots__ = ("op", "ops", "defs", "uses", "cls", "text", "line")
    def __repr__(self): return self.text

TRANS = ("v_exp_f32", "v_log_f32", "v_rcp_f32", "v_rsq_f32", "v_sqrt_f32", "v_sin_f32", "v_cos_f32")

def split_ops(s):
    out = []; depth = 0; cur = ""
    for ch in s:
        if ch in "[(": depth += 1
        if ch in "])": depth -= 1
        if ch == "," and depth == 0:
            out.append(cur.strip()); cur = ""
        else: cur += ch
    if cur.strip(): out.append(cur.strip())
    return out

def parse(line, lineno=0):
    s = line.split(";")[0].split("//")[0].strip()
    if not s or s.endswith(":") or s.startswith("."): return None
    parts = s.split(None, 1)
    op = parts[0]
    rest = parts[1] if len(parts) > 1 else ""
    ops = split_ops(rest)
    mods = ""
    if ops:
        last = ops[-1].split()
        ops[-1] = last[0]; mods = " ".join(last[1:])
    I = Inst(); I.op = op; I.ops = ops; I.text = s; I.line = lineno
    base = op.replace("_e32", "").replace("_e64", "").replace("_dpp", "")
    defs = []; uses = []
    R = [regs_of(o) for o in ops]
    if op.startswith("v_mfma"):
        I.cls = "mfma"; defs = R[0]; uses = R[1] + R[2] + R[3]
    elif op.startswith("ds_read") or op.startswith("ds_bpermute") or op.startswith("ds_swizzle"):
        I.cls = "ds"; defs = R[0]; uses = sum(R[1:], [])
    elif op.startswith("ds_write"):
        I.cls = "ds"; uses = sum(R, [])
    elif op.startswith("buffer_load") or op.startswith("global_load"):
        I.cls = "vmem"
        if " lds" in (" " + mods + " "):
            uses = sum(R, []) + ["m0"]
        else:
            defs = R[0]; uses = sum(R[1:], [])
    elif op.startswith("buffer_store") or op.startswith("global_store") or op.startswith("buffer_atomic") or op.startswith("global_atomic"):
        I.cls = "vmem"; uses = sum(R, [])
    elif op.startswith("buffer_"):
        I.cls = "vmem"
    elif op.startswith("v_cmp"):
        I.cls = "valu"; defs = R[0]; uses = sum(R[1:], [])
    elif op.startswith("v_permlane") and "swap" in op:
        I.cls = "valu"; defs = R[0] + R[1]; uses = R[0] + R[1]
    elif op.startswith("v_readfirstlane") or op.startswith("v_readlane"):
        I.cls = "valu"; defs = R[0]; uses = sum(R[1:], [])
    elif op.startswith("v_"):
        I.cls = "valu"; defs = R[0]; uses = sum(R[1:], [])
        if base in ("v_fmac_f32", "v_dot2c_f32_bf16"): uses += R[0]
        if base in ("v_cndmask_b32",) and len(ops) == 3: uses += ["vcc"]
        if base in ("v_add_co_u32", "v_sub_co_u32", "v_addc_co_u32"): defs = R[0] + R[1]; uses = sum(R[2:], [])
        if "_dpp" in op or "quad_perm" in mods or "row_" in mods:
            I.cls = "valu"; uses += R[0] if False else []
    elif op.startswith("s_waitcnt") or op in ("s_nop", "s_barrier", "s_setprio", "s_sleep", "s_endpgm"):
        I.cls = "sctl"
    elif op.startswith("s_cbranch") or op == "s_branch":
        I.cls = "branch"
        if "vcc" in op: uses = ["vcc"]
    elif op.startswith("s_load") or op.startswith("s_memtime") or op.startswith("s_memrealtime") or op.startswith("s_buffer_load"):
        I.cls = "smem"; defs = R[0]; uses = sum(R[1:], [])
    elif op.startswith("s_cmp"):
        I.cls = "salu"; uses = sum(R, [])
    elif op.startswith("s_"):
        I.cls = "salu"; defs = R[0] if R else []; uses = sum(R[1:], [])
        if "saveexec" in op: defs = defs + ["exec"]; uses += ["exec"]
    else:
        raise ValueError("cannot parse: " + line)
    I.defs = defs; I.uses = uses
    return I

def is_dpp(I):
    return "_dpp" in I.op or "quad_perm" in I.text or "row_" in I.text

def mfma_passes(I):
    if "32x32x16" in I.op: return 8
    if "16x16x32" in I.op: return 4
    return 8

def nstates(I):
    if I.op == "s_nop": return int(I.ops[0], 0) + 1
    return 1

def check_hazards(lines, verbose=True):
    insts = []
    for n, l in enumerate(lines):
        I = parse(l, n)
        if I is not None: insts.append(I)
    probs = []
    pos = 0
    lastw = {}
    lastC = {}
    lds_out = []
    vm_out = []
    store_data = {}
    for I in insts:
        def need(reg, n, why):
            w = lastw.get(reg)
            if w is None: return
            d = pos - w[0] - 1 + 0
            if d < n:
                probs.append(f"line {I.line}: {I.text}  <- {why} on {reg} needs {n} has {d} (prod: {w[2].text})")
        if I.op == "s_waitcnt":
            m = re.search(r"lgkmcnt\((\d+)\)", I.text)
            if m:
                k = int(m.group(1))
                while len(lds_out) > k: lds_out.pop(0)
            m = re.search(r"vmcnt\((\d+)\)", I.text)
            if m:
                k = int(m.group(1))
                while len(vm_out) > k: vm_out.pop(0)
        touched = set(I.uses) | set(I.defs)
        for q, nm in ((lds_out, "lds"), (vm_out, "vmem")):
            for d in q:
                inter = touched & set(d[0])
                if inter:
                    probs.append(f"line {I.line}: {I.text} touches {sorted(inter)[:4]} of outstanding {nm} load: {d[1].text}")
        if I.cls == "mfma":
            A = regs_of(I.ops[1]); B = regs_of(I.ops[2]); C = regs_of(I.ops[3]); D = I.defs
            for r in A + B + C:
                w = lastw.get(r)
                if w and w[1] == "valu": need(r, 2, "valu->mfma")
            for r in A + B:
                w = lastw.get(r)
                if w and w[1] == "mfma": need(r, {4: 8, 8: 12}[mfma_passes(w[2])], "mfma D->AB")
            for r in C:
                w = lastw.get(r)
                if w and w[1] == "mfma":
                    same = (w[2].defs == C) and mfma_passes(w[2]) == mfma_passes(I)
                    if not same: need(r, {4: 6, 8: 10}[mfma_passes(w[2])], "mfma D->C overlap")
            for r in D:
                w = lastw.get(r)
                if w and w[1] == "mfma" and r not in C:
                    need(r, {4: 6, 8: 10}[mfma_passes(w[2])], "mfma D->D waw")
        else:
            for r in set(I.uses) | set(I.defs):
                w = lastw.get(r)
                if w and w[1] == "mfma" and I.cls in ("valu", "ds", "vmem"):
                    need(r, {4: 8, 8: 12}[mfma_passes(w[2])], "mfma D->valu/mem")
            if I.cls == "valu":
                for r in I.defs:
                    c = lastC.get(r)
                    if c and pos - c[0] - 1 < {4: 3, 8: 7}[c[1]]:
                        probs.append(f"line {I.line}: {I.text} <- WAR on mfma srcC {r}")
                for r in I.uses:
                    w = lastw.get(r)
                    if w and w[1] == "valu":
                        if w[2].op.replace("_e32","") in TRANS and I.op.replace("_e32","") not in TRANS: need(r, 1, "trans->valu")
                        if is_dpp(I) and r in regs_of(I.ops[1]): need(r, 2, "valu->dpp")
                        if I.op.startswith("v_permlane"): need(r, 2, "valu->permlane")
                        if I.op.startswith("v_readfirstlane") or I.op.startswith("v_readlane"): need(r, 1, "valu->readlane")
                        if r[0] == "s" or r == "vcc": need(r, 2, "valu sgpr->valu const")
                for r in I.defs:
                    sd = store_data.get(r)
                    if sd is not None and pos - sd - 1 < 2:
                        probs.append(f"line {I.line}: {I.text} <- WAR on wide store data {r}")
            if I.cls == "vmem":
                for r in I.uses:
                    w = lastw.get(r)
                    if w and w[1] == "valu" and r[0] == "s": need(r, 5, "valu sgpr->vmem")
                    if r == "m0" and w and w[1] == "salu": need(r, 1, "salu m0->lds dma")
                    if w and w[1] == "valu" and w[2].op.replace("_e32","") in TRANS: need(r, 1, "trans->vmem")
            if I.cls == "ds":
                for r in I.uses:
                    w = lastw.get(r)
                    if w and w[1] == "valu" and w[2].op.replace("_e32","") in TRANS: need(r, 1, "trans->ds")
        if I.cls == "mfma":
            for r in regs_of(I.ops[3]): lastC[r] = (pos, mfma_passes(I))
        if I.cls == "vmem" and ("store" in I.op) and ("x4" in I.op or "x3" in I.op):
            for r in regs_of(I.ops[0]): store_data[r] = pos
        if I.cls == "ds":
            lds_out.append((I.defs, I))
        elif I.cls == "smem":
            lds_out.append((I.defs, I))
        elif I.cls == "vmem":
            vm_out.append((I.defs, I))
        else:
            for r in I.defs: lastw[r] = (pos, I.cls, I)
        if I.cls in ("ds", "vmem", "smem"):
            for r in I.defs: lastw.pop(r, None)
        pos += nstates(I)
    return probs
```

```python
from asmlib import Asm
HEAD = 786432
LOG2E = 1.4426950408889634
CSCALE = (192 ** -0.5) * LOG2E

def f2u(x):
    import struct
    return struct.unpack("<I", struct.pack("<f", x))[0]

def gen_gather_kernel(A, name="memattn_kernel"):
    UNIT = 9216
    WAVE_LDS = 20480
    OFF_IDX = 2 * UNIT
    OFF_P = OFF_IDX + 1024
    OFF_Z = OFF_P + 256
    A(f".globl {name}\n.p2align 8\n.type {name},@function\n{name}:")
    A("  s_cmp_ge_u32 s2, 512\n  s_cbranch_scc1 GK_END")
    A("  s_load_dwordx2 s[4:5], s[0:1], 0")
    A("  s_load_dwordx4 s[8:11], s[0:1], 32")
    A("  s_load_dwordx2 s[6:7], s[0:1], 24")
    A("  s_load_dwordx2 s[12:13], s[0:1], 48")
    A("  s_load_dwordx2 s[14:15], s[0:1], 72")
    A("  v_and_b32 v1, 63, v0                   ; lane")
    A("  v_lshrrev_b32 v2, 6, v0")
    A("  s_nop 0")
    A("  v_readfirstlane_b32 s36, v2            ; wave")
    A("  s_and_b32 s37, s2, 7                   ; xcd")
    A("  s_lshr_b32 s38, s2, 3                  ; slot 0..63")
    A("  s_lshl_b32 s38, s38, 2")
    A("  s_nop 1")
    A("  s_add_u32 s38, s38, s36                ; W 0..255")
    A(f"  s_mul_i32 s39, s36, {WAVE_LDS}")
    A("  v_lshrrev_b32 v3, 3, v1\n  v_and_b32 v4, 7, v1")
    for u in range(4):
        A(f"  v_xor_b32 v{8+u}, {2*u}, v4\n  v_lshlrev_b32 v{8+u}, 4, v{8+u}")
    A("  v_and_b32 v5, 1, v3\n  v_lshlrev_b32 v5, 6, v5        ; (q'&1)*64")
    for u in range(4):
        A(f"  v_xor_b32 v{12+u}, v5, v{8+u}")
    for j in range(3):
        A(f"  v_add_u32 v5, {8*j}, v3\n  v_mul_u32_u24 v5, 0xAAAB, v5\n  v_lshrrev_b32 v5, 17, v5\n  v_and_b32 v5, 6, v5")
        A(f"  v_xor_b32 v5, v5, v4\n  v_lshlrev_b32 v5, 4, v5\n  v_lshl_add_u32 v{16+j}, v3, 7, v5")
    A("  v_and_b32 v6, 15, v1\n  v_lshrrev_b32 v7, 4, v1")
    A("  v_and_b32 v5, 6, v6\n  v_xor_b32 v5, v5, v7\n  v_lshlrev_b32 v5, 4, v5\n  v_mul_u32_u24 v19, 384, v6\n  v_add_u32 v19, v19, v5\n  v_add_u32 v19, s39, v19\n  v_xor_b32 v20, 64, v19")
    A("  v_and_b32 v5, 7, v6\n  v_mul_u32_u24 v21, 1152, v5\n  v_and_b32 v5, 6, v5\n  v_xor_b32 v5, v5, v7\n  v_lshlrev_b32 v5, 4, v5\n  v_add_u32 v21, v21, v5")
    A("  v_lshrrev_b32 v5, 3, v6\n  v_lshl_add_u32 v21, v5, 7, v21\n  v_add_u32 v21, s39, v21\n  v_xor_b32 v22, 64, v21")
    A("  v_lshrrev_b32 v5, 2, v1\n  v_and_b32 v5, 3, v5           ; r")
    A("  v_mul_u32_u24 v24, 1152, v5\n  v_lshl_add_u32 v24, v7, 7, v24")
    A("  v_and_b32 v5, 2, v5\n  v_bfe_u32 v23, v1, 1, 1\n  v_xor_b32 v5, v5, v23\n  v_and_b32 v23, 1, v7\n  v_lshlrev_b32 v23, 2, v23\n  v_xor_b32 v5, v5, v23")
    A("  v_lshl_add_u32 v24, v5, 4, v24\n  v_and_b32 v5, 1, v1\n  v_lshl_add_u32 v24, v5, 3, v24\n  v_add_u32 v24, s39, v24")
    A("  v_xor_b32 v25, 32, v24\n  v_xor_b32 v26, 64, v24\n  v_xor_b32 v27, 96, v24")
    A(f"  v_lshlrev_b32 v28, 5, v3\n  v_add_u32 v28, s39, v28\n  v_add_u32 v28, {OFF_IDX}, v28")
    A("  v_lshrrev_b32 v5, 3, v6\n  v_lshl_add_u32 v5, v7, 2, v5\n  v_lshlrev_b32 v29, 4, v5\n  v_and_b32 v5, 7, v6\n  v_lshl_add_u32 v29, v5, 1, v29")
    A(f"  v_add_u32 v29, s39, v29\n  v_add_u32 v29, {OFF_P}, v29")
    A(f"  v_lshlrev_b32 v5, 4, v6\n  v_add_u32 v5, {OFF_P}, v5\n  v_add_u32 v5, s39, v5\n  v_mov_b32 v23, {OFF_Z}\n  v_add_u32 v23, s39, v23")
    A("  v_sub_u32 v34, v6, v7             ; n-G")
    for c in range(4):
        A(f"  v_cmp_eq_u32 vcc, {4*c}, v34\n  s_nop 1\n  v_cndmask_b32 v{30+c}, v23, v5, vcc")
    A("  v_lshlrev_b32 v35, 4, v1")
    A("  v_mov_b32 v36, 0\n  v_mov_b32 v37, 0\n  v_mov_b32 v38, 0\n  v_mov_b32 v39, 0")
    A("  ds_write_b128 v23, v[36:39]")
    A("  s_waitcnt lgkmcnt(0)")
    A(f"  s_mov_b32 s40, 384\n  s_mov_b32 s41, 128\n  s_mov_b32 s42, 256\n  s_mov_b32 s43, {hex(f2u(CSCALE))}\n  s_mov_b32 s44, 0xffff0000")
    A("  s_mov_b32 s45, 0                        ; it")
    A("GK_ITER:")
    A("  s_lshl_b32 s46, s45, 8\n  s_add_u32 s46, s46, s38\n  s_lshr_b32 s47, s46, 7\n  s_lshl_b32 s48, s37, 2\n  s_add_u32 s47, s47, s48    ; head")
    A("  s_and_b32 s46, s46, 127                 ; gam")
    A(f"  s_mul_i32 s48, s47, {HEAD}")
    def srd(d, base, size, extra=None):
        A(f"  s_add_u32 s{d}, s{base}, s48\n  s_addc_u32 s{d+1}, s{base+1}, 0\n  s_and_b32 s{d+1}, s{d+1}, 0xffff\n  s_mov_b32 s{d+2}, {size}\n  s_mov_b32 s{d+3}, 0x20000")
    srd(16, 4, HEAD); srd(20, 6, HEAD); srd(24, 8, HEAD); srd(32, 14, HEAD)
    A("  s_lshl_b32 s49, s47, 16                 ; head*65536")
    A("  s_add_u32 s28, s10, s49\n  s_addc_u32 s29, s11, 0\n  s_and_b32 s29, s29, 0xffff\n  s_mov_b32 s30, 65536\n  s_mov_b32 s31, 0x20000")
    A("  s_lshl_b32 s49, s47, 1\n  s_and_b32 s50, s49, 0xfffffffc\n  s_add_u32 s52, s12, s50\n  s_addc_u32 s53, s13, 0\n  s_load_dword s51, s[52:53], 0")
    A(f"  s_add_u32 m0, s39, {OFF_IDX}\n  s_lshl_b32 s50, s46, 9")
    A("  buffer_load_dwordx4 v35, s[28:31], s50 offen lds")
    A(f"  s_mul_i32 s50, s46, 6144\n  s_add_u32 m0, s39, {UNIT}\n  s_nop 0")
    for n in range(3): A(f"  buffer_load_dwordx4 v{16+n}, s[16:19], s50 offen offset:{1024*n} lds")
    A(f"  s_add_u32 s50, s50, 3072\n  s_add_u32 m0, s39, {UNIT+3072}\n  s_nop 0")
    for n in range(3): A(f"  buffer_load_dwordx4 v{16+n}, s[16:19], s50 offen offset:{1024*n} lds")
    A("  s_waitcnt lgkmcnt(0)")
    A("  s_and_b32 s49, s49, 2\n  s_lshl_b32 s49, s49, 3\n  s_lshr_b32 s51, s51, s49\n  s_lshl_b32 s51, s51, 16")
    A(f"  v_mov_b32 v36, s51\n  v_mul_f32 v36, {hex(f2u(-LOG2E))}, v36\n  v_exp_f32 v36, v36\n  s_nop 0\n  v_add_f32 v36, 1.0, v36\n  v_rcp_f32 v36, v36    ; g")
    A("  s_waitcnt vmcnt(0)")
    for s in range(6):
        T, sg = s >> 1, s & 1
        A(f"  ds_read_b128 v[{40+4*s}:{43+4*s}], v{19+sg} offset:{UNIT + T*128}")
    A("  s_waitcnt lgkmcnt(0)")
    for r in range(40, 64):
        A(f"  v_lshlrev_b32 v37, 16, v{r}\n  v_and_b32 v38, s44, v{r}\n  v_mul_f32 v37, s43, v37\n  v_mul_f32 v38, s43, v38\n  v_cvt_pk_bf16_f32 v{r}, v37, v38")
    for b in range(2):
        A(f"  ds_read_b128 v[{64+8*b}:{67+8*b}], v28 offset:{b*256}\n  ds_read_b128 v[{68+8*b}:{71+8*b}], v28 offset:{b*256+16}")
    A("  s_waitcnt lgkmcnt(0)")
    for b in range(2):
        for j in range(8):
            A(f"  v_mad_u32_u24 v{64+8*b+j}, v{64+8*b+j}, s40, v{8+(j>>1)}")
    def issue_unit(srdn, b, T, slot):
        so = ["0", "s41", "s42"][T]
        for j in range(8):
            A(f"  s_add_u32 m0, s39, {slot*UNIT + j*1152}\n  s_nop 0")
            A(f"  buffer_load_dwordx4 v{64+8*b+j}, s[{srdn}:{srdn+3}], {so} offen lds")
    units = [(b, T) for b in range(2) for T in range(3)]
    issue_unit(20, *units[0], 0)
    for k, (b, T) in enumerate(units):
        if k + 1 < len(units):
            issue_unit(20, *units[k+1], (k+1) & 1)
            A("  s_waitcnt vmcnt(8)")
        else:
            A("  s_waitcnt vmcnt(0)")
        for c in range(4):
            A(f"  ds_read_b128 v[100:103], v21 offset:{(k&1)*UNIT + c*256}\n  ds_read_b128 v[104:107], v22 offset:{(k&1)*UNIT + c*256}")
            A("  s_waitcnt lgkmcnt(0)")
            cin = "0" if T == 0 else f"v[{80+4*c}:{83+4*c}]"
            A(f"  v_mfma_f32_16x16x32_bf16 v[{80+4*c}:{83+4*c}], v[{40+8*T}:{43+8*T}], v[100:103], {cin}")
            A(f"  v_mfma_f32_16x16x32_bf16 v[{80+4*c}:{83+4*c}], v[{44+8*T}:{47+8*T}], v[104:107], v[{80+4*c}:{83+4*c}]")
        if T == 2:
            A("  s_nop 7")
            for c in range(4):
                u = 2*b + (c >> 1); r0 = 2*(c & 1); X = 96 + (c & 1)
                A(f"  s_mov_b64 s[56:57], 0xff\n  s_lshl_b64 s[56:57], s[56:57], {16*u}\n  s_lshl_b64 s[58:59], s[56:57], 8")
                A(f"  v_cndmask_b32 v{X}, v{X}, v{80+4*c+r0}, s[56:57]\n  v_cndmask_b32 v{X}, v{X}, v{80+4*c+r0+1}, s[58:59]")
    def dpp(op, d, a, ctrl):
        A(f"  {op}_dpp v{d}, v{a}, v{a} {ctrl} row_mask:0xf bank_mask:0xf")
    ctrls = ["quad_perm:[1,0,3,2]", "quad_perm:[2,3,0,1]", "row_half_mirror"]
    A("  v_mov_b32 v98, v96\n  v_mov_b32 v99, v97\n  s_nop 1")
    for c in ctrls:
        A(f"  v_max_f32_dpp v98, v98, v98 {c} row_mask:0xf bank_mask:0xf\n  v_max_f32_dpp v99, v99, v99 {c} row_mask:0xf bank_mask:0xf\n  s_nop 1")
    A("  v_sub_f32 v96, v96, v98\n  v_sub_f32 v97, v97, v99\n  v_exp_f32 v96, v96\n  v_exp_f32 v97, v97\n  s_nop 0")
    A("  v_mov_b32 v98, v96\n  v_mov_b32 v99, v97\n  s_nop 1")
    for c in ctrls:
        A(f"  v_add_f32_dpp v98, v98, v98 {c} row_mask:0xf bank_mask:0xf\n  v_add_f32_dpp v99, v99, v99 {c} row_mask:0xf bank_mask:0xf\n  s_nop 1")
    A("  v_rcp_f32 v98, v98\n  v_rcp_f32 v99, v99\n  s_nop 0\n  v_mul_f32 v98, v36, v98\n  v_mul_f32 v99, v36, v99\n  v_mul_f32 v96, v96, v98\n  v_mul_f32 v97, v97, v99")
    A("  v_cvt_pk_bf16_f32 v96, v96, v97")
    A("  ds_write_b16 v29, v96\n  ds_write_b16_d16_hi v29, v96 offset:32")
    A("  s_waitcnt lgkmcnt(0)")
    for b in range(2):
        A(f"  ds_read_b128 v[{64+8*b}:{67+8*b}], v28 offset:{b*256}\n  ds_read_b128 v[{68+8*b}:{71+8*b}], v28 offset:{b*256+16}")
    for c in range(4):
        A(f"  ds_read_b128 v[{80+4*c}:{83+4*c}], v{30+c}")
    A("  s_waitcnt lgkmcnt(0)")
    for b in range(2):
        for j in range(8):
            A(f"  v_mad_u32_u24 v{64+8*b+j}, v{64+8*b+j}, s40, v{12+(j>>1)}")
    units = [(b, T) for T in range(3) for b in range(2)]
    issue_unit(24, *units[0], 0)
    A("  s_mul_i32 s50, s46, 6144")
    for k, (b, T) in enumerate(units):
        if k + 1 < len(units):
            issue_unit(24, *units[k+1], (k+1) & 1)
            A("  s_waitcnt vmcnt(8)")
        else:
            A("  s_waitcnt vmcnt(0)")
        for cc in range(2):
            c = 2*b + cc
            for x in range(4):
                base = (k & 1)*UNIT + cc*512
                A(f"  ds_read_b64_tr_b16 v[100:101], v{24 + x} offset:{base}")
                A(f"  ds_read_b64_tr_b16 v[102:103], v{24 + (x ^ 2)} offset:{base + 4608}")
                A("  s_waitcnt lgkmcnt(0)")
                cin = "0" if c == 0 else f"v[{108+4*x}:{111+4*x}]"
                A(f"  v_mfma_f32_16x16x32_bf16 v[{108+4*x}:{111+4*x}], v[100:103], v[{80+4*c}:{83+4*c}], {cin}")
        if b == 1:
            A("  s_nop 7")
            for x in range(4):
                A(f"  v_cvt_pk_bf16_f32 v{124+2*x}, v{108+4*x}, v{109+4*x}\n  v_cvt_pk_bf16_f32 v{125+2*x}, v{110+4*x}, v{111+4*x}")
            A(f"  s_add_u32 s55, s50, {2*T*1024}")
            A(f"  buffer_store_dwordx4 v[124:127], v35, s[32:35], s55 offen")
            A(f"  buffer_store_dwordx4 v[128:131], v35, s[32:35], s55 offen offset:1024")
    A("  s_waitcnt vmcnt(0)")
    A("  s_add_u32 s45, s45, 1\n  s_cmp_lt_u32 s45, 2\n  s_cbranch_scc1 GK_ITER")
    A("GK_END:\n  s_endpgm")

def desc(name, vgpr, accum, sgpr=102):
    return f""".section .rodata,"a"
.p2align 6
.amdhsa_kernel {name}
  .amdhsa_next_free_vgpr {vgpr}
  .amdhsa_next_free_sgpr {sgpr}
  .amdhsa_accum_offset {accum}
  .amdhsa_group_segment_fixed_size 0
  .amdhsa_kernarg_size 80
  .amdhsa_user_sgpr_count 2
  .amdhsa_user_sgpr_kernarg_segment_ptr 1
  .amdhsa_system_sgpr_workgroup_id_x 1
.end_amdhsa_kernel
.text
"""
if __name__ == "__main__":
    A = Asm()
    A('.amdgcn_target "amdgcn-amd-amdhsa--gfx950"\n.text')
    gen_gather_kernel(A)
    A(desc("memattn_kernel", 136, 136))
    open("gk.s", "w").write(A.text())
```

```python
import re
from asmlib import parse, regs_of

class Item:
    def __init__(self, text, cost, cls, lo=0, hi=10**9, newgap=False):
        self.newgap = newgap
        self.text = text if isinstance(text, list) else [text]
        self.cost = cost; self.cls = cls; self.lo = lo; self.hi = hi
        self.gap = None

def schedule(mfmas, streams, cap=2, fixed=None, name=""):
    n = len(mfmas)
    heads = [0] * len(streams)
    out = []
    over = 0; under = 0
    fixed = fixed or {}
    gaps = []
    for g in range(n):
        out.append(("M", mfmas[g]))
        for l in fixed.get(g, []): out.append(("F", l))
        room = cap
        chosenL = []; chosenV = []; chosenS = []
        rank = {"S": 0, "L": 1, "M": 1, "V": 2}
        lastrank = {}
        def ok(si, it):
            if si in lastrank:
                if it.newgap: return False
                if rank[it.cls] < lastrank[si]: return False
            return True
        while True:
            cands = []
            for si, st in enumerate(streams):
                if heads[si] < len(st):
                    it = st[heads[si]]
                    if it.lo <= g and ok(si, it): cands.append((it.hi, si, it))
            cands.sort(key=lambda x: (x[0], x[1]))
            pick = None
            for hi, si, it in cands:
                must = hi <= g
                if it.cls == "S":
                    if len(chosenS) < 1 and not fixed.get(g) or must or (room >= 1 and hi <= g + 2):
                        pick = (si, it); break
                    continue
                if it.cost <= room or must:
                    pick = (si, it); break
            if pick is None: break
            si, it = pick
            heads[si] += 1; it.gap = g; lastrank[si] = rank[it.cls]
            if it.cls == "S":
                if len(chosenS) >= 1 or fixed.get(g): room -= 1
                chosenS.append(it)
            elif it.cls in ("L", "M"):
                chosenL.append(it); room -= it.cost
            else:
                chosenV.append(it); room -= it.cost
            if room <= 0 and not any(st[heads[i]].hi <= g and ok(i, st[heads[i]]) for i, st in enumerate(streams) if heads[i] < len(st)):
                got = False
                if not chosenS and not fixed.get(g):
                    for si2, st in enumerate(streams):
                        if heads[si2] < len(st) and st[heads[si2]].cls == "S" and st[heads[si2]].lo <= g and ok(si2, st[heads[si2]]):
                            it2 = st[heads[si2]]; heads[si2] += 1; it2.gap = g; chosenS.append(it2); break
                break
        for it in chosenS + chosenL + chosenV:
            for l in it.text: out.append((it.cls, l))
        if room < 0: over += -room
        else: under += room
        gaps.append(cap - room)
    left = [(si, st[heads[si]:]) for si, st in enumerate(streams) if heads[si] < len(st)]
    if left:
        for si, rest in left:
            for it in rest:
                for l in it.text: out.append((it.cls, l))
                over += it.cost
        print(f"[sched {name}] leftover items appended at end:", [(si, len(r)) for si, r in left])
    print(f"[sched {name}] mfma={n} over={over} under={under} est_cycles={(n*(2+cap)+over)*4}")
    return out

def insert_lgkm_waits(seq, initial=None):
    q = [list(x) for x in (initial or [])]
    out = []
    last_m = None
    issued_since_m = 0
    for cls, line in seq:
        I = parse(line)
        if I is None:
            out.append(line); continue
        if I.op == "s_waitcnt":
            m = re.search(r"lgkmcnt\((\d+)\)", line)
            if m:
                k = int(m.group(1))
                while len(q) > k: q.pop(0)
            out.append(line); continue
        touched = set(I.uses) | set(I.defs)
        need = -1
        for idx, d in enumerate(q):
            if touched & set(d): need = idx
        if need >= 0:
            n_after = len(q) - 1 - need
            if I.cls == "mfma" and last_m is not None and n_after >= issued_since_m:
                N = n_after - issued_since_m
                out.insert(last_m, f"  s_waitcnt lgkmcnt({min(N,15)})")
                q = q[need + 1:]
            else:
                out.append(f"  s_waitcnt lgkmcnt({min(n_after,15)})")
                q = q[need + 1:]
        out.append(line if line.startswith(" ") else "  " + line)
        if I.cls == "ds":
            q.append(I.defs); issued_since_m += 1
        if I.cls == "mfma":
            last_m = len(out); issued_since_m = 0
    return out, q
```

```python
import sys
from asmlib import Asm, check_hazards
from sched import Item, schedule, insert_lgkm_waits
from gen_gk import gen_gather_kernel, desc, f2u, CSCALE, LOG2E, HEAD

KRING = 0
VRING = 36864
TILE = 12288
QAREA = 49152
STAGE = 73728
LDS_BYTES = 163840 - 1024*0

vLANE = 1
vKA = 2
vVA = 4
vDV = 8
vX = 11
vNINF = 12
vLIN = 13
vT0 = 14; vT1 = 15
S0 = 16
P0 = 48
NEGM = 80
L0 = 96
ONES = 112
MNEG = 116
QV = 120
POOL = 152
TMP = 184
EPI = 192

def vq(r): return f"v[{r}:{r+3}]"
def aq(r): return f"a[{r}:{r+3}]"
def Sreg(k, b): return S0 + k*16 + b*4
def Preg(par, b): return P0 + par*16 + b*4
def Oreg(b, d): return (b*12 + d)*4
def Qop(b, s):
    if b >= 2: return aq(192 + ((b-2)*6 + s)*4)
    if b == 0 and s < 4: return aq(240 + s*4)
    k = (s - 4) if b == 0 else (2 + s)
    return vq(QV + k*4)
def pool(z): return POOL + (z % 8)*4

sK, sV, sQ, sO, sW = 8, 12, 16, 20, 24
sWAVE, sI, sH, sN = 28, 29, 30, 31
sT, sKS, sDK, sDV, sKOFF, sVOFF = 32, 33, 34, 35, 36, 37
sDA, sDB, sP1LAST = 38, 39, 40
sD, sMASK = 41, 42
sTHR, sKM0, sVM0, sNX = 50, 52, 53, 54
sC, sHI = 55, 56
sG1 = 57
sTMP = 58
sDV2 = 59
sOMA, sOMB, sROWA, sROWB = 60, 61, 62, 63
sWB = 64

class Gen:
    def __init__(self):
        self.A = Asm()
        self.out_of_line = []
        self.uid = 0

    def kread(self, f, lo, hi):
        k, s = divmod(f, 6)
        T, sg = s >> 1, s & 1
        return Item(f"ds_read_b128 {vq(pool(f))}, v{vKA+sg} offset:{k*6144 + T*128}", 1, "L", lo, hi)
    def vread(self, d, rho, lo, hi):
        T, x = d >> 2, d & 3
        r = pool(12 + d) + 2*rho
        return Item(f"ds_read_b64_tr_b16 v[{r}:{r+1}], v{vVA+x} offset:{rho*6144 + T*128}", 1, "L", lo, hi)

    def mask_block(self, label, back, kappa, betas2, diag_sreg):
        L = [f"{label}:"]
        L.append(f"  s_sub_u32 s{sD}, s{sT}, s{diag_sreg}")
        L.append(f"  s_sub_u32 s{sD}, s{sD}, s{sWAVE}")
        L.append(f"  s_lshl_b32 s{sD}, s{sD}, 5")
        for bi, b in enumerate(betas2):
            for r in range(4):
                L.append(f"  s_add_i32 s{sTMP}, s{sD}, {16*(kappa-bi) + r}")
                L.append(f"  v_cmp_le_i32 s[{sMASK+2*r}:{sMASK+2*r+1}], s{sTMP}, v{vX}")
            L.append("  s_nop 1")
            for r in range(4):
                L.append(f"  v_cndmask_b32 v{NEGM+4*b+r}, v{vNINF}, v{MNEG+b}, s[{sMASK+2*r}:{sMASK+2*r+1}]")
        L.append("  s_nop 1")
        L.append(f"  s_branch {back}")
        self.out_of_line.append(L)

    def rowmax(self, L, b, dst):
        s0, s1 = Sreg(0, b), Sreg(1, b)
        L.append(f"  v_max3_f32 v{dst}, v{s0}, v{s0+1}, v{s0+2}")
        L.append(f"  v_max3_f32 v{dst}, v{dst}, v{s0+3}, v{s1}")
        L.append(f"  v_max3_f32 v{dst}, v{dst}, v{s1+1}, v{s1+2}")
        L.append(f"  v_max_f32 v{dst}, v{dst}, v{s1+3}")
        L.append(f"  v_mov_b32 v{vT0}, v{dst}\n  s_nop 1")
        L.append(f"  v_permlane16_swap_b32 v{dst}, v{vT0}\n  s_nop 1")
        L.append(f"  v_max_f32 v{dst}, v{dst}, v{vT0}")
        L.append(f"  v_mov_b32 v{vT0}, v{dst}\n  s_nop 1")
        L.append(f"  v_permlane32_swap_b32 v{dst}, v{vT0}\n  s_nop 1")
        L.append(f"  v_max_f32 v{dst}, v{dst}, v{vT0}")

    def expcvt(self, L, b, par):
        for k in range(2):
            for h in range(2):
                s = Sreg(k, b) + 2*h
                L.append(f"  v_exp_f32 v{TMP}, v{s}\n  v_exp_f32 v{TMP+1}, v{s+1}\n  s_nop 0")
                L.append(f"  v_cvt_pk_bf16_f32 v{Preg(par,b)+2*k+h}, v{TMP}, v{TMP+1}")

    def rare_block(self, label, back, betas, par):
        L = [f"{label}:"]
        L.append("  s_nop 7\n  s_nop 7")
        for b in betas:
            self.rowmax(L, b, TMP+2)
            L.append(f"  v_ceil_f32 v{TMP+2}, v{TMP+2}")
            L.append(f"  v_frexp_exp_i32_f32 v{TMP+3}, v{L0+4*b}")
            L.append(f"  v_add_u32 v{TMP+3}, -12, v{TMP+3}\n  v_cvt_f32_i32 v{TMP+3}, v{TMP+3}")
            L.append(f"  v_max3_f32 v{TMP+2}, v{TMP+2}, v{TMP+3}, 0")
            L.append(f"  v_cvt_i32_f32 v{TMP+3}, v{TMP+2}\n  v_sub_u32 v{TMP+3}, 0, v{TMP+3}")
            L.append(f"  v_ldexp_f32 v{TMP+4}, 1.0, v{TMP+3}               ; alpha")
            for k in range(2):
                for r in range(4):
                    L.append(f"  v_sub_f32 v{Sreg(k,b)+r}, v{Sreg(k,b)+r}, v{TMP+2}")
            for r in range(4):
                L.append(f"  v_sub_f32 v{NEGM+4*b+r}, v{NEGM+4*b+r}, v{TMP+2}")
            L.append(f"  v_sub_f32 v{MNEG+b}, v{MNEG+b}, v{TMP+2}")
            for d in range(12):
                for r in range(4):
                    a = Oreg(b, d) + r
                    L.append(f"  v_accvgpr_read_b32 v{TMP+5}, a{a}\n  s_nop 0\n  v_mul_f32 v{TMP+5}, v{TMP+5}, v{TMP+4}\n  s_nop 0\n  v_accvgpr_write_b32 a{a}, v{TMP+5}")
            self.expcvt(L, b, par)
            L.append(f"  v_mov_b32 v{TMP+6}, v{TMP+4}")
            L.append("  s_nop 1")
            L.append(f"  v_mfma_f32_16x16x32_bf16 {vq(EPI)}, {vq(ONES)}, {vq(Preg(par,b))}, 0")
            L.append("  s_nop 7\n  s_nop 1")
            L.append(f"  v_mov_b32 v{vT1}, 0x203")
            L.append(f"  v_cmp_class_f32 vcc, v{L0+4*b}, v{vT1}")
            L.append(f"  v_mul_f32 v{TMP+5}, v{L0+4*b}, v{TMP+6}")
            L.append("  s_nop 1")
            L.append(f"  v_cndmask_b32 v{TMP+5}, v{TMP+5}, v{EPI}, vcc")
            for r in range(4):
                L.append(f"  v_mov_b32 v{L0+4*b+r}, v{TMP+5}")
        L.append("  s_nop 3")
        L.append(f"  s_branch {back}")
        self.out_of_line.append(L)

    def step(self, kind, par, name):
        qb = [0, 1, 2, 3] if kind == "p1" else [2, 3]
        pb = [0, 1, 2, 3] if kind in ("p1", "tr") else [2, 3]
        nq, npv = len(qb), len(pb)
        NQ = 12*nq
        mf = []
        for f in range(12):
            k, s = divmod(f, 6)
            for b in qb:
                c = vq(NEGM+4*b) if s == 0 else vq(Sreg(k, b))
                mf.append(f"v_mfma_f32_16x16x32_bf16 {vq(Sreg(k,b))}, {vq(pool(f))}, {Qop(b,s)}, {c}")
        pv = []
        for d in range(12):
            for b in pb:
                pv.append(f"v_mfma_f32_16x16x32_bf16 {aq(Oreg(b,d))}, {vq(pool(12+d))}, {vq(Preg(par^1,b))}, {aq(Oreg(b,d))}")
        rs = [f"v_mfma_f32_16x16x32_bf16 {vq(L0+4*b)}, {vq(ONES)}, {vq(Preg(par,b))}, {vq(L0+4*b)}" for b in qb]
        RSD = 9 if kind == "p1" else (8 if kind == "p2" else 6)
        rs_pos = NQ + RSD*npv
        mf = mf + pv[:RSD*npv] + rs + pv[RSD*npv:]
        n = len(mf)
        def pvgap(d):
            g = NQ + d*npv
            return g + (len(rs) if d >= RSD else 0)
        LEAD = 8
        BG = NQ - (10 if nq == 4 else 8)
        ks = []
        for f in range(4, 12):
            use = f*nq
            free = (f-8)*nq + nq - 1 if f >= 8 else -1
            hi = min(use - LEAD, BG - 6)
            lo = max(free + 1, hi - 6, 0)
            ks.append(self.kread(f, lo, max(hi, lo)))
        vs = []
        for d in range(12):
            use = pvgap(d)
            z = 12 + d
            prev = z - 8
            free = (prev*nq + nq - 1) if prev < 12 else pvgap(prev - 12) + npv - 1
            lo = max(free + 1, BG + 1, use - LEAD - 4)
            hi = max(use - LEAD if npv == 4 else use - 7, lo)
            vs.append(self.vread(d, 0, lo, hi)); vs.append(self.vread(d, 1, lo, hi))
        kn = []
        for f in range(4):
            free = pvgap(f + 4) + npv - 1
            lo = max(free + 1, n - 12 + 2*f if n - 12 + 2*f > free else free + 1)
            kn.append(self.kread(f, lo, min(n - 1, max(lo, n - 6 + f))))
        sm = []
        ti = 0
        for k in range(2):
            pend = None
            for bi, b in enumerate(qb):
                ready = (6*k + 5)*nq + bi + 4
                hi = (NQ + 6) if k == 0 else rs_pos - 2
                for h in range(2):
                    s = Sreg(k, b) + 2*h
                    t0 = TMP + (ti % 4)*2; ti += 1
                    sm.append(Item(f"v_exp_f32 v{t0}, v{s}", 2, "V", ready, hi))
                    if pend: sm.append(pend)
                    sm.append(Item(f"v_exp_f32 v{t0+1}, v{s+1}", 2, "V", ready, hi))
                    pend = Item(f"v_cvt_pk_bf16_f32 v{Preg(par,b)+2*k+h}, v{t0}, v{t0+1}", 1, "V", ready, hi)
            pend.newgap = True
            sm.append(pend)
        ck = []
        cg = rs_pos + len(rs) + 3
        lregs = [L0+4*b for b in qb]
        if nq == 4:
            ck.append(Item(f"v_max3_f32 v{vT0}, v{lregs[0]}, v{lregs[1]}, v{lregs[2]}", 1, "V", cg, n - 3))
            ck.append(Item(f"v_max_f32 v{vT0}, v{vT0}, v{lregs[3]}", 1, "V", cg, n - 2))
        else:
            ck.append(Item(f"v_max_f32 v{vT0}, v{lregs[0]}, v{lregs[1]}", 1, "V", cg, n - 2))
        ck.append(Item(f"v_cmp_nge_f32 vcc, s{sTHR}, v{vT0}", 1, "V", cg, n - 1))
        dm = []
        g0 = NQ + 2
        dm.append(Item(f"s_add_u32 m0, s{sKM0}, s{sKS}", 1, "S", g0, g0 + 6))
        for j in range(3):
            dm.append(Item(f"buffer_load_dwordx4 v{vDV+j}, s[{sK}:{sK+3}], s{sKOFF} offen offset:{1024*j} lds", 2, "M", g0 + 1, n - 8, newgap=(j == 0)))
        dm.append(Item(f"s_add_u32 m0, s{sVM0}, s{sNX}", 1, "S", g0 + 2, n - 8))
        for j in range(3):
            dm.append(Item(f"buffer_load_dwordx4 v{vDV+j}, s[{sV}:{sV+3}], s{sVOFF} offen offset:{1024*j} lds", 2, "M", g0 + 3, n - 4, newgap=(j == 0)))
        dm.append(Item(f"s_add_u32 s{sKOFF}, s{sKOFF}, {TILE}", 1, "S", g0 + 4, n - 1))
        dm.append(Item(f"s_add_u32 s{sVOFF}, s{sVOFF}, {TILE}", 1, "S", g0 + 4, n - 1))
        ad = []
        for x in range(4):
            ad.append(Item(f"v_add_u32 v{vVA+x}, s{sDV}, v{vVA+x}", 1, "V", 0, BG - 1))
        ka = []
        for x in range(2):
            ka.append(Item(f"v_add_u32 v{vKA+x}, s{sDK}, v{vKA+x}", 1, "V", BG + 1, kn[0].lo - 1))
        sc = []
        fixed = {}
        fixed[BG] = ["s_waitcnt vmcnt(6) lgkmcnt(0)", "s_barrier"]
        diag = sDA if kind == "p1" else sDB
        mb = [0, 1] if kind == "p1" else [2, 3]
        pre = []
        pre.append(f"  s_mov_b32 s{sDV}, s{sDV2}")
        pre.append(f"  s_mov_b32 s{sDV2}, s{sDK}")
        pre.append(f"  s_add_u32 s{sNX}, s{sKS}, {TILE}")
        pre.append(f"  s_cmp_eq_u32 s{sNX}, {3*TILE}")
        pre.append(f"  s_cselect_b32 s{sNX}, 0, s{sNX}")
        pre.append(f"  s_sub_u32 s{sDK}, s{sNX}, s{sKS}")
        pre.append(f"  s_cmp_ge_u32 s{sT}, s{diag}")
        pre.append(f"  s_cbranch_scc1 {name}_MK0")
        pre.append(f"{name}_MK0B:")
        self.mask_block(f"{name}_MK0", f"{name}_MK0B", 0, mb, diag)
        self.mask_block(f"{name}_MK1", f"{name}_MK1B", 1, mb, diag)
        gk1 = 6*nq - 1
        fixed.setdefault(gk1 - 1, []).extend([f"s_cmp_ge_u32 s{sT}, s{diag}", f"s_cbranch_scc1 {name}_MK1", f"{name}_MK1B:"])
        streams = [ks, vs, kn, sm, ck, dm, ad, ka]
        seq = schedule(mf, streams, fixed=fixed, name=name)
        init = [[f"v{pool(f)+r}" for r in range(4)] for f in range(4)]
        lines, q = insert_lgkm_waits(seq, initial=init)
        post = [f"  s_mov_b32 s{sKS}, s{sNX}", f"  s_add_u32 s{sT}, s{sT}, 1",
                f"  s_cbranch_vccnz {name}_RARE", f"{name}_RAREB:"]
        self.rare_block(f"{name}_RARE", f"{name}_RAREB", qb, par)
        return pre + lines + post

    def prologue(self):
        A = self.A
        name = "standalone__memory_aug_memorizing_tr__prompt_kernel"
        A(f".globl {name}\n.p2align 8\n.type {name},@function\n{name}:")
        A("  s_cmp_ge_u32 s2, 256\n  s_cbranch_scc1 AT_END")
        A("  s_load_dwordx4 s[68:71], s[0:1], 0      ; q, k")
        A("  s_load_dwordx2 s[72:73], s[0:1], 16     ; v")
        A("  s_load_dwordx4 s[76:79], s[0:1], 48")
        A("  s_load_dwordx2 s[74:75], s[0:1], 72     ; ws")
        A(f"  v_and_b32 v{vLANE}, 63, v0\n  v_lshrrev_b32 v0, 6, v0\n  s_nop 0\n  v_readfirstlane_b32 s{sWAVE}, v0")
        A(f"  s_and_b32 s3, s2, 7\n  s_lshr_b32 s4, s2, 3\n  s_and_b32 s{sI}, s4, 7\n  s_lshr_b32 s4, s4, 3\n  s_lshl_b32 s3, s3, 2\n  s_add_u32 s{sH}, s3, s4")
        A(f"  s_lshl_b32 s3, s{sI}, 2\n  s_sub_u32 s{sN}, 64, s3\n  s_mov_b32 s{sDA}, s3\n  s_sub_u32 s{sDB}, s{sN}, 4\n  s_add_u32 s{sP1LAST}, s3, 3")
        A(f"  s_mul_i32 s5, s{sH}, {HEAD}")
        A("  s_waitcnt lgkmcnt(0)")
        def srd(d, b):
            A(f"  s_add_u32 s{d}, s{b}, s5\n  s_addc_u32 s{d+1}, s{b+1}, 0\n  s_and_b32 s{d+1}, s{d+1}, 0xffff\n  s_mov_b32 s{d+2}, {HEAD}\n  s_mov_b32 s{d+3}, 0x20000")
        srd(sQ, 68); srd(sK, 70); srd(sV, 72); srd(sO, 78); srd(sW, 74)
        A(f"  s_lshl_b32 s3, s{sH}, 1\n  s_and_b32 s4, s3, 0xfffffffc\n  s_add_u32 s76, s76, s4\n  s_addc_u32 s77, s77, 0\n  s_load_dword s6, s[76:77], 0")
        l = vLANE
        A(f"  v_lshrrev_b32 v16, 3, v{l}\n  v_and_b32 v17, 7, v{l}\n  v_and_b32 v18, 15, v{l}\n  v_lshrrev_b32 v19, 4, v{l}")
        for j in range(3):
            A(f"  v_add_u32 v20, {8*j}, v16\n  v_mul_u32_u24 v20, 0xAAAB, v20\n  v_lshrrev_b32 v20, 17, v20\n  v_and_b32 v20, 6, v20")
            A(f"  v_xor_b32 v20, v20, v17\n  v_lshlrev_b32 v20, 4, v20\n  v_lshl_add_u32 v{vDV+j}, v16, 7, v20")
        A(f"  v_lshlrev_b32 v{vLIN}, 4, v{l}")
        A(f"  s_lshl_b32 s3, s{sI}, 7\n  s_lshl_b32 s4, s{sWAVE}, 5\n  s_add_u32 s{sROWA}, s3, s4\n  s_sub_u32 s7, 1920, s3\n  s_add_u32 s{sROWB}, s7, s4")
        A(f"  s_mul_i32 s{sROWA}, s{sROWA}, 384\n  s_mul_i32 s{sROWB}, s{sROWB}, 384")
        A(f"  s_mul_i32 s65, s{sWAVE}, 24576\n  s_add_u32 s65, s65, {QAREA}")
        for slot, b in enumerate([2, 3, 0, 1]):
            base = sROWB if b >= 2 else sROWA
            for half in range(2):
                A(f"  s_add_u32 m0, s65, {slot*6144 + half*3072}\n  s_add_u32 s3, s{base}, {(b&1)*6144 + half*3072}")
                for j in range(3):
                    A(f"  buffer_load_dwordx4 v{vDV+j}, s[{sQ}:{sQ+3}], s3 offen offset:{1024*j} lds")
        A(f"  s_mul_i32 s4, s{sWAVE}, 3072\n  s_add_u32 s{sKM0}, s4, {KRING}\n  s_add_u32 s{sVM0}, s4, {VRING}")
        for (srdn, m0r, tile, slot) in [(sK, sKM0, 0, 0), (sK, sKM0, 1, 1), (sV, sVM0, 0, 0), (sK, sKM0, 2, 2)]:
            A(f"  s_add_u32 m0, s{m0r}, {slot*TILE}\n  s_add_u32 s3, s4, {tile*TILE}")
            for j in range(3):
                A(f"  buffer_load_dwordx4 v{vDV+j}, s[{srdn}:{srdn+3}], s3 offen offset:{1024*j} lds")
        A(f"  s_add_u32 s{sKOFF}, s4, {3*TILE}\n  s_add_u32 s{sVOFF}, s4, {TILE}")
        A(f"  v_and_b32 v20, 6, v18\n  v_xor_b32 v20, v20, v19\n  v_lshlrev_b32 v20, 4, v20\n  v_mul_u32_u24 v{vKA}, 384, v18\n  v_add_u32 v{vKA}, v{vKA}, v20\n  v_xor_b32 v{vKA+1}, 64, v{vKA}")
        A(f"  v_bfe_u32 v20, v{l}, 2, 2\n  v_lshl_add_u32 v20, v19, 2, v20      ; key0 = 4G+r")
        A(f"  v_mul_u32_u24 v{vVA}, 384, v20\n  v_and_b32 v20, 6, v20\n  v_bfe_u32 v21, v{l}, 1, 1\n  v_xor_b32 v20, v20, v21\n  v_lshl_add_u32 v{vVA}, v20, 4, v{vVA}")
        A(f"  v_and_b32 v20, 1, v{l}\n  v_lshl_add_u32 v{vVA}, v20, 3, v{vVA}\n  v_add_u32 v{vVA}, {VRING}, v{vVA}")
        for x in range(1, 4): A(f"  v_xor_b32 v{vVA+x}, {32*x}, v{vVA}")
        A(f"  v_lshlrev_b32 v20, 2, v19\n  v_sub_u32 v{vX}, v18, v20\n  v_mov_b32 v{vNINF}, 0xff800000")
        A(f"  s_mov_b32 s{sC}, {hex(f2u(CSCALE))}\n  s_mov_b32 s{sHI}, 0xffff0000\n  s_mov_b32 s{sTHR}, 0x49800000     ; 2^20")
        A(f"  s_mul_i32 s{sWB}, s{sWAVE}, 16384\n  s_add_u32 s{sWB}, s{sWB}, {STAGE}")
        for r in range(4): A(f"  v_mov_b32 v{ONES+r}, 0x3f803f80")
        for r in range(16): A(f"  v_mov_b32 v{L0+r}, 0\n  v_mov_b32 v{NEGM+r}, 0")
        for r in range(4): A(f"  v_mov_b32 v{MNEG+r}, 0")
        for r in range(192): A(f"  v_accvgpr_write_b32 a{r}, 0")
        A("  s_waitcnt lgkmcnt(0)")
        A(f"  s_and_b32 s3, s3, 0\n  s_lshl_b32 s3, s{sH}, 1\n  s_and_b32 s3, s3, 2\n  s_lshl_b32 s3, s3, 3\n  s_lshr_b32 s6, s6, s3\n  s_lshl_b32 s6, s6, 16")
        A(f"  v_mov_b32 v20, s6\n  v_mul_f32 v20, {hex(f2u(LOG2E))}, v20\n  v_exp_f32 v20, v20\n  s_nop 0\n  v_add_f32 v20, 1.0, v20\n  v_rcp_f32 v20, v20\n  s_nop 0\n  v_readfirstlane_b32 s{sG1}, v20")
        A(f"  v_add_u32 v22, s65, v{vKA}\n  v_xor_b32 v23, 64, v22")
        for slot, b in enumerate([2, 3, 0, 1]):
            A(f"  s_waitcnt vmcnt({(3-slot)*6 + 12})")
            for s in range(6):
                A(f"  ds_read_b128 {vq(POOL+4*s)}, v{22+(s&1)} offset:{slot*6144 + (s>>1)*128}")
            for s in range(6):
                A(f"  s_waitcnt lgkmcnt({5-s})")
                op = Qop(b, s)
                for r in range(4):
                    src = POOL + 4*s + r
                    A(f"  v_lshlrev_b32 v24, 16, v{src}\n  v_and_b32 v25, s{sHI}, v{src}\n  v_mul_f32 v24, s{sC}, v24\n  v_mul_f32 v25, s{sC}, v25")
                    base = int(op[2:op.index(':')])
                    if op[0] == 'v':
                        A(f"  v_cvt_pk_bf16_f32 v{base+r}, v24, v25")
                    else:
                        A(f"  v_cvt_pk_bf16_f32 v26, v24, v25\n  s_nop 0\n  v_accvgpr_write_b32 a{base+r}, v26")

    def step0(self):
        A = self.A
        A(f"  s_mov_b32 s{sT}, 0\n  s_mov_b32 s{sKS}, 0")
        A("  s_waitcnt vmcnt(9)\n  s_barrier")
        A(f"  s_cmp_ge_u32 s{sT}, s{sDA}\n  s_cbranch_scc1 S0_MK0\nS0_MK0B:")
        self.mask_block("S0_MK0", "S0_MK0B", 0, [0, 1], sDA)
        self.mask_block("S0_MK1", "S0_MK1B", 1, [0, 1], sDA)
        for k in range(2):
            if k == 1:
                A(f"  s_nop 3\n  s_cmp_ge_u32 s{sT}, s{sDA}\n  s_cbranch_scc1 S0_MK1\nS0_MK1B:")
            for s in range(6):
                A(f"  ds_read_b128 {vq(POOL+4*s)}, v{vKA+(s&1)} offset:{k*6144 + (s>>1)*128}")
            for s in range(6):
                A(f"  s_waitcnt lgkmcnt({5-s})")
                for b in range(4):
                    c = vq(NEGM+4*b) if s == 0 else vq(Sreg(k, b))
                    A(f"  v_mfma_f32_16x16x32_bf16 {vq(Sreg(k,b))}, {vq(POOL+4*s)}, {Qop(b,s)}, {c}")
        A("  s_waitcnt vmcnt(3)\n  s_barrier")
        A(f"  s_add_u32 m0, s{sKM0}, 0\n  s_nop 0")
        for j in range(3): A(f"  buffer_load_dwordx4 v{vDV+j}, s[{sK}:{sK+3}], s{sKOFF} offen offset:{1024*j} lds")
        A(f"  s_add_u32 m0, s{sVM0}, {TILE}\n  s_nop 0")
        for j in range(3): A(f"  buffer_load_dwordx4 v{vDV+j}, s[{sV}:{sV+3}], s{sVOFF} offen offset:{1024*j} lds")
        A(f"  s_add_u32 s{sKOFF}, s{sKOFF}, {TILE}\n  s_add_u32 s{sVOFF}, s{sVOFF}, {TILE}")
        for x in range(2): A(f"  v_add_u32 v{vKA+x}, {TILE}, v{vKA+x}")
        A("  s_nop 7")
        L = []
        for b in range(4):
            self.rowmax(L, b, TMP+2)
            for k in range(2):
                for r in range(4):
                    L.append(f"  v_sub_f32 v{Sreg(k,b)+r}, v{Sreg(k,b)+r}, v{TMP+2}")
            L.append(f"  v_sub_f32 v{MNEG+b}, 0, v{TMP+2}")
            for r in range(4): L.append(f"  v_sub_f32 v{NEGM+4*b+r}, 0, v{TMP+2}")
            self.expcvt(L, b, 0)
        for l in L: A(l)
        A("  s_nop 1")
        for b in range(4):
            A(f"  v_mfma_f32_16x16x32_bf16 {vq(L0+4*b)}, {vq(ONES)}, {vq(Preg(0,b))}, {vq(L0+4*b)}")
        for f in range(4):
            k, s = divmod(f, 6)
            A(f"  ds_read_b128 {vq(pool(f))}, v{vKA+(s&1)} offset:{(s>>1)*128}")
        A(f"  s_mov_b32 s{sKS}, {TILE}\n  s_mov_b32 s{sDK}, {TILE}\n  s_mov_b32 s{sDV2}, 0\n  s_mov_b32 s{sT}, 1")

    def drain(self):
        A = self.A
        A(f"  v_add_u32 v{vVA}, s{sDV2}, v{vVA}\n  v_add_u32 v{vVA+1}, s{sDV2}, v{vVA+1}\n  v_add_u32 v{vVA+2}, s{sDV2}, v{vVA+2}\n  v_add_u32 v{vVA+3}, s{sDV2}, v{vVA+3}")
        A("  s_waitcnt vmcnt(0) lgkmcnt(0)\n  s_barrier")
        seq = []
        for d in range(12):
            T, x = d >> 2, d & 3
            r = POOL + (d % 8)*4
            seq.append(("L", f"ds_read_b64_tr_b16 v[{r}:{r+1}], v{vVA+x} offset:{T*128}"))
            seq.append(("L", f"ds_read_b64_tr_b16 v[{r+2}:{r+3}], v{vVA+x} offset:{6144 + T*128}"))
            if d >= 4:
                dd = d - 4
                for b in (2, 3):
                    seq.append(("M", f"v_mfma_f32_16x16x32_bf16 {aq(Oreg(b,dd))}, {vq(POOL+(dd%8)*4)}, {vq(Preg(1,b))}, {aq(Oreg(b,dd))}"))
        for dd in range(8, 12):
            for b in (2, 3):
                seq.append(("M", f"v_mfma_f32_16x16x32_bf16 {aq(Oreg(b,dd))}, {vq(POOL+(dd%8)*4)}, {vq(Preg(1,b))}, {aq(Oreg(b,dd))}"))
        lines, _ = insert_lgkm_waits(seq)
        for l in lines: A(l)

    def epilogue(self, betas, rowreg, tag):
        A = self.A
        E = EPI
        l = vLANE
        A(f"  v_and_b32 v{E+4}, 15, v{l}\n  v_lshrrev_b32 v{E+5}, 4, v{l}      ; n, G")
        A(f"  v_lshrrev_b32 v{E+6}, 1, v{E+5}\n  v_and_b32 v{E+7}, 7, v{E+4}\n  v_xor_b32 v{E+6}, v{E+6}, v{E+7}\n  v_lshlrev_b32 v{E+6}, 4, v{E+6}")
        A(f"  v_mul_u32_u24 v{E}, 384, v{E+4}\n  v_add_u32 v{E}, v{E}, v{E+6}\n  v_and_b32 v{E+6}, 1, v{E+5}\n  v_lshl_add_u32 v{E}, v{E+6}, 3, v{E}\n  v_add_u32 v{E}, s{sWB}, v{E}")
        WA = [E+8, E+9, E+10, E+11]
        A(f"  v_mov_b32 v{WA[0]}, v{E}")
        for x in range(1, 4): A(f"  v_xor_b32 v{WA[x]}, {32*x}, v{E}")
        A(f"  v_lshrrev_b32 v{E+4}, 3, v{l}\n  v_and_b32 v{E+5}, 7, v{l}")
        for j in range(3):
            A(f"  v_add_u32 v{E+6}, {8*j}, v{E+4}\n  v_mul_u32_u24 v{E+7}, 0xAAAB, v{E+6}\n  v_lshrrev_b32 v{E+7}, 17, v{E+7}\n  v_and_b32 v{E+7}, 7, v{E+7}")
            A(f"  v_xor_b32 v{E+7}, v{E+7}, v{E+5}\n  v_lshlrev_b32 v{E+7}, 4, v{E+7}\n  v_lshl_add_u32 v{E+1+j}, v{E+6}, 7, v{E+7}\n  v_add_u32 v{E+1+j}, s{sWB}, v{E+1+j}")
        OM = E + 12
        X = E + 36
        for bi, b in enumerate(betas):
            A(f"  s_add_u32 s3, s{rowreg}, {bi*6144}")
            for qd in range(6):
                if qd == 4: A(f"  s_add_u32 s4, s3, 4096")
                sreg, off = ("s3", qd*1024) if qd < 4 else ("s4", (qd-4)*1024)
                A(f"  buffer_load_dwordx4 {vq(OM+4*qd)}, v{vLIN}, s[{sW}:{sW+3}], {sreg} offen offset:{off}")
            A(f"  v_rcp_f32 v{X}, v{L0+4*b}\n  s_nop 0\n  v_mul_f32 v{X}, s{sG1}, v{X}       ; f")
            for d in range(12):
                A(f"  s_waitcnt vmcnt({5 - (d>>1)})") if d % 2 == 0 else None
                for h in range(2):
                    om = OM + 2*d + h
                    a = Oreg(b, d) + 2*h
                    A(f"  v_accvgpr_read_b32 v{X+1}, a{a}\n  v_accvgpr_read_b32 v{X+2}, a{a+1}\n  v_lshlrev_b32 v{X+3}, 16, v{om}\n  v_and_b32 v{X+4}, s{sHI}, v{om}")
                    A(f"  v_fma_f32 v{X+1}, v{X+1}, v{X}, v{X+3}\n  v_fma_f32 v{X+2}, v{X+2}, v{X}, v{X+4}")
                    A(f"  v_cvt_pk_bf16_f32 v{X+6+h}, v{X+1}, v{X+2}")
                A(f"  ds_write_b64 v{WA[d&3]}, v[{X+6}:{X+7}] offset:{(d>>2)*128}")
            A("  s_waitcnt lgkmcnt(0)")
            for nn in range(6):
                A(f"  ds_read_b128 {vq(OM+4*nn)}, v{E+1+(nn%3)} offset:{(nn//3)*3072}")
            A(f"  s_add_u32 s3, s{rowreg}, {bi*6144}\n  s_add_u32 s4, s3, 4096")
            for nn in range(6):
                sreg, off = ("s3", nn*1024) if nn < 4 else ("s4", (nn-4)*1024)
                A(f"  s_waitcnt lgkmcnt({5-nn})")
                A(f"  buffer_store_dwordx4 {vq(OM+4*nn)}, v{vLIN}, s[{sO}:{sO+3}], {sreg} offen offset:{off}")
            if bi == 0:
                A("  s_waitcnt vmcnt(0)")

    def build(self):
        A = self.A
        self.prologue()
        self.step0()
        A("  s_branch P1_LOOP\n.p2align 6\nP1_LOOP:")
        for l in self.step("p1", 1, "P1O"): A(l)
        A(f"  s_cmp_gt_u32 s{sT}, s{sP1LAST}\n  s_cbranch_scc1 P1_DONE")
        for l in self.step("p1", 0, "P1E"): A(l)
        A("  s_branch P1_LOOP")
        A("P1_DONE:")
        for l in self.step("tr", 0, "TR"): A(l)
        A("  s_waitcnt lgkmcnt(0)\n  s_nop 7")
        self.epilogue([0, 1], sROWA, "A")
        A("  s_waitcnt vmcnt(0)")
        A("  s_branch P2_LOOP\n.p2align 6\nP2_LOOP:")
        for l in self.step("p2", 1, "P2O"): A(l)
        A(f"  s_cmp_ge_u32 s{sT}, s{sN}\n  s_cbranch_scc1 P2_DONE")
        for l in self.step("p2", 0, "P2E"): A(l)
        A("  s_branch P2_LOOP")
        A("P2_DONE:")
        self.drain()
        A("  s_nop 7")
        self.epilogue([2, 3], sROWB, "B")
        A("AT_END:\n  s_endpgm")
        for blk in self.out_of_line:
            for l in blk: A(l)
        return A

if __name__ == "__main__":
    g = Gen()
    A = g.build()
    body = A.text()
    hdr = """; Memory-augmented causal attention (memorizing transformer), gfx950.
; @launch kernel=memattn_kernel grid=(512,1,1) block=(256,1,1) lds=81920
; @launch kernel=standalone__memory_aug_memorizing_tr__prompt_kernel grid=(256,1,1) block=(256,1,1) lds=163840
.amdgcn_target "amdgcn-amd-amdhsa--gfx950"
.text
"""
    G = Asm()
    gen_gather_kernel(G)
    full = hdr + body + desc("standalone__memory_aug_memorizing_tr__prompt_kernel", 512, 256) + G.text() + desc("memattn_kernel", 136, 136)
    open("attn.s", "w").write(full)
    print("bytes", len(full))
```

```python
import sys
from asmlib import Asm, check_hazards
from sched import Item, schedule, insert_lgkm_waits
from gen_gk import gen_gather_kernel, desc, f2u, CSCALE, LOG2E, HEAD

KRING = 0
VRING = 36864
TILE = 12288
QAREA = 49152
STAGE = 73728
LDS_BYTES = 163840 - 1024*0

vLANE = 1
vKA = 2
vVA = 4
vDV = 8
vX = 11
vNINF = 12
vLIN = 13
vT0 = 14; vT1 = 15
S0 = 16
P0 = 48
NEGM = 80
L0 = 96
ONES = 112
MNEG = 116
QV = 120
POOL = 152
TMP = 184
EPI = 192

def vq(r): return f"v[{r}:{r+3}]"
def aq(r): return f"a[{r}:{r+3}]"
def Sreg(k, b): return S0 + k*16 + b*4
def Preg(par, b): return P0 + par*16 + b*4
def Oreg(b, d): return (b*12 + d)*4
def Qop(b, s):
    if b >= 2: return aq(192 + ((b-2)*6 + s)*4)
    if b == 0 and s < 4: return aq(240 + s*4)
    k = (s - 4) if b == 0 else (2 + s)
    return vq(QV + k*4)
def pool(z): return POOL + (z % 8)*4

sK, sV, sQ, sO, sW = 8, 12, 16, 20, 24
sWAVE, sI, sH, sN = 28, 29, 30, 31
sT, sKS, sDK, sDV, sKOFF, sVOFF = 32, 33, 34, 35, 36, 37
sDA, sDB, sP1LAST = 38, 39, 40
sD, sMASK = 41, 42
sTHR, sKM0, sVM0, sNX = 50, 52, 53, 54
sC, sHI = 55, 56
sG1 = 57
sTMP = 58
sDV2 = 59
sOMA, sOMB, sROWA, sROWB = 60, 61, 62, 63
sWB = 64

class Gen:
    def stamp(self, k):
        if not self.instr: return
        self.A(f"  s_memtime s[{80+2*k}:{81+2*k}]\n  s_waitcnt lgkmcnt(0)")
    def stamp_end(self):
        if not self.instr: return
        A = self.A
        A("  s_memrealtime s[98:99]\n  s_waitcnt lgkmcnt(0)")
        A("  s_load_dwordx2 s[4:5], s[0:1], 72\n  s_waitcnt lgkmcnt(0)")
        A("  s_add_u32 s4, s4, 0x8000000\n  s_addc_u32 s5, s5, 0")
        A(f"  s_lshl_b32 s3, s2, 2\n  s_add_u32 s3, s3, s{sWAVE}\n  s_lshl_b32 s3, s3, 7\n  v_mov_b32 v2, s3")
        for k in range(9):
            A(f"  s_sub_u32 s3, s{80+2*k}, s80\n  v_mov_b32 v3, s3\n  global_store_dword v2, v3, s[4:5] offset:{4*k}")
        A("  v_mov_b32 v3, s100\n  global_store_dword v2, v3, s[4:5] offset:40\n  v_mov_b32 v3, s98\n  global_store_dword v2, v3, s[4:5] offset:44")
        A("  s_getreg_b32 s3, hwreg(HW_REG_XCC_ID)\n  v_mov_b32 v3, s3\n  global_store_dword v2, v3, s[4:5] offset:48")
    def __init__(self, instr=False):
        self.instr = instr
        self.A = Asm()
        self.out_of_line = []
        self.uid = 0

    def kread(self, f, lo, hi):
        k, s = divmod(f, 6)
        T, sg = s >> 1, s & 1
        return Item(f"ds_read_b128 {vq(pool(f))}, v{vKA+sg} offset:{k*6144 + T*128}", 1, "L", lo, hi)
    def vread(self, d, rho, lo, hi):
        T, x = d >> 2, d & 3
        r = pool(12 + d) + 2*rho
        return Item(f"ds_read_b64_tr_b16 v[{r}:{r+1}], v{vVA+x} offset:{rho*6144 + T*128}", 1, "L", lo, hi)

    def mask_block(self, label, back, kappa, betas2, diag_sreg):
        L = [f"{label}:"]
        L.append(f"  s_sub_u32 s{sD}, s{sT}, s{diag_sreg}")
        L.append(f"  s_sub_u32 s{sD}, s{sD}, s{sWAVE}")
        L.append(f"  s_lshl_b32 s{sD}, s{sD}, 5")
        for bi, b in enumerate(betas2):
            for r in range(4):
                L.append(f"  s_add_i32 s{sTMP}, s{sD}, {16*(kappa-bi) + r}")
                L.append(f"  v_cmp_le_i32 s[{sMASK+2*r}:{sMASK+2*r+1}], s{sTMP}, v{vX}")
            L.append("  s_nop 1")
            for r in range(4):
                L.append(f"  v_cndmask_b32 v{NEGM+4*b+r}, v{vNINF}, v{MNEG+b}, s[{sMASK+2*r}:{sMASK+2*r+1}]")
        L.append("  s_nop 1")
        L.append(f"  s_branch {back}")
        self.out_of_line.append(L)

    def rowmax(self, L, b, dst):
        s0, s1 = Sreg(0, b), Sreg(1, b)
        L.append(f"  v_max3_f32 v{dst}, v{s0}, v{s0+1}, v{s0+2}")
        L.append(f"  v_max3_f32 v{dst}, v{dst}, v{s0+3}, v{s1}")
        L.append(f"  v_max3_f32 v{dst}, v{dst}, v{s1+1}, v{s1+2}")
        L.append(f"  v_max_f32 v{dst}, v{dst}, v{s1+3}")
        L.append(f"  v_mov_b32 v{vT0}, v{dst}\n  s_nop 1")
        L.append(f"  v_permlane16_swap_b32 v{dst}, v{vT0}\n  s_nop 1")
        L.append(f"  v_max_f32 v{dst}, v{dst}, v{vT0}")
        L.append(f"  v_mov_b32 v{vT0}, v{dst}\n  s_nop 1")
        L.append(f"  v_permlane32_swap_b32 v{dst}, v{vT0}\n  s_nop 1")
        L.append(f"  v_max_f32 v{dst}, v{dst}, v{vT0}")

    def expcvt(self, L, b, par):
        for k in range(2):
            for h in range(2):
                s = Sreg(k, b) + 2*h
                L.append(f"  v_exp_f32 v{TMP}, v{s}\n  v_exp_f32 v{TMP+1}, v{s+1}\n  s_nop 0")
                L.append(f"  v_cvt_pk_bf16_f32 v{Preg(par,b)+2*k+h}, v{TMP}, v{TMP+1}")

    def rare_block(self, label, back, betas, par):
        L = [f"{label}:"]
        L.append("  s_nop 7\n  s_nop 7")
        for b in betas:
            self.rowmax(L, b, TMP+2)
            L.append(f"  v_ceil_f32 v{TMP+2}, v{TMP+2}")
            L.append(f"  v_frexp_exp_i32_f32 v{TMP+3}, v{L0+4*b}")
            L.append(f"  v_add_u32 v{TMP+3}, -12, v{TMP+3}\n  v_cvt_f32_i32 v{TMP+3}, v{TMP+3}")
            L.append(f"  v_max3_f32 v{TMP+2}, v{TMP+2}, v{TMP+3}, 0")
            L.append(f"  v_cvt_i32_f32 v{TMP+3}, v{TMP+2}\n  v_sub_u32 v{TMP+3}, 0, v{TMP+3}")
            L.append(f"  v_ldexp_f32 v{TMP+4}, 1.0, v{TMP+3}               ; alpha")
            for k in range(2):
                for r in range(4):
                    L.append(f"  v_sub_f32 v{Sreg(k,b)+r}, v{Sreg(k,b)+r}, v{TMP+2}")
            for r in range(4):
                L.append(f"  v_sub_f32 v{NEGM+4*b+r}, v{NEGM+4*b+r}, v{TMP+2}")
            L.append(f"  v_sub_f32 v{MNEG+b}, v{MNEG+b}, v{TMP+2}")
            for d in range(12):
                for r in range(4):
                    a = Oreg(b, d) + r
                    L.append(f"  v_accvgpr_read_b32 v{TMP+5}, a{a}\n  s_nop 0\n  v_mul_f32 v{TMP+5}, v{TMP+5}, v{TMP+4}\n  s_nop 0\n  v_accvgpr_write_b32 a{a}, v{TMP+5}")
            self.expcvt(L, b, par)
            L.append(f"  v_mov_b32 v{TMP+6}, v{TMP+4}")
            L.append("  s_nop 1")
            L.append(f"  v_mfma_f32_16x16x32_bf16 {vq(EPI)}, {vq(ONES)}, {vq(Preg(par,b))}, 0")
            L.append("  s_nop 7\n  s_nop 1")
            L.append(f"  v_mov_b32 v{vT1}, 0x203")
            L.append(f"  v_cmp_class_f32 vcc, v{L0+4*b}, v{vT1}")
            L.append(f"  v_mul_f32 v{TMP+5}, v{L0+4*b}, v{TMP+6}")
            L.append("  s_nop 1")
            L.append(f"  v_cndmask_b32 v{TMP+5}, v{TMP+5}, v{EPI}, vcc")
            for r in range(4):
                L.append(f"  v_mov_b32 v{L0+4*b+r}, v{TMP+5}")
        L.append("  s_nop 3")
        L.append(f"  s_branch {back}")
        self.out_of_line.append(L)

    def step(self, kind, par, name):
        qb = [0, 1, 2, 3] if kind == "p1" else [2, 3]
        pb = [0, 1, 2, 3] if kind in ("p1", "tr") else [2, 3]
        nq, npv = len(qb), len(pb)
        NQ = 12*nq
        mf = []
        for f in range(12):
            k, s = divmod(f, 6)
            for b in qb:
                c = vq(NEGM+4*b) if s == 0 else vq(Sreg(k, b))
                mf.append(f"v_mfma_f32_16x16x32_bf16 {vq(Sreg(k,b))}, {vq(pool(f))}, {Qop(b,s)}, {c}")
        pv = []
        for d in range(12):
            for b in pb:
                pv.append(f"v_mfma_f32_16x16x32_bf16 {aq(Oreg(b,d))}, {vq(pool(12+d))}, {vq(Preg(par^1,b))}, {aq(Oreg(b,d))}")
        rs = [f"v_mfma_f32_16x16x32_bf16 {vq(L0+4*b)}, {vq(ONES)}, {vq(Preg(par,b))}, {vq(L0+4*b)}" for b in qb]
        RSD = 9 if kind == "p1" else (8 if kind == "p2" else 6)
        rs_pos = NQ + RSD*npv
        mf = mf + pv[:RSD*npv] + rs + pv[RSD*npv:]
        n = len(mf)
        def pvgap(d):
            g = NQ + d*npv
            return g + (len(rs) if d >= RSD else 0)
        LEAD = 8
        BG = NQ - (10 if nq == 4 else 8)
        ks = []
        for f in range(4, 12):
            use = f*nq
            free = (f-8)*nq + nq - 1 if f >= 8 else -1
            hi = min(use - LEAD, BG - 6)
            lo = max(free + 1, hi - 6, 0)
            ks.append(self.kread(f, lo, max(hi, lo)))
        vs = []
        for d in range(12):
            use = pvgap(d)
            z = 12 + d
            prev = z - 8
            free = (prev*nq + nq - 1) if prev < 12 else pvgap(prev - 12) + npv - 1
            lo = max(free + 1, BG + 1, use - LEAD - 4)
            hi = max(use - LEAD if npv == 4 else use - 7, lo)
            vs.append(self.vread(d, 0, lo, hi)); vs.append(self.vread(d, 1, lo, hi))
        kn = []
        for f in range(4):
            free = pvgap(f + 4) + npv - 1
            lo = max(free + 1, n - 12 + 2*f if n - 12 + 2*f > free else free + 1)
            kn.append(self.kread(f, lo, min(n - 1, max(lo, n - 6 + f))))
        sm = []
        ti = 0
        for k in range(2):
            pend = None
            for bi, b in enumerate(qb):
                ready = (6*k + 5)*nq + bi + 4
                hi = (NQ + 6) if k == 0 else rs_pos - 2
                for h in range(2):
                    s = Sreg(k, b) + 2*h
                    t0 = TMP + (ti % 4)*2; ti += 1
                    sm.append(Item(f"v_exp_f32 v{t0}, v{s}", 2, "V", ready, hi))
                    if pend: sm.append(pend)
                    sm.append(Item(f"v_exp_f32 v{t0+1}, v{s+1}", 2, "V", ready, hi))
                    pend = Item(f"v_cvt_pk_bf16_f32 v{Preg(par,b)+2*k+h}, v{t0}, v{t0+1}", 1, "V", ready, hi)
            pend.newgap = True
            sm.append(pend)
        ck = []
        cg = rs_pos + len(rs) + 3
        lregs = [L0+4*b for b in qb]
        if nq == 4:
            ck.append(Item(f"v_max3_f32 v{vT0}, v{lregs[0]}, v{lregs[1]}, v{lregs[2]}", 1, "V", cg, n - 3))
            ck.append(Item(f"v_max_f32 v{vT0}, v{vT0}, v{lregs[3]}", 1, "V", cg, n - 2))
        else:
            ck.append(Item(f"v_max_f32 v{vT0}, v{lregs[0]}, v{lregs[1]}", 1, "V", cg, n - 2))
        ck.append(Item(f"v_cmp_nge_f32 vcc, s{sTHR}, v{vT0}", 1, "V", cg, n - 1))
        dm = []
        g0 = NQ + 2
        dm.append(Item(f"s_add_u32 m0, s{sKM0}, s{sKS}", 1, "S", g0, g0 + 6))
        for j in range(3):
            dm.append(Item(f"buffer_load_dwordx4 v{vDV+j}, s[{sK}:{sK+3}], s{sKOFF} offen offset:{1024*j} lds", 2, "M", g0 + 1, n - 8, newgap=(j == 0)))
        dm.append(Item(f"s_add_u32 m0, s{sVM0}, s{sNX}", 1, "S", g0 + 2, n - 8))
        for j in range(3):
            dm.append(Item(f"buffer_load_dwordx4 v{vDV+j}, s[{sV}:{sV+3}], s{sVOFF} offen offset:{1024*j} lds", 2, "M", g0 + 3, n - 4, newgap=(j == 0)))
        dm.append(Item(f"s_add_u32 s{sKOFF}, s{sKOFF}, {TILE}", 1, "S", g0 + 4, n - 1))
        dm.append(Item(f"s_add_u32 s{sVOFF}, s{sVOFF}, {TILE}", 1, "S", g0 + 4, n - 1))
        ad = []
        for x in range(4):
            ad.append(Item(f"v_add_u32 v{vVA+x}, s{sDV}, v{vVA+x}", 1, "V", 0, BG - 1))
        ka = []
        for x in range(2):
            ka.append(Item(f"v_add_u32 v{vKA+x}, s{sDK}, v{vKA+x}", 1, "V", BG + 1, kn[0].lo - 1))
        sc = []
        fixed = {}
        fixed[BG] = ["s_waitcnt vmcnt(6) lgkmcnt(0)", "s_barrier"]
        diag = sDA if kind == "p1" else sDB
        mb = [0, 1] if kind == "p1" else [2, 3]
        pre = []
        pre.append(f"  s_mov_b32 s{sDV}, s{sDV2}")
        pre.append(f"  s_mov_b32 s{sDV2}, s{sDK}")
        pre.append(f"  s_add_u32 s{sNX}, s{sKS}, {TILE}")
        pre.append(f"  s_cmp_eq_u32 s{sNX}, {3*TILE}")
        pre.append(f"  s_cselect_b32 s{sNX}, 0, s{sNX}")
        pre.append(f"  s_sub_u32 s{sDK}, s{sNX}, s{sKS}")
        pre.append(f"  s_cmp_ge_u32 s{sT}, s{diag}")
        pre.append(f"  s_cbranch_scc1 {name}_MK0")
        pre.append(f"{name}_MK0B:")
        self.mask_block(f"{name}_MK0", f"{name}_MK0B", 0, mb, diag)
        self.mask_block(f"{name}_MK1", f"{name}_MK1B", 1, mb, diag)
        gk1 = 6*nq - 1
        fixed.setdefault(gk1 - 1, []).extend([f"s_cmp_ge_u32 s{sT}, s{diag}", f"s_cbranch_scc1 {name}_MK1", f"{name}_MK1B:"])
        streams = [ks, vs, kn, sm, ck, dm, ad, ka]
        seq = schedule(mf, streams, fixed=fixed, name=name)
        init = [[f"v{pool(f)+r}" for r in range(4)] for f in range(4)]
        lines, q = insert_lgkm_waits(seq, initial=init)
        ab = getattr(self, "ablate", "")
        if "nolgkm" in ab: lines = [l for l in lines if not (l.strip().startswith("s_waitcnt lgkmcnt"))]
        if "nobar" in ab: lines = [l for l in lines if l.strip() != "s_barrier"]
        if "novm" in ab: lines = [l.replace("vmcnt(6) lgkmcnt(0)", "lgkmcnt(0)") for l in lines]
        if "nodma" in ab: lines = [l for l in lines if " lds" not in l]
        if "nods" in ab: lines = [l for l in lines if not l.strip().startswith("ds_read")]
        if "novalu" in ab: lines = [l for l in lines if not (l.strip().startswith("v_exp") or l.strip().startswith("v_cvt"))]
        post = [f"  s_mov_b32 s{sKS}, s{sNX}", f"  s_add_u32 s{sT}, s{sT}, 1",
                f"  s_cbranch_vccnz {name}_RARE", f"{name}_RAREB:"]
        self.rare_block(f"{name}_RARE", f"{name}_RAREB", qb, par)
        if ab: post = [l for l in post if "vccnz" not in l]
        return pre + lines + post

    def prologue(self):
        A = self.A
        name = "standalone__memory_aug_memorizing_tr__prompt_kernel"
        A(f".globl {name}\n.p2align 8\n.type {name},@function\n{name}:")
        A("  s_cmp_ge_u32 s2, 256\n  s_cbranch_scc1 AT_END")
        if self.instr: A("  s_memrealtime s[100:101]")
        self.stamp(0)
        A("  s_load_dwordx4 s[68:71], s[0:1], 0      ; q, k")
        A("  s_load_dwordx2 s[72:73], s[0:1], 16     ; v")
        A("  s_load_dwordx4 s[76:79], s[0:1], 48")
        A("  s_load_dwordx2 s[74:75], s[0:1], 72     ; ws")
        A(f"  v_and_b32 v{vLANE}, 63, v0\n  v_lshrrev_b32 v0, 6, v0\n  s_nop 0\n  v_readfirstlane_b32 s{sWAVE}, v0")
        A(f"  s_and_b32 s3, s2, 7\n  s_lshr_b32 s4, s2, 3\n  s_and_b32 s{sI}, s4, 7\n  s_lshr_b32 s4, s4, 3\n  s_lshl_b32 s3, s3, 2\n  s_add_u32 s{sH}, s3, s4")
        A(f"  s_lshl_b32 s3, s{sI}, 2\n  s_sub_u32 s{sN}, 64, s3\n  s_mov_b32 s{sDA}, s3\n  s_sub_u32 s{sDB}, s{sN}, 4\n  s_add_u32 s{sP1LAST}, s3, 3")
        A(f"  s_mul_i32 s5, s{sH}, {HEAD}")
        A("  s_waitcnt lgkmcnt(0)")
        def srd(d, b):
            A(f"  s_add_u32 s{d}, s{b}, s5\n  s_addc_u32 s{d+1}, s{b+1}, 0\n  s_and_b32 s{d+1}, s{d+1}, 0xffff\n  s_mov_b32 s{d+2}, {HEAD}\n  s_mov_b32 s{d+3}, 0x20000")
        srd(sQ, 68); srd(sK, 70); srd(sV, 72); srd(sO, 78); srd(sW, 74)
        A(f"  s_lshl_b32 s3, s{sH}, 1\n  s_and_b32 s4, s3, 0xfffffffc\n  s_add_u32 s76, s76, s4\n  s_addc_u32 s77, s77, 0\n  s_load_dword s6, s[76:77], 0")
        l = vLANE
        A(f"  v_lshrrev_b32 v16, 3, v{l}\n  v_and_b32 v17, 7, v{l}\n  v_and_b32 v18, 15, v{l}\n  v_lshrrev_b32 v19, 4, v{l}")
        for j in range(3):
            A(f"  v_add_u32 v20, {8*j}, v16\n  v_mul_u32_u24 v20, 0xAAAB, v20\n  v_lshrrev_b32 v20, 17, v20\n  v_and_b32 v20, 6, v20")
            A(f"  v_xor_b32 v20, v20, v17\n  v_lshlrev_b32 v20, 4, v20\n  v_lshl_add_u32 v{vDV+j}, v16, 7, v20")
        A(f"  v_lshlrev_b32 v{vLIN}, 4, v{l}")
        A(f"  s_lshl_b32 s3, s{sI}, 7\n  s_lshl_b32 s4, s{sWAVE}, 5\n  s_add_u32 s{sROWA}, s3, s4\n  s_sub_u32 s7, 1920, s3\n  s_add_u32 s{sROWB}, s7, s4")
        A(f"  s_mul_i32 s{sROWA}, s{sROWA}, 384\n  s_mul_i32 s{sROWB}, s{sROWB}, 384")
        A(f"  s_mul_i32 s65, s{sWAVE}, 24576\n  s_add_u32 s65, s65, {QAREA}")
        for slot, b in enumerate([2, 3, 0, 1]):
            base = sROWB if b >= 2 else sROWA
            for half in range(2):
                A(f"  s_add_u32 m0, s65, {slot*6144 + half*3072}\n  s_add_u32 s3, s{base}, {(b&1)*6144 + half*3072}")
                for j in range(3):
                    A(f"  buffer_load_dwordx4 v{vDV+j}, s[{sQ}:{sQ+3}], s3 offen offset:{1024*j} lds")
        A(f"  s_mul_i32 s4, s{sWAVE}, 3072\n  s_add_u32 s{sKM0}, s4, {KRING}\n  s_add_u32 s{sVM0}, s4, {VRING}")
        for (srdn, m0r, tile, slot) in [(sK, sKM0, 0, 0), (sK, sKM0, 1, 1), (sV, sVM0, 0, 0), (sK, sKM0, 2, 2)]:
            A(f"  s_add_u32 m0, s{m0r}, {slot*TILE}\n  s_add_u32 s3, s4, {tile*TILE}")
            for j in range(3):
                A(f"  buffer_load_dwordx4 v{vDV+j}, s[{srdn}:{srdn+3}], s3 offen offset:{1024*j} lds")
        A(f"  s_add_u32 s{sKOFF}, s4, {3*TILE}\n  s_add_u32 s{sVOFF}, s4, {TILE}")
        A(f"  v_and_b32 v20, 6, v18\n  v_xor_b32 v20, v20, v19\n  v_lshlrev_b32 v20, 4, v20\n  v_mul_u32_u24 v{vKA}, 384, v18\n  v_add_u32 v{vKA}, v{vKA}, v20\n  v_xor_b32 v{vKA+1}, 64, v{vKA}")
        A(f"  v_bfe_u32 v20, v{l}, 2, 2\n  v_lshl_add_u32 v20, v19, 2, v20      ; key0 = 4G+r")
        A(f"  v_mul_u32_u24 v{vVA}, 384, v20\n  v_and_b32 v20, 6, v20\n  v_bfe_u32 v21, v{l}, 1, 1\n  v_xor_b32 v20, v20, v21\n  v_lshl_add_u32 v{vVA}, v20, 4, v{vVA}")
        A(f"  v_and_b32 v20, 1, v{l}\n  v_lshl_add_u32 v{vVA}, v20, 3, v{vVA}\n  v_add_u32 v{vVA}, {VRING}, v{vVA}")
        for x in range(1, 4): A(f"  v_xor_b32 v{vVA+x}, {32*x}, v{vVA}")
        A(f"  v_lshlrev_b32 v20, 2, v19\n  v_sub_u32 v{vX}, v18, v20\n  v_mov_b32 v{vNINF}, 0xff800000")
        A(f"  s_mov_b32 s{sC}, {hex(f2u(CSCALE))}\n  s_mov_b32 s{sHI}, 0xffff0000\n  s_mov_b32 s{sTHR}, 0x49800000     ; 2^20")
        A(f"  s_mul_i32 s{sWB}, s{sWAVE}, 16384\n  s_add_u32 s{sWB}, s{sWB}, {STAGE}")
        for r in range(4): A(f"  v_mov_b32 v{ONES+r}, 0x3f803f80")
        for r in range(16): A(f"  v_mov_b32 v{L0+r}, 0\n  v_mov_b32 v{NEGM+r}, 0")
        for r in range(4): A(f"  v_mov_b32 v{MNEG+r}, 0")
        for r in range(192): A(f"  v_accvgpr_write_b32 a{r}, 0")
        A("  s_waitcnt lgkmcnt(0)")
        A(f"  s_and_b32 s3, s3, 0\n  s_lshl_b32 s3, s{sH}, 1\n  s_and_b32 s3, s3, 2\n  s_lshl_b32 s3, s3, 3\n  s_lshr_b32 s6, s6, s3\n  s_lshl_b32 s6, s6, 16")
        A(f"  v_mov_b32 v20, s6\n  v_mul_f32 v20, {hex(f2u(LOG2E))}, v20\n  v_exp_f32 v20, v20\n  s_nop 0\n  v_add_f32 v20, 1.0, v20\n  v_rcp_f32 v20, v20\n  s_nop 0\n  v_readfirstlane_b32 s{sG1}, v20")
        A(f"  v_add_u32 v22, s65, v{vKA}\n  v_xor_b32 v23, 64, v22")
        for slot, b in enumerate([2, 3, 0, 1]):
            A(f"  s_waitcnt vmcnt({(3-slot)*6 + 12})")
            for s in range(6):
                A(f"  ds_read_b128 {vq(POOL+4*s)}, v{22+(s&1)} offset:{slot*6144 + (s>>1)*128}")
            for s in range(6):
                A(f"  s_waitcnt lgkmcnt({5-s})")
                op = Qop(b, s)
                for r in range(4):
                    src = POOL + 4*s + r
                    A(f"  v_lshlrev_b32 v24, 16, v{src}\n  v_and_b32 v25, s{sHI}, v{src}\n  v_mul_f32 v24, s{sC}, v24\n  v_mul_f32 v25, s{sC}, v25")
                    base = int(op[2:op.index(':')])
                    if op[0] == 'v':
                        A(f"  v_cvt_pk_bf16_f32 v{base+r}, v24, v25")
                    else:
                        A(f"  v_cvt_pk_bf16_f32 v26, v24, v25\n  s_nop 0\n  v_accvgpr_write_b32 a{base+r}, v26")

    def step0(self):
        A = self.A
        A(f"  s_mov_b32 s{sT}, 0\n  s_mov_b32 s{sKS}, 0")
        A("  s_waitcnt vmcnt(9)\n  s_barrier")
        A(f"  s_cmp_ge_u32 s{sT}, s{sDA}\n  s_cbranch_scc1 S0_MK0\nS0_MK0B:")
        self.mask_block("S0_MK0", "S0_MK0B", 0, [0, 1], sDA)
        self.mask_block("S0_MK1", "S0_MK1B", 1, [0, 1], sDA)
        for k in range(2):
            if k == 1:
                A(f"  s_nop 3\n  s_cmp_ge_u32 s{sT}, s{sDA}\n  s_cbranch_scc1 S0_MK1\nS0_MK1B:")
            for s in range(6):
                A(f"  ds_read_b128 {vq(POOL+4*s)}, v{vKA+(s&1)} offset:{k*6144 + (s>>1)*128}")
            for s in range(6):
                A(f"  s_waitcnt lgkmcnt({5-s})")
                for b in range(4):
                    c = vq(NEGM+4*b) if s == 0 else vq(Sreg(k, b))
                    A(f"  v_mfma_f32_16x16x32_bf16 {vq(Sreg(k,b))}, {vq(POOL+4*s)}, {Qop(b,s)}, {c}")
        A("  s_waitcnt vmcnt(3)\n  s_barrier")
        A(f"  s_add_u32 m0, s{sKM0}, 0\n  s_nop 0")
        for j in range(3): A(f"  buffer_load_dwordx4 v{vDV+j}, s[{sK}:{sK+3}], s{sKOFF} offen offset:{1024*j} lds")
        A(f"  s_add_u32 m0, s{sVM0}, {TILE}\n  s_nop 0")
        for j in range(3): A(f"  buffer_load_dwordx4 v{vDV+j}, s[{sV}:{sV+3}], s{sVOFF} offen offset:{1024*j} lds")
        A(f"  s_add_u32 s{sKOFF}, s{sKOFF}, {TILE}\n  s_add_u32 s{sVOFF}, s{sVOFF}, {TILE}")
        for x in range(2): A(f"  v_add_u32 v{vKA+x}, {TILE}, v{vKA+x}")
        A("  s_nop 7")
        L = []
        for b in range(4):
            self.rowmax(L, b, TMP+2)
            for k in range(2):
                for r in range(4):
                    L.append(f"  v_sub_f32 v{Sreg(k,b)+r}, v{Sreg(k,b)+r}, v{TMP+2}")
            L.append(f"  v_sub_f32 v{MNEG+b}, 0, v{TMP+2}")
            for r in range(4): L.append(f"  v_sub_f32 v{NEGM+4*b+r}, 0, v{TMP+2}")
            self.expcvt(L, b, 0)
        for l in L: A(l)
        A("  s_nop 1")
        for b in range(4):
            A(f"  v_mfma_f32_16x16x32_bf16 {vq(L0+4*b)}, {vq(ONES)}, {vq(Preg(0,b))}, {vq(L0+4*b)}")
        for f in range(4):
            k, s = divmod(f, 6)
            A(f"  ds_read_b128 {vq(pool(f))}, v{vKA+(s&1)} offset:{(s>>1)*128}")
        A(f"  s_mov_b32 s{sKS}, {TILE}\n  s_mov_b32 s{sDK}, {TILE}\n  s_mov_b32 s{sDV2}, 0\n  s_mov_b32 s{sT}, 1")

    def drain(self):
        A = self.A
        A(f"  v_add_u32 v{vVA}, s{sDV2}, v{vVA}\n  v_add_u32 v{vVA+1}, s{sDV2}, v{vVA+1}\n  v_add_u32 v{vVA+2}, s{sDV2}, v{vVA+2}\n  v_add_u32 v{vVA+3}, s{sDV2}, v{vVA+3}")
        A("  s_waitcnt vmcnt(0) lgkmcnt(0)\n  s_barrier")
        seq = []
        for d in range(12):
            T, x = d >> 2, d & 3
            r = POOL + (d % 8)*4
            seq.append(("L", f"ds_read_b64_tr_b16 v[{r}:{r+1}], v{vVA+x} offset:{T*128}"))
            seq.append(("L", f"ds_read_b64_tr_b16 v[{r+2}:{r+3}], v{vVA+x} offset:{6144 + T*128}"))
            if d >= 4:
                dd = d - 4
                for b in (2, 3):
                    seq.append(("M", f"v_mfma_f32_16x16x32_bf16 {aq(Oreg(b,dd))}, {vq(POOL+(dd%8)*4)}, {vq(Preg(1,b))}, {aq(Oreg(b,dd))}"))
        for dd in range(8, 12):
            for b in (2, 3):
                seq.append(("M", f"v_mfma_f32_16x16x32_bf16 {aq(Oreg(b,dd))}, {vq(POOL+(dd%8)*4)}, {vq(Preg(1,b))}, {aq(Oreg(b,dd))}"))
        lines, _ = insert_lgkm_waits(seq)
        for l in lines: A(l)

    def epilogue(self, betas, rowreg, tag):
        A = self.A
        E = EPI
        l = vLANE
        A(f"  v_and_b32 v{E+4}, 15, v{l}\n  v_lshrrev_b32 v{E+5}, 4, v{l}      ; n, G")
        A(f"  v_lshrrev_b32 v{E+6}, 1, v{E+5}\n  v_and_b32 v{E+7}, 7, v{E+4}\n  v_xor_b32 v{E+6}, v{E+6}, v{E+7}\n  v_lshlrev_b32 v{E+6}, 4, v{E+6}")
        A(f"  v_mul_u32_u24 v{E}, 384, v{E+4}\n  v_add_u32 v{E}, v{E}, v{E+6}\n  v_and_b32 v{E+6}, 1, v{E+5}\n  v_lshl_add_u32 v{E}, v{E+6}, 3, v{E}\n  v_add_u32 v{E}, s{sWB}, v{E}")
        WA = [E+8, E+9, E+10, E+11]
        A(f"  v_mov_b32 v{WA[0]}, v{E}")
        for x in range(1, 4): A(f"  v_xor_b32 v{WA[x]}, {32*x}, v{E}")
        A(f"  v_lshrrev_b32 v{E+4}, 3, v{l}\n  v_and_b32 v{E+5}, 7, v{l}")
        for j in range(3):
            A(f"  v_add_u32 v{E+6}, {8*j}, v{E+4}\n  v_mul_u32_u24 v{E+7}, 0xAAAB, v{E+6}\n  v_lshrrev_b32 v{E+7}, 17, v{E+7}\n  v_and_b32 v{E+7}, 7, v{E+7}")
            A(f"  v_xor_b32 v{E+7}, v{E+7}, v{E+5}\n  v_lshlrev_b32 v{E+7}, 4, v{E+7}\n  v_lshl_add_u32 v{E+1+j}, v{E+6}, 7, v{E+7}\n  v_add_u32 v{E+1+j}, s{sWB}, v{E+1+j}")
        OM = E + 12
        X = E + 36
        for bi, b in enumerate(betas):
            A(f"  s_add_u32 s3, s{rowreg}, {bi*6144}")
            for qd in range(6):
                if qd == 4: A(f"  s_add_u32 s4, s3, 4096")
                sreg, off = ("s3", qd*1024) if qd < 4 else ("s4", (qd-4)*1024)
                A(f"  buffer_load_dwordx4 {vq(OM+4*qd)}, v{vLIN}, s[{sW}:{sW+3}], {sreg} offen offset:{off}")
            A(f"  v_rcp_f32 v{X}, v{L0+4*b}\n  s_nop 0\n  v_mul_f32 v{X}, s{sG1}, v{X}       ; f")
            for d in range(12):
                A(f"  s_waitcnt vmcnt({5 - (d>>1)})") if d % 2 == 0 else None
                for h in range(2):
                    om = OM + 2*d + h
                    a = Oreg(b, d) + 2*h
                    A(f"  v_accvgpr_read_b32 v{X+1}, a{a}\n  v_accvgpr_read_b32 v{X+2}, a{a+1}\n  v_lshlrev_b32 v{X+3}, 16, v{om}\n  v_and_b32 v{X+4}, s{sHI}, v{om}")
                    A(f"  v_fma_f32 v{X+1}, v{X+1}, v{X}, v{X+3}\n  v_fma_f32 v{X+2}, v{X+2}, v{X}, v{X+4}")
                    A(f"  v_cvt_pk_bf16_f32 v{X+6+h}, v{X+1}, v{X+2}")
                A(f"  ds_write_b64 v{WA[d&3]}, v[{X+6}:{X+7}] offset:{(d>>2)*128}")
            A("  s_waitcnt lgkmcnt(0)")
            for nn in range(6):
                A(f"  ds_read_b128 {vq(OM+4*nn)}, v{E+1+(nn%3)} offset:{(nn//3)*3072}")
            A(f"  s_add_u32 s3, s{rowreg}, {bi*6144}\n  s_add_u32 s4, s3, 4096")
            for nn in range(6):
                sreg, off = ("s3", nn*1024) if nn < 4 else ("s4", (nn-4)*1024)
                A(f"  s_waitcnt lgkmcnt({5-nn})")
                A(f"  buffer_store_dwordx4 {vq(OM+4*nn)}, v{vLIN}, s[{sO}:{sO+3}], {sreg} offen offset:{off}")
            if bi == 0:
                A("  s_waitcnt vmcnt(0)")

    def build(self):
        A = self.A
        self.prologue()
        self.stamp(1)
        self.step0()
        self.stamp(2)
        A("  s_branch P1_LOOP\n.p2align 6\nP1_LOOP:")
        for l in self.step("p1", 1, "P1O"): A(l)
        A(f"  s_cmp_gt_u32 s{sT}, s{sP1LAST}\n  s_cbranch_scc1 P1_DONE")
        for l in self.step("p1", 0, "P1E"): A(l)
        A("  s_branch P1_LOOP")
        A("P1_DONE:")
        self.stamp(3)
        for l in self.step("tr", 0, "TR"): A(l)
        A("  s_waitcnt lgkmcnt(0)\n  s_nop 7")
        self.stamp(4)
        self.epilogue([0, 1], sROWA, "A")
        A("  s_waitcnt vmcnt(0)")
        self.stamp(5)
        A("  s_branch P2_LOOP\n.p2align 6\nP2_LOOP:")
        for l in self.step("p2", 1, "P2O"): A(l)
        A(f"  s_cmp_ge_u32 s{sT}, s{sN}\n  s_cbranch_scc1 P2_DONE")
        for l in self.step("p2", 0, "P2E"): A(l)
        A("  s_branch P2_LOOP")
        A("P2_DONE:")
        self.stamp(6)
        self.drain()
        A("  s_nop 7")
        self.stamp(7)
        self.epilogue([2, 3], sROWB, "B")
        if self.instr: A("  s_waitcnt vmcnt(0)")
        self.stamp(8)
        self.stamp_end()
        A("AT_END:\n  s_endpgm")
        for blk in self.out_of_line:
            for l in blk: A(l)
        return A

if __name__ == "__main__":
    instr = "instr" in sys.argv
    g = Gen(instr)
    g.ablate = " ".join(a for a in sys.argv if a.startswith("no"))
    A = g.build()
    body = A.text()
    hdr = """; Memory-augmented causal attention (memorizing transformer), gfx950.
; @launch kernel=memattn_kernel grid=(512,1,1) block=(256,1,1) lds=81920
; @launch kernel=standalone__memory_aug_memorizing_tr__prompt_kernel grid=(256,1,1) block=(256,1,1) lds=163840
.amdgcn_target "amdgcn-amd-amdhsa--gfx950"
.text
"""
    G = Asm()
    gen_gather_kernel(G)
    full = hdr + body + desc("standalone__memory_aug_memorizing_tr__prompt_kernel", 512, 256) + G.text() + desc("memattn_kernel", 136, 136)
    open(("attn_i%s.s" % g.ablate.replace(" ","_")) if instr else "attn.s", "w").write(full)
    print("bytes", len(full))
```

```python
import re

class Asm:
    def __init__(self):
        self.lines = []
    def __call__(self, s=""):
        for l in s.split("\n"):
            self.lines.append(l)
    def label(self, name):
        self.lines.append(name + ":")
    def text(self):
        return "\n".join(self.lines) + "\n"

_reg_re = re.compile(r"^(-|abs\()?\(?([vas])(\d+)\)?$")
_rng_re = re.compile(r"^([vas])\[(\d+):(\d+)\]$")

def regs_of(tok):
    tok = tok.strip()
    if tok.startswith("-"): tok = tok[1:]
    if tok.startswith("abs(") and tok.endswith(")"): tok = tok[4:-1]
    if tok.startswith("|") and tok.endswith("|"): tok = tok[1:-1]
    m = _rng_re.match(tok)
    if m:
        return [m.group(1) + str(i) for i in range(int(m.group(2)), int(m.group(3)) + 1)]
    m = re.match(r"^([vas])(\d+)$", tok)
    if m: return [tok]
    if tok == "vcc": return ["vcc"]
    if tok == "exec": return ["exec"]
    if tok == "m0": return ["m0"]
    return []

class Inst:
    __slots__ = ("op", "ops", "defs", "uses", "cls", "text", "line")
    def __repr__(self): return self.text

TRANS = ("v_exp_f32", "v_log_f32", "v_rcp_f32", "v_rsq_f32", "v_sqrt_f32", "v_sin_f32", "v_cos_f32")

def split_ops(s):
    out = []; depth = 0; cur = ""
    for ch in s:
        if ch in "[(": depth += 1
        if ch in "])": depth -= 1
        if ch == "," and depth == 0:
            out.append(cur.strip()); cur = ""
        else: cur += ch
    if cur.strip(): out.append(cur.strip())
    return out

def parse(line, lineno=0):
    s = line.split(";")[0].split("//")[0].strip()
    if not s or s.endswith(":") or s.startswith("."): return None
    parts = s.split(None, 1)
    op = parts[0]
    rest = parts[1] if len(parts) > 1 else ""
    ops = split_ops(rest)
    mods = ""
    if ops:
        last = ops[-1].split()
        ops[-1] = last[0]; mods = " ".join(last[1:])
    I = Inst(); I.op = op; I.ops = ops; I.text = s; I.line = lineno
    base = op.replace("_e32", "").replace("_e64", "").replace("_dpp", "")
    defs = []; uses = []
    R = [regs_of(o) for o in ops]
    if op.startswith("v_mfma"):
        I.cls = "mfma"; defs = R[0]; uses = R[1] + R[2] + R[3]
    elif op.startswith("ds_read") or op.startswith("ds_bpermute") or op.startswith("ds_swizzle"):
        I.cls = "ds"; defs = R[0]; uses = sum(R[1:], [])
    elif op.startswith("ds_write"):
        I.cls = "ds"; uses = sum(R, [])
    elif op.startswith("buffer_load") or op.startswith("global_load"):
        I.cls = "vmem"
        if " lds" in (" " + mods + " "):
            uses = sum(R, []) + ["m0"]
        else:
            defs = R[0]; uses = sum(R[1:], [])
    elif op.startswith("buffer_store") or op.startswith("global_store") or op.startswith("buffer_atomic") or op.startswith("global_atomic"):
        I.cls = "vmem"; uses = sum(R, [])
    elif op.startswith("buffer_"):
        I.cls = "vmem"
    elif op.startswith("v_cmp"):
        I.cls = "valu"; defs = R[0]; uses = sum(R[1:], [])
    elif op.startswith("v_permlane") and "swap" in op:
        I.cls = "valu"; defs = R[0] + R[1]; uses = R[0] + R[1]
    elif op.startswith("v_readfirstlane") or op.startswith("v_readlane"):
        I.cls = "valu"; defs = R[0]; uses = sum(R[1:], [])
    elif op.startswith("v_"):
        I.cls = "valu"; defs = R[0]; uses = sum(R[1:], [])
        if base in ("v_fmac_f32", "v_dot2c_f32_bf16"): uses += R[0]
        if base in ("v_cndmask_b32",) and len(ops) == 3: uses += ["vcc"]
        if base in ("v_add_co_u32", "v_sub_co_u32", "v_addc_co_u32"): defs = R[0] + R[1]; uses = sum(R[2:], [])
        if "_dpp" in op or "quad_perm" in mods or "row_" in mods:
            I.cls = "valu"; uses += R[0] if False else []
    elif op.startswith("s_waitcnt") or op in ("s_nop", "s_barrier", "s_setprio", "s_sleep", "s_endpgm"):
        I.cls = "sctl"
    elif op.startswith("s_cbranch") or op == "s_branch":
        I.cls = "branch"
        if "vcc" in op: uses = ["vcc"]
    elif op.startswith("s_load") or op.startswith("s_memtime") or op.startswith("s_memrealtime") or op.startswith("s_buffer_load"):
        I.cls = "smem"; defs = R[0]; uses = sum(R[1:], [])
    elif op.startswith("s_cmp"):
        I.cls = "salu"; uses = sum(R, [])
    elif op.startswith("s_"):
        I.cls = "salu"; defs = R[0] if R else []; uses = sum(R[1:], [])
        if "saveexec" in op: defs = defs + ["exec"]; uses += ["exec"]
    else:
        raise ValueError("cannot parse: " + line)
    I.defs = defs; I.uses = uses
    return I

def is_dpp(I):
    return "_dpp" in I.op or "quad_perm" in I.text or "row_" in I.text

def mfma_passes(I):
    if "32x32x16" in I.op: return 8
    if "16x16x32" in I.op: return 4
    return 8

def nstates(I):
    if I.op == "s_nop": return int(I.ops[0], 0) + 1
    return 1

def check_hazards(lines, verbose=True):
    insts = []
    for n, l in enumerate(lines):
        I = parse(l, n)
        if I is not None: insts.append(I)
    probs = []
    pos = 0
    lastw = {}
    lastC = {}
    lds_out = []
    vm_out = []
    store_data = {}
    for I in insts:
        def need(reg, n, why):
            w = lastw.get(reg)
            if w is None: return
            d = pos - w[0] - 1 + 0
            if d < n:
                probs.append(f"line {I.line}: {I.text}  <- {why} on {reg} needs {n} has {d} (prod: {w[2].text})")
        if I.op == "s_waitcnt":
            m = re.search(r"lgkmcnt\((\d+)\)", I.text)
            if m:
                k = int(m.group(1))
                while len(lds_out) > k: lds_out.pop(0)
            m = re.search(r"vmcnt\((\d+)\)", I.text)
            if m:
                k = int(m.group(1))
                while len(vm_out) > k: vm_out.pop(0)
        touched = set(I.uses) | set(I.defs)
        for q, nm in ((lds_out, "lds"), (vm_out, "vmem")):
            for d in q:
                inter = touched & set(d[0])
                if inter:
                    probs.append(f"line {I.line}: {I.text} touches {sorted(inter)[:4]} of outstanding {nm} load: {d[1].text}")
        if I.cls == "mfma":
            A = regs_of(I.ops[1]); B = regs_of(I.ops[2]); C = regs_of(I.ops[3]); D = I.defs
            for r in A + B + C:
                w = lastw.get(r)
                if w and w[1] == "valu": need(r, 2, "valu->mfma")
            for r in A + B:
                w = lastw.get(r)
                if w and w[1] == "mfma": need(r, {4: 8, 8: 12}[mfma_passes(w[2])], "mfma D->AB")
            for r in C:
                w = lastw.get(r)
                if w and w[1] == "mfma":
                    same = (w[2].defs == C) and mfma_passes(w[2]) == mfma_passes(I)
                    if not same: need(r, {4: 6, 8: 10}[mfma_passes(w[2])], "mfma D->C overlap")
            for r in D:
                w = lastw.get(r)
                if w and w[1] == "mfma" and r not in C:
                    need(r, {4: 6, 8: 10}[mfma_passes(w[2])], "mfma D->D waw")
        else:
            for r in set(I.uses) | set(I.defs):
                w = lastw.get(r)
                if w and w[1] == "mfma" and I.cls in ("valu", "ds", "vmem"):
                    need(r, {4: 8, 8: 12}[mfma_passes(w[2])], "mfma D->valu/mem")
            if I.cls == "valu":
                for r in I.defs:
                    c = lastC.get(r)
                    if c and pos - c[0] - 1 < {4: 3, 8: 7}[c[1]]:
                        probs.append(f"line {I.line}: {I.text} <- WAR on mfma srcC {r}")
                for r in I.uses:
                    w = lastw.get(r)
                    if w and w[1] == "valu":
                        if w[2].op.replace("_e32","") in TRANS and I.op.replace("_e32","") not in TRANS: need(r, 1, "trans->valu")
                        if is_dpp(I) and r in regs_of(I.ops[1]): need(r, 2, "valu->dpp")
                        if I.op.startswith("v_permlane"): need(r, 2, "valu->permlane")
                        if I.op.startswith("v_readfirstlane") or I.op.startswith("v_readlane"): need(r, 1, "valu->readlane")
                        if r[0] == "s" or r == "vcc": need(r, 2, "valu sgpr->valu const")
                for r in I.defs:
                    sd = store_data.get(r)
                    if sd is not None and pos - sd - 1 < 2:
                        probs.append(f"line {I.line}: {I.text} <- WAR on wide store data {r}")
            if I.cls == "vmem":
                for r in I.uses:
                    w = lastw.get(r)
                    if w and w[1] == "valu" and r[0] == "s": need(r, 5, "valu sgpr->vmem")
                    if r == "m0" and w and w[1] == "salu": need(r, 1, "salu m0->lds dma")
                    if w and w[1] == "valu" and w[2].op.replace("_e32","") in TRANS: need(r, 1, "trans->vmem")
            if I.cls == "ds":
                for r in I.uses:
                    w = lastw.get(r)
                    if w and w[1] == "valu" and w[2].op.replace("_e32","") in TRANS: need(r, 1, "trans->ds")
        if I.cls == "mfma":
            for r in regs_of(I.ops[3]): lastC[r] = (pos, mfma_passes(I))
        if I.cls == "vmem" and ("store" in I.op) and ("x4" in I.op or "x3" in I.op):
            for r in regs_of(I.ops[0]): store_data[r] = pos
        if I.cls == "ds":
            lds_out.append((I.defs, I))
        elif I.cls == "smem":
            lds_out.append((I.defs, I))
        elif I.cls == "vmem":
            vm_out.append((I.defs, I))
        else:
            for r in I.defs: lastw[r] = (pos, I.cls, I)
        if I.cls in ("ds", "vmem", "smem"):
            for r in I.defs: lastw.pop(r, None)
        pos += nstates(I)
    return probs


def fix_hazards(lines):
    lines = list(lines)
    for _ in range(50):
        probs = [p for p in check_hazards(lines) if " needs " in p]
        if not probs: break
        m = re.match(r"line (\d+): .* needs (\d+) has (\d+)", probs[0])
        ln, need, has = int(m.group(1)), int(m.group(2)), int(m.group(3))
        lines.insert(ln, f"  s_nop {need - has - 1}")
    return lines
```

```python
import re, random, math, hashlib, json, os
from asmlib import parse

COST={"D":1,"T":1,"I":1,"W":3,"M":2,"G":5,"V":1,"E":2,"S":1}
LDS={"D":4,"T":2,"I":2,"W":4}
RANK={"S":0,"D":1,"T":1,"I":1,"W":1,"M":1,"G":1,"V":2,"E":2}

class Item:
    __slots__=("text","cost","cls","lo","hi","sep","gap","lds","stream","idx","tag","nS")
    def __init__(self, text, cls, lo=0, hi=10**9, sep=0, tag=None):
        self.text = text if isinstance(text, list) else [text]
        self.cls=cls; self.cost=COST[cls]; self.lds=LDS.get(cls,0)
        self.lo=lo; self.hi=hi; self.sep=sep; self.gap=None; self.tag=tag
        self.nS=len([x for x in self.text if not x.endswith(":")]) if cls=="S" else 0

def req(a,b): return b.sep if b.sep else (1 if RANK[b.cls]<RANK[a.cls] else 0)

def optimize(n, streams, busy1=None, seed=1, iters=200000, mspace=4, ldsw=1.0, name="", cache=True):
    busy1 = busy1 or [0]*n
    for si,st in enumerate(streams):
        for k,it in enumerate(st):
            it.stream=si; it.idx=k; it.hi=min(it.hi,n-1); it.lo=max(0,it.lo)
            assert it.lo<=it.hi,(name,"empty window",it.text,it.lo,it.hi)
    for st in streams:
        for k in range(1,len(st)): st[k].lo=max(st[k].lo, st[k-1].lo+req(st[k-1],st[k]))
        for k in range(len(st)-2,-1,-1): st[k].hi=min(st[k].hi, st[k+1].hi-req(st[k],st[k+1]))
        for it in st: assert it.lo<=it.hi,(name,"window empty after order",it.text,it.lo,it.hi)
    items=[it for st in streams for it in st]
    key=hashlib.md5(json.dumps([n,busy1,seed,iters,mspace,ldsw,[(it.cls,it.lo,it.hi,it.sep,it.stream,it.nS) for it in items]]).encode()).hexdigest()
    cf=f"schedcache/{key}.json"
    if cache and os.path.exists(cf):
        g=json.load(open(cf))
        for it,x in zip(items,g): it.gap=x
    else:
        rnd=random.Random(seed)
        for st in streams:
            prev=None
            for it in st:
                g=it.lo+(it.hi-it.lo)//2
                if prev is not None: g=max(g,prev.gap+req(prev,it))
                it.gap=min(g,it.hi); prev=it
            for k in range(len(st)-2,-1,-1):
                if st[k].gap>st[k+1].gap-req(st[k],st[k+1]): st[k].gap=st[k+1].gap-req(st[k],st[k+1])
            for it in st: assert it.lo<=it.gap<=it.hi,(name,it.text,it.lo,it.gap,it.hi)
        slots=[0]*n; sc=list(busy1); lds=[0]*(n+8); mem=[0]*(n+mspace+8)
        def add(it,g,s):
            if it.cls=="S": sc[g]+=s*it.nS
            else: slots[g]+=s*it.cost
            if it.lds: lds[g]+=s*it.lds
            if it.cls in ("M","G"): mem[g]+=s
        for it in items: add(it,it.gap,1)
        def gc(g):
            s=slots[g]+(sc[g]-1 if sc[g]>1 else 0)
            return 4.0*(s-2) if s>2 else 0.0
        def lc(g):
            c=0.0
            w=lds[g]+lds[g+1]
            if w>6: c+=ldsw*(w-6)
            w+=lds[g+2]+lds[g+3]
            if w>12: c+=ldsw*(w-12)
            if mem[g]:
                w=0
                for k in range(mspace): w+=mem[g+k]
                if w>1: c+=6.0*(w-1)
            return c
        R=max(3,mspace-1)
        def local(it,a,b):
            c=gc(a)+gc(b)
            if it.lds or it.cls in ("M","G"):
                s=set(range(max(0,a-R),a+1))|set(range(max(0,b-R),b+1))
                for g in s: c+=lc(g)
            return c
        total=sum(gc(g)+lc(g) for g in range(n)); best=total; bestg=[it.gap for it in items]
        movable=[it for it in items if it.lo<it.hi]
        for itn in range(iters):
            T=3.0*(1-itn/iters)**2+0.03
            it=movable[rnd.randrange(len(movable))]; st=streams[it.stream]
            lo,hi=it.lo,it.hi
            if it.idx>0:
                p=st[it.idx-1]; lo=max(lo,p.gap+req(p,it))
            if it.idx+1<len(st):
                q=st[it.idx+1]; hi=min(hi,q.gap-req(it,q))
            if lo>=hi: continue
            o=it.gap
            if rnd.random()<0.7:
                g=o+rnd.choice((-3,-2,-1,1,2,3))
                if g<lo or g>hi: continue
            else:
                g=rnd.randint(lo,hi)
                if g==o: continue
            c0=local(it,o,g); add(it,o,-1); add(it,g,1); c1=local(it,o,g); d=c1-c0
            if d<=0 or rnd.random()<math.exp(-d/T):
                it.gap=g; total+=d
                if total<best-1e-9: best=total; bestg=[x.gap for x in items]
            else:
                add(it,g,-1); add(it,o,1)
        for x,g in zip(items,bestg): x.gap=g
        if cache:
            os.makedirs("schedcache",exist_ok=True); json.dump(bestg,open(cf,"w"))
    slots=[0]*n; sc=list(busy1)
    for it in items:
        if it.cls=="S": sc[it.gap]+=it.nS
        else: slots[it.gap]+=it.cost
    over=sum(max(0,slots[g]+max(0,sc[g]-1)-2) for g in range(n))
    print(f"[opt {name}] n={n} items={len(items)} slots={sum(slots)} cap={2*n} overflow={over} est={n*16+over*4}")
    return items

def emit(mfmas, items, fixed=None):
    n=len(mfmas); fixed=fixed or {}
    by=[[] for _ in range(n)]
    for it in items: by[it.gap].append(it)
    out=[]
    for g in range(n):
        out.append(("M",mfmas[g],None))
        for l in fixed.get(g,[]): out.append(("F",l,None))
        for r in (0,1,2):
            grp=sorted([x for x in by[g] if RANK[x.cls]==r], key=lambda x:(x.stream,x.idx))
            for it in grp:
                for l in it.text: out.append((it.cls,l,it.tag))
    return out

def vm_trace(seq):
    tr=[]
    for cls,line,tag in seq:
        if line.startswith("NEEDV "): tr.append(("mark",line.split()[1]))
        elif line.startswith("buffer_") or line.startswith("global_"): tr.append(("op",tag))
    return tr

def finalize(seq, initial=None, extra=None, vmN=None):
    q=[list(x) for x in (initial or [])]
    out=[]; last_m=None; since=0; mi=-1; extra=extra or {}; vi=0
    for cls,line,tag in seq:
        if line.startswith("NEEDV "):
            out.append(f"  s_waitcnt vmcnt({vmN[vi]})"); vi+=1; continue
        if line.startswith("NEED "):
            regs=set(line.split()[1:]); need=-1
            for idx,d in enumerate(q):
                if regs & set(d): need=idx
            if need>=0:
                out.append(f"  s_waitcnt lgkmcnt({min(len(q)-1-need,15)})"); q=q[need+1:]
            continue
        I=parse(line)
        if I is None: out.append(line); continue
        if I.op=="s_waitcnt":
            m=re.search(r"lgkmcnt\((\d+)\)",line)
            if m:
                k=int(m.group(1))
                while len(q)>k: q.pop(0)
            out.append("  "+line.strip()); continue
        touched=set(I.uses)|set(I.defs)
        if I.cls=="mfma": mi+=1
        need=-1
        for idx,d in enumerate(q):
            if touched & set(d): need=idx
        if need>=0 and I.cls=="mfma" and mi in extra:
            ex=set(extra[mi])
            for idx,d in enumerate(q):
                if ex & set(d) and (len(q)-1-idx)>=since: need=max(need,idx)
        if need>=0:
            na=len(q)-1-need
            if I.cls=="mfma" and last_m is not None and na>=since:
                out.insert(last_m,f"  s_waitcnt lgkmcnt({min(na-since,15)})")
            else:
                out.append(f"  s_waitcnt lgkmcnt({min(na,15)})")
            q=q[need+1:]
        out.append("  "+line.strip())
        if I.cls=="ds": q.append(I.defs); since+=1
        if I.cls=="mfma": last_m=len(out); since=0
    return out,q
```

```python
def times(i):
    T = []; t = 0.0
    N = 64 - 4*i
    for s in range(N):
        T.append(t)
        p1 = s < 4*i + 4
        t += 2.0 if p1 else 1.0
        if s == 4*i + 3: t += 0.8
        if s >= 1:
            if p1: b = (s - 2)//2 if (s - 2) % 2 == 1 else None
            else:
                u = s - (4*i + 4); b = 2*i + 1 + u//4 if u % 4 == 3 else None
            if b is not None:
                if b < 8 and b % 2 == 1: t += 0.5
                if b == 7: t += 2.0
                if b == max(2*i, 11): t += 3.5
    return T
def solve(margin=2.0, buf=4, verbose=False):
    TT = [times(i) for i in range(8)]
    INF = 1e9
    touch = {x: INF for x in range(64)}
    for i in range(8):
        for s in range(4*i + 4):
            ti = TT[i][max(s - 4, 0)]
            touch[s] = min(touch[s], ti)
    order = {i: list(range(4*i + 4)) for i in range(8)}
    remain = {i: set(range(4*i + 4, 64 - 4*i)) for i in range(8)}
    leads = {i: 0 for i in range(8)}; stalls = {i: 0 for i in range(8)}
    ev = sorted((TT[i][max(s - 4, 0)], i, s) for i in range(8) for s in range(4*i + 4, 64 - 4*i))
    started = lambda j, ti: TT[j][max(4*j + 4 - 4, 0)] <= ti
    BUF = buf
    for (ti, i, s) in ev:
        free = [x for x in remain[i] if touch[x] + margin <= ti]
        cand = [x for x in remain[i] if touch[x] == INF]
        act = [j for j in range(8) if remain[j] and started(j, ti)]
        bufmin = min(len([x for x in remain[j] if touch[x] <= ti])
                     if [x for x in remain[j] if touch[x] == INF] else 99 for j in act)
        able = [j for j in act if [x for x in remain[j] if touch[x] == INF]]
        turn = min(able, key=lambda j: (leads[j], -j)) if able else None
        lead = cand and (not free or (bufmin <= BUF and turn == i))
        if lead:
            def score(x): return sum(1 for j in range(8) if j != i and x in remain[j])
            x = max(cand, key=lambda x: (score(x), -x))
            leads[i] += 1
        elif free:
            x = min(free, key=lambda x: touch[x])
        else:
            x = min(remain[i], key=lambda x: touch[x]); stalls[i] += 1
        touch[x] = min(touch[x], ti)
        remain[i].discard(x); order[i].append(x)
    if verbose:
        for i in range(8): print(i, "leads", leads[i], "stalls", stalls[i], order[i][4*i+4:])
    return order, leads
if __name__ == "__main__":
    for buf in (2,3,4):
        print("buf",buf); solve(buf=buf, verbose=True)


def solve2(margin=2.0, quota=(12, 10, 6, 4), pick="old", verbose=False):
    TT = [times(i) for i in range(8)]
    INF = 1e9
    touch = {x: INF for x in range(64)}
    for i in range(8):
        for s in range(4*i + 4):
            touch[s] = min(touch[s], TT[i][max(s - 4, 0)])
    lead = {}; hi = 63
    for i, q in enumerate(quota):
        lead[i] = list(range(hi, hi - q, -1)); hi -= q
    order = {i: list(range(4*i + 4)) for i in range(8)}
    remain = {i: set(range(4*i + 4, 64 - 4*i)) for i in range(8)}
    leads = {i: 0 for i in range(8)}
    ev = sorted((TT[i][max(s - 4, 0)], i, s) for i in range(8) for s in range(4*i + 4, 64 - 4*i))
    for (ti, i, s) in ev:
        mine = [x for x in lead.get(i, []) if x in remain[i] and touch[x] == INF]
        free = [x for x in remain[i] if touch[x] + margin <= ti]
        if mine:
            x = mine[0]; leads[i] += 1
        elif free:
            x = min(free, key=lambda x: touch[x]) if pick == "old" else max(free, key=lambda x: touch[x])
        else:
            x = min(remain[i], key=lambda x: (touch[x], x))
            if touch[x] > ti: leads[i] += 1
        touch[x] = min(touch[x], ti)
        remain[i].discard(x); order[i].append(x)
    if verbose:
        for i in range(8): print(i, "leads", leads[i], order[i][4*i+4:])
    return order, leads
if __name__ == "__main__":
    print("solve2"); solve2(verbose=True); print(); solve2(quota=(12,10,6,4), pick="new", verbose=True)


def times3(i):
    T = []; t = 0.0; N = 64 - 4*i
    for s in range(N):
        T.append(t)
        p1 = 4 <= s < 4*i + 8
        t += 2.0 if p1 else 1.0
        if s == 2: t += 1.2
        if s == 4*i + 7: t += 0.8
        b = None
        if p1 and (s - 4) % 2 == 1: b = (s - 4)//2
        if s >= 4*i + 8 and (s - 4*i - 8) % 4 == 3: b = 2*i + 2 + (s - 4*i - 8)//4
        if b is not None:
            if b < 8 and b % 2 == 1: t += 0.5
            if b == 7: t += 2.0
            if b == max(2*i + 1, 11): t += 3.5
    return T
def solve3(margin=2.0, quota=(12, 10, 6), pick="new", verbose=False):
    TT = [times3(i) for i in range(8)]
    INF = 1e9
    touch = {x: INF for x in range(64)}
    for x in range(32, 36): touch[x] = 0
    for i in range(8):
        for x in range(4*i + 4): touch[x] = min(touch[x], TT[i][x])
    lead = {}; hi = 63
    for i, q in enumerate(quota):
        lead[i] = [x for x in range(hi, hi - q, -1) if x >= 36]; hi -= q
    order = {i: [32, 33, 34, 35] + list(range(4*i + 4)) for i in range(8)}
    remain = {i: set(x for x in range(4*i + 4, 64 - 4*i) if not 32 <= x < 36) for i in range(8)}
    leads = {i: 0 for i in range(8)}
    ev = sorted((TT[i][s - 4], i, s) for i in range(8) for s in range(4*i + 8, 64 - 4*i))
    for (ti, i, s) in ev:
        mine = [x for x in lead.get(i, []) if x in remain[i] and touch[x] == INF]
        free = [x for x in remain[i] if touch[x] + margin <= ti]
        if mine: x = mine[0]; leads[i] += 1
        elif free: x = min(free, key=lambda x: touch[x]) if pick == "old" else max(free, key=lambda x: touch[x])
        else:
            x = min(remain[i], key=lambda x: (touch[x], x))
            if touch[x] > ti: leads[i] += 1
        touch[x] = min(touch[x], ti)
        remain[i].discard(x); order[i].append(x)
    if verbose:
        for i in range(8): print(i, "leads", leads[i], order[i][4*i+8:])
    for i in range(8): assert sorted(order[i]) == list(range(64 - 4*i)), i
    return order, leads
if __name__ == "__main__":
    print("solve3"); solve3(verbose=True)
```

```python
import sys, json
from asmlib import Asm, fix_hazards
from sched3 import Item, optimize, emit, vm_trace, finalize

HEAD = 786432
LOG2E = 1.4426950408889634
CSCALE = (192 ** -0.5) * LOG2E
def f2u(x):
    import struct
    return struct.unpack("<I", struct.pack("<f", x))[0]
KNAME = "standalone__memory_aug_memorizing_tr__prompt_kernel"

TILE = 12288
KR = 0
VR = 49152
GR = 98304
IDX = 147456
PA = 155648
ZA = 159744
LDS_BYTES = 163840
STAMPA = 161024
DUMMY = 160768
QAREA = [73728, 86016, 24576, 36864]

vDUM = 0; vIA = 1; vKA = 2; vVA = 4; vDV = 8; vX = 11; vNINF = 12; vLIN = 13; vT0 = 14; vTCH = 15
S0 = 16; P0 = 48; NEGM = 80; L0 = 96; ONES = 112; MNEG = 116; QV = 120; POOL = 152; TMP = 184; NEGM1 = 192
PAIR = 200
GF = 208
GQ = 216
GD = 240
GX = 248
vKG = 250
vPW = 252
ACC = 216
GB = 232
vVG = 240
vPB = 244
OUTT = 248
vSTAMP = 0

def vq(r): return f"v[{r}:{r+3}]"
def aq(r): return f"a[{r}:{r+3}]"
def Sreg(k, b): return S0 + k*16 + b*4
def Preg(par, b): return P0 + par*16 + b*4
def Oreg(b, d): return (b*12 + d)*4
def Qop(b, s):
    if b >= 2: return aq(192 + ((b-2)*6 + s)*4)
    if b == 0 and s < 4: return aq(240 + s*4)
    k = (s - 4) if b == 0 else (2 + s)
    return vq(QV + k*4)
def pool(z): return POOL + (z % 8)*4

sK, sV, sG, sO, sW = 8, 12, 16, 20, 24
sWAVE, sI, sH, sN = 28, 29, 30, 31
sT, sB, sKOFF, sSPEC = 32, 33, 34, 35
sDA, sDB, sB1LAST, sEPA = 36, 37, 38, 39
sD, sTMP = 40, 41
sMASK = 42
sTHR = 50; sKM0 = 51; sVM0 = 52; sGM0 = 53; sC = 54; sHI = 55; sG1 = 56; sGG = 57
sROWA, sROWB = 58, 59
sT1, sT2 = 60, 61
sOM0, sOM1 = 62, 63
sCMP = 64
sFLAG = 66
sMK = 68
sMV = 70
sRET = 72
sRET2 = 4
sTS = 76
sSEL = 80
sVT = 80; sVI = 83; sVP = 86; sVO = 90
sTOFF = 96
sTOF2 = 97
sMVS = 68
sST = 98
sR0, sR1, sR2, sR3, sR4 = 76, 77, 78, 79, 74
sKO, sVO_, sWP = 62, 63, 75
sQO = 35
sPH = 34
vSEQ = 0

class Gen:
    def __init__(self, instr=False, params=None, ablate=""):
        self.A = Asm(); self.ool = []; self.instr = instr; self.P = params or {}; self.ab = ablate
        self.bodies = {}
    def stamp(self, k):
        if not self.instr: return
        self.A(f"  s_memtime s[{sST}:{sST+1}]\n  s_lshl_b32 s100, s{sWAVE}, 8\n  s_add_u32 s100, s100, {STAMPA + 4*k}\n  s_waitcnt lgkmcnt(0)\n  v_mov_b32 v{TMP+6}, s{sST}\n  v_mov_b32 v{TMP+7}, s100\n  ds_write_b32 v{TMP+7}, v{TMP+6}")
    def stamp_dyn(self, base):
        if not self.instr: return
        self.A(f"  s_memtime s[{sST}:{sST+1}]\n  s_lshl_b32 s100, s{sWAVE}, 6\n  s_add_u32 s100, s100, s{sB}\n  s_lshl_b32 s100, s100, 2\n  s_add_u32 s100, s100, {STAMPA + 4*base}\n  s_waitcnt lgkmcnt(0)\n  v_mov_b32 v{TMP+6}, s{sST}\n  v_mov_b32 v{TMP+7}, s100\n  ds_write_b32 v{TMP+7}, v{TMP+6}")

    def kread(self, f, slot):
        k, s = divmod(f, 6)
        return f"ds_read_b128 {vq(pool(f))}, v{vKA+(s&1)} offset:{slot*TILE + k*6144 + (s>>1)*128}"
    def vread(self, d, rho, slot):
        r = pool(12 + d) + 2*rho
        return f"ds_read_b64_tr_b16 v[{r}:{r+1}], v{vVA+(d&3)} offset:{slot*TILE + rho*6144 + (d>>2)*128}"
    def cinit(self, kind, k, b):
        mb = (0, 1) if kind == "p1" else (2, 3)
        if k == 1 and b in mb: return vq(NEGM1 + 4*mb.index(b))
        return vq(NEGM + 4*b)

    def step_parts(self, kind, tm4):
        P = self.P.get(kind, {})
        par = tm4 & 1
        qb = [0, 1, 2, 3] if kind == "p1" else [2, 3]
        nq = len(qb); NQ = 12*nq
        mf = []
        for f in range(12):
            k, s = divmod(f, 6)
            for b in qb:
                c = self.cinit(kind, k, b) if s == 0 else vq(Sreg(k, b))
                mf.append(f"v_mfma_f32_16x16x32_bf16 {vq(Sreg(k,b))}, {vq(pool(f))}, {Qop(b,s)}, {c}")
        pv = []
        for d in range(12):
            for b in qb:
                pv.append(f"v_mfma_f32_16x16x32_bf16 {aq(Oreg(b,d))}, {vq(pool(12+d))}, {vq(Preg(par^1,b))}, {aq(Oreg(b,d))}")
        rs = [f"v_mfma_f32_16x16x32_bf16 {vq(L0+4*b)}, {vq(ONES)}, {vq(Preg(par,b))}, {vq(L0+4*b)}" for b in qb]
        RSD = P.get("RSD", 9 if nq == 4 else 9)
        rs_pos = NQ + RSD*nq
        mf = mf + pv[:RSD*nq] + rs + pv[RSD*nq:]
        return dict(kind=kind, tm4=tm4, par=par, qb=qb, nq=nq, NQ=NQ, mf=mf, RSD=RSD, rs_pos=rs_pos, n=len(mf), P=P)

    def step_streams(self, sp, base, F, name, last_in_body):
        kind, tm4, par, qb, nq, NQ, RSD, rs_pos, n, P = (sp[k] for k in ("kind","tm4","par","qb","nq","NQ","RSD","rs_pos","n","P"))
        nrs = len(qb)
        def G(a): return F(base + a)
        def pv(d): return NQ + d*nq + (nrs if d >= RSD else 0)
        LEAD = P.get("LEAD", 7)
        BG = P.get("BG", NQ - 2)
        KW = P.get("KW", 5)
        pair = P.get("pair", nq == 2)
        kslot = tm4; knext = (tm4 + 1) % 4; vslot = (tm4 + 3) % 4
        end = G(n - 1)
        ks = []
        for f in range(4, 12):
            use = f*nq
            if pair and f % 2 == 1: use = (f-1)*nq
            lo = G((f-8)*nq + nq - 1) if f >= 8 else G(0) - (1 if base > 0 else 0)
            lo = max(lo, G(0))
            hi = min(G(use) - LEAD, G(BG) - KW)
            ks.append(Item(self.kread(f, kslot), "D", lo, max(hi, lo)))
        vs = []
        for d in range(12):
            use = pv(d)
            if pair and d % 2 == 1: use = pv(d-1)
            prev = 4 + d
            free = (prev*nq + nq - 1) if prev < 12 else pv(prev - 12) + nq - 1
            lo = G(free); hi = max(G(use) - LEAD, lo)
            vs.append(Item(self.vread(d, 0, vslot), "T", lo, hi)); vs.append(Item(self.vread(d, 1, vslot), "T", lo, hi))
        kn = []
        for f in range(4):
            lo = max(G(pv(f + 4) + nq - 1), G(BG) + 1)
            hi = end if nq == 4 else min(end, end - LEAD + 2*(f - f % 2) + 2)
            kn.append(Item(self.kread(f, knext), "D", lo, max(lo, hi)))
        sm = []; ti = 0
        for k in range(2):
            pend = None
            for bi, b in enumerate(qb):
                ready = G((6*k + 5)*nq + bi) + 4
                hi = G(rs_pos) - 2
                for h in range(2):
                    s = Sreg(k, b) + 2*h
                    t0 = TMP + (ti % 4)*2; ti += 1
                    sm.append(Item(f"v_exp_f32 v{t0}, v{s}", "E", ready, hi))
                    if pend: sm.append(pend)
                    sm.append(Item(f"v_exp_f32 v{t0+1}, v{s+1}", "E", ready, hi))
                    pend = Item(f"v_cvt_pk_bf16_f32 v{Preg(par,b)+2*k+h}, v{t0}, v{t0+1}", "V", ready, hi)
            pend.sep = 1; sm.append(pend)
        ck = []
        cg = G(rs_pos + nrs - 1) + 4
        lr = [L0 + 4*b for b in qb]
        chi = max(cg + 1, end - 2)
        if nq == 4:
            ck.append(Item(f"v_max3_f32 v{vT0}, v{lr[0]}, v{lr[1]}, v{lr[2]}", "V", cg, chi))
            ck.append(Item(f"v_max_f32 v{vT0}, v{vT0}, v{lr[3]}", "V", cg, chi))
        else:
            ck.append(Item(f"v_max_f32 v{vT0}, v{lr[0]}, v{lr[1]}", "V", cg, chi))
        ck.append(Item(f"v_cmp_nge_f32 s[{sCMP}:{sCMP+1}], s{sTHR}, v{vT0}", "V", cg, chi))
        b0 = G(BG) - 1
        sc = [Item(f"s_mov_b32 s{sR0}, s{sR1}", "S", G(0), b0), Item(f"s_mov_b32 s{sR1}, s{sR2}", "S", G(0), b0),
              Item(f"s_mov_b32 s{sR2}, s{sR3}", "S", G(0), b0), Item(f"s_mov_b32 s{sR3}, s{sR4}", "S", G(0), b0),
              Item(f"s_add_u32 s{sD}, s{sT}, 4", "S", G(0), b0),
              Item(f"v_readlane_b32 s{sR4}, v{vSEQ}, s{sD}", "V", G(0), b0 - 4, sep=1),
              Item(f"s_mul_i32 s{sVO_}, s{sR2}, {TILE}", "S", G(0), b0, sep=1), Item(f"s_add_u32 s{sVO_}, s{sVO_}, s{sWP}", "S", G(0), b0),
              Item(f"s_mul_i32 s{sKO}, s{sR4}, {TILE}", "S", G(0), b0, sep=2), Item(f"s_add_u32 s{sKO}, s{sKO}, s{sWP}", "S", G(0), b0),
              Item(f"s_add_u32 s{sT}, s{sT}, 1", "S", G(0), end - 2)]
        initA = (name == "P1K0s0")
        if kind == "p1":
            sc.append(Item([f"s_cmp_ge_u32 s{sR1}, s{sDA}", f"s_cselect_b64 s[{sFLAG}:{sFLAG+1}], -1, 0"], "S", G(0), end - 1))
            if initA: sc.append(Item([f"s_cmp_eq_u32 s{sT}, 5", f"s_cselect_b64 s[{sFLAG}:{sFLAG+1}], -1, s[{sFLAG}:{sFLAG+1}]"], "S", G(0), end - 1))
        else:
            sc.append(Item(f"s_max_u32 s{sD}, s{sR0}, s{sR1}", "S", G(0), end - 1))
            sc.append(Item([f"s_cmp_ge_u32 s{sD}, s{sDB}", f"s_cselect_b64 s[{sFLAG}:{sFLAG+1}], -1, 0"], "S", G(0), end - 1))
        R = []
        g0 = G(BG) + 1
        for j in range(3):
            R.append((f"s_add_u32 m0, s{sKM0}, {kslot*TILE}", f"buffer_load_dwordx4 v{vDV+j}, s[{sK}:{sK+3}], s{sKO} offen offset:{1024*j} lds", ("R", name)))
        vdst = (tm4 + 2) % 4
        for j in range(3):
            R.append((f"s_add_u32 m0, s{sVM0}, {vdst*TILE}", f"buffer_load_dwordx4 v{vDV+j}, s[{sV}:{sV+3}], s{sVO_} offen offset:{1024*j} lds", ("R", name)))
        fixed = {G(BG): [f"NEEDV R:{name}", "NEED " + " ".join(f"v{pool(11)+r}" for r in range(4)), "s_barrier"]}
        stub = f"{name}_SLOW"
        tail = [f"s_or_b64 vcc, s[{sCMP}:{sCMP+1}], s[{sFLAG}:{sFLAG+1}]", f"s_cbranch_vccnz {stub}", f"{stub}B:"]
        self.ool.append([f"{stub}:",
                         f"  s_cmp_eq_u64 s[{sCMP}:{sCMP+1}], 0", f"  s_cbranch_scc1 {stub}_M",
                         f"  s_call_b64 s[{sRET}:{sRET+1}], RARE_{kind}_{par}",
                         f"{stub}_M:"] +
                        ([f"  s_cmp_eq_u32 s{sT}, 5", f"  s_cbranch_scc0 {stub}_N", f"  s_call_b64 s[{sRET}:{sRET+1}], INIT_A", f"{stub}_N:"] if initA else []) +
                        [f"  s_call_b64 s[{sRET}:{sRET+1}], MASK_{kind}",
                         f"  s_branch {stub}B"])
        waits = []
        for f in range(12):
            if not (pair and f % 2 == 1) and (base + f*nq) > 0: waits.append(G(f*nq) - 1)
        for d in range(12):
            if not (pair and d % 2 == 1): waits.append(G(pv(d)) - 1)
        extra = {}
        if pair:
            for f in range(0, 12, 2): extra[G(f*nq)] = [f"v{pool(f+1)+r}" for r in range(4)]
            for d in range(0, 12, 2): extra[G(pv(d))] = [f"v{pool(12+d+1)+r}" for r in range(4)]
        return dict(streams=[ks, vs, kn, sm, ck, sc], R=R, Rwin=(g0, end), fixed=fixed, tail=(end, tail), waits=waits, extra=extra, BG=G(BG))

    def body(self, kind, gt, H):
        name = f"{kind.upper()}{gt or 'N'}{H}"
        tms = ([0, 1] if H == 0 else [2, 3]) if kind == "p1" else [0, 1, 2, 3]
        if gt is None: tms = [1, 2] if H == 0 else [3]
        sps = [self.step_parts(kind, t) for t in tms]
        att = []; bases = []
        for sp in sps: bases.append(len(att)); att += sp["mf"]
        nA = len(att)
        PG = self.P.get("g", {})
        gm = []
        if gt:
            for j in range(24):
                g, x = divmod(j, 4)
                if gt == "K":
                    cp, T = divmod(g, 3); cc, sg = divmod(x, 2)
                    c = "0" if (T == 0 and sg == 0) else vq(GD + 4*cc)
                    gm.append(f"v_mfma_f32_16x16x32_bf16 {vq(GD+4*cc)}, {vq(GQ+4*(2*T+sg))}, {vq(GF+4*(j&1))}, {c}")
                else:
                    gg = 6*H + g; jb, cp = divmod(gg, 4)
                    c = "0" if cp == 0 else vq(ACC + 4*x)
                    gm.append(f"v_mfma_f32_16x16x32_bf16 {vq(ACC+4*x)}, {vq(GF+4*(j&1))}, {vq(GB+4*(g&1))}, {c}")
            a0 = PG.get("a0", 14); a1 = nA - PG.get("aend", 14)
            ins = [a0 + int(round(j*(a1 - a0)/23.0)) for j in range(24)]
            pos = PG.get("pos_" + kind)
            if pos:
                per = 24 // len(sps); nst = nA // len(sps)
                ins = [si*nst + pos[k] for si in range(len(sps)) for k in range(per)]
                ins = sorted(min(max(x, a0), a1) for x in ins)
                for k in range(1, 24):
                    if ins[k] <= ins[k-1]: ins[k] = ins[k-1] + 1
        else:
            ins = []
        mf = []; Fmap = {}; gpos = []
        jj = 0
        for a in range(nA):
            while jj < len(ins) and ins[jj] == a:
                gpos.append(len(mf)); mf.append(gm[jj]); jj += 1
            Fmap[a] = len(mf); mf.append(att[a])
        n = len(mf)
        F = lambda a: Fmap[a]
        streams = []; fixed = {}; busy = [0]*n; extra = {}; vmlist = []; tails = []
        for si, sp in enumerate(sps):
            r = self.step_streams(sp, bases[si], F, f"{name}s{si}", si == len(sps)-1)
            streams += r["streams"]
            for g, v in r["fixed"].items(): fixed.setdefault(g, []).extend(v)
            for g in r["waits"]: busy[g] += 1
            extra.update(r["extra"])
            lo, hi = r["Rwin"]
            nR = len(r["R"])
            for k, (m0, dma, tag) in enumerate(r["R"]):
                tgt = lo + (k + 0.5)*(hi - lo)/nR
                vmlist.append((tgt, lo, hi, m0, dma, tag, None))
            tails.append(r["tail"])
            if gt is None and H == 0 and si == 0:
                for k in range(6):
                    m0, so, dma = self.qa_dma(6 + k)
                    vmlist.append((hi - 0.9 + 0.1*k, lo, hi, [m0, so], dma, ("Q", name), None))
        LG = PG.get("LEAD", 7)
        if gt:
            gr = []
            GW = []
            for g in range(6):
                w = gpos[4*g] - LG - 3
                GW.append(w)
                fixed.setdefault(w, []).append(f"NEEDV G:{g}")
            for j in range(24):
                g, x = divmod(j, 4); slot = g % 3
                lo = (gpos[j-2] if j >= 2 else 0)
                if x < 2: lo = max(lo, GW[g])
                hi = max(gpos[j] - LG, lo + (1 if gt == "V" else 0))
                if gt == "K":
                    cc, sg = divmod(x, 2)
                    gr.append(Item(f"ds_read_b128 {vq(GF+4*(j&1))}, v{vKG+sg} offset:{slot*4096 + cc*2048}", "D", lo + (1 if x < 2 and lo == GW[g] else 0), hi))
                else:
                    r0 = GF + 4*(j&1)
                    l2 = lo + (1 if x < 2 and lo == GW[g] else 0)
                    gr.append(Item(f"ds_read_b64_tr_b16 v[{r0}:{r0+1}], v{vVG+x} offset:{slot*4096}", "T", l2, max(hi, l2)))
                    gr.append(Item(f"ds_read_b64_tr_b16 v[{r0+2}:{r0+3}], v{vVG+x} offset:{slot*4096+512}", "T", l2, max(hi, l2)))
                busy[gpos[j] - 1] += 1
            streams.append(gr)
            ix = []
            prevB = -1
            win = None
            if kind == "p1" and self.P.get("touch", 1):
                g0 = self.P.get("win_g0", 2)
                w0 = gpos[4*g0 - 1] + 1 + self.P.get("win_gs", 13)
                win = (w0, w0 + self.P.get("win_w", 64))
                vmlist.append((w0 + 0.1, w0, w0 + 1, f"s_mov_b32 m0, {DUMMY}", f"buffer_load_dword v{vTCH}, s[{sTS}:{sTS+3}], s{sTOFF} offen lds", ("X", name), None))
                vmlist.append((w0 + 0.2, w0, w0 + 2, None, f"buffer_load_dword v{vTCH}, s[{sMVS}:{sMVS+3}], s{sTOF2} offen lds", ("X", name), None))
                vmlist.append((w0 + 0.3, w0, win[1], None, None, None, f"s_add_u32 s{sTOFF}, s{sTOFF}, 49152"))
                vmlist.append((w0 + 0.4, w0, win[1], None, None, None, [f"s_add_u32 s{sTOF2}, s{sTOF2}, 32768", f"s_cmp_gt_u32 s{sB}, 5", f"s_cselect_b32 s{sTOF2}, 0x40000000, s{sTOF2}"]))
                nv = []
                for e in vmlist:
                    tgt, lo, hi, m0, dma, tag, sal = e
                    if tag and tag[0] == "R":
                        if lo <= win[0]: hi = min(hi, win[0] - 1);
                        else: lo = max(lo, win[1] + 1)
                        e = (tgt, lo, hi, m0, dma, tag, sal)
                    nv.append(e)
                vmlist = nv
                byw = {}
                for e in vmlist:
                    if e[5] and e[5][0] == "R": byw.setdefault(e[5][1], []).append(e)
                nv = []
                for e in vmlist:
                    if e[5] and e[5][0] == "R":
                        grp = byw[e[5][1]]; k = grp.index(e)
                        e = (e[1] + (k + 0.5)*(e[2] - e[1])/len(grp),) + e[1:]
                    elif e[6] and isinstance(e[6], str) and "s34, s34" in e[6].replace(f"s{sKOFF}", "s34"):
                        lo_, hi_ = e[1], e[2]
                        if lo_ <= win[0]: e = (win[0] - 0.5, lo_, hi_) + e[3:]
                    nv.append(e)
                vmlist = nv
            for g in range(6):
                gi = g + 2
                A_ = (gpos[4*g - 1] + 1) if g > 0 else 1
                if win and A_ > win[0] - self.P.get("win_gs", 13) + 1: A_ = max(A_, win[1] + 1 + (prevB + 1 - win[1] - 1 if prevB > win[1] else 0))
                if gt == "K":
                    cpi, Ti = divmod(gi, 3)
                    newidx = (Ti == 0); qoff = cpi*128
                else:
                    ggi = 6*H + gi
                    ji, cpi = divmod(ggi, 4); newidx = True; qoff = cpi*128
                so = ["0", f"s{sT1}", f"s{sT2}"][Ti] if gt == "K" else f"s{sVT+ji}"
                if newidx:
                    ilo = prevB + 1
                    if gt == "V" and cpi == 0:
                        ix.append(Item(f"v_add_u32 v{vIA}, s{sVI+ji}, v{vIA}", "V", ilo, ilo + 2)); ilo += 1
                    A_ = max(A_, ilo + PG.get("ILEAD", 6))
                    for p in range(4):
                        ix.append(Item(f"ds_read_b32 v{PAIR+2*p}, v{vIA} offset:{qoff + 32*p}", "I", ilo, A_ - PG.get("ILEAD", 6) + 1))
                B_ = min(A_ + PG.get("GSPAN", 20), n - 1)
                if win and A_ <= win[0]: B_ = min(B_, win[0] - 1)
                for p in range(4):
                    tgt = A_ + 1 + p*(B_ - A_ - 1)/4.0
                    vmlist.append((tgt, A_, B_, f"s_add_u32 m0, s{sGM0}, {(gi % 3)*4096 + p*1024}",
                                   f"buffer_load_dwordx4 v[{PAIR+2*p}:{PAIR+2*p+1}], s[{sG}:{sG+3}], {so} idxen offen lds", ("G", gi), None))
                prevB = B_
            adv = 256 if gt == "K" else 0
            if adv: ix.append(Item(f"v_add_u32 v{vIA}, {adv}, v{vIA}", "V", ix[-1].hi, n - 1, sep=1))
            streams.append(ix)
            if gt == "K":
                se = []
                for cp in range(2):
                    g = 3*cp + 2; u = 2*H + cp
                    for cc in range(2):
                        j = 4*g + 2*cc + 1
                        lo = gpos[j] + 4
                        hi = (gpos[4*(g+1) + 2*cc] - 1) if g < 5 else n - 1
                        se.append(Item(f"v_cndmask_b32 v{GX+cc}, v{GX+cc}, v{GD+4*cc+2*cc}, s[{sSEL+4*u}:{sSEL+4*u+1}]", "V", lo, hi))
                        se.append(Item(f"v_cndmask_b32 v{GX+cc}, v{GX+cc}, v{GD+4*cc+2*cc+1}, s[{sSEL+4*u+2}:{sSEL+4*u+3}]", "V", lo, hi))
                streams.append(se)
            else:
                bs = []
                for g in range(6):
                    gg = 6*H + g; jb, cp = divmod(gg, 4)
                    lo = gpos[4*(g-2) + 3] if g >= 2 else 0
                    hi = max(gpos[4*g] - LG, lo)
                    bs.append(Item(f"ds_read_b128 {vq(GB+4*(g&1))}, v{vPB+cp}", "D", lo, hi))
                    bs.append(Item(f"v_add_u32 v{vPB+cp}, s{sVP+jb+1}, v{vPB+cp}", "V", lo, min(hi + 12, n - 1)))
                streams.append(bs)
                st = []
                for g in range(6):
                    gg = 6*H + g; jb, cp = divmod(gg, 4)
                    if cp != 3: continue
                    for x in range(4):
                        lo = gpos[4*g + x] + 4
                        hi = (gpos[4*(g+1) + x] - 1) if g < 5 else n - 3
                        st.append(Item(f"v_cvt_pk_bf16_f32 v{OUTT+2*x}, v{ACC+4*x}, v{ACC+4*x+1}", "V", lo, hi))
                        st.append(Item(f"v_cvt_pk_bf16_f32 v{OUTT+2*x+1}, v{ACC+4*x+2}, v{ACC+4*x+3}", "V", lo, hi))
                        if x == 1 or x == 3:
                            k = x >> 1
                            st.append(Item(f"buffer_store_dwordx4 {vq(OUTT+4*k)}, v{vLIN}, s[{sW}:{sW+3}], s{sVO+jb} offen offset:{k*1024} {self.P.get('omf','')}", "G",
                                           lo, (hi + 8 if g < 5 else n - 1), sep=1, tag=("S", jb)))
                streams.append(st)
        vmlist.sort(key=lambda x: x[0])
        vm = []
        for tgt, lo, hi, m0, dma, tag, sal in vmlist:
            if sal: vm.append(Item(sal, "S", lo, n - 1)); continue
            if m0:
                vm.append(Item(m0, "S", max(lo - 1, 0), hi - 1, sep=0))
                vm.append(Item(dma, "M", lo, hi, sep=1, tag=tag))
            else:
                vm.append(Item(dma, "M", lo, hi, tag=tag))
        streams.append(vm)
        for g, v in fixed.items():
            busy[g] += len([x for x in v if not x.endswith(":") and not x.startswith("NEED ")])
        for e, tl in tails: busy[e] += 0
        items = optimize(n, streams, busy1=busy, name=name, seed=self.P.get("seed", 1), iters=self.P.get("iters", 150000),
                         mspace=self.P.get("mspace", 4), ldsw=self.P.get("ldsw", 1.0))
        for e, tl in tails: fixed.setdefault(e, [])
        seq = emit(mf, items, fixed)
        seq2 = []; mi = -1; tl = {e: t for e, t in tails}; pend = None
        for cls, line, tag in seq:
            if cls == "M" and line.startswith("v_mfma"):
                if pend: seq2 += [("F", l, None) for l in pend]; pend = None
                mi += 1
                if mi in tl: pend = tl[mi]
            seq2.append((cls, line, tag))
        if pend: seq2 += [("F", l, None) for l in pend]
        self.bodies[name] = dict(seq=seq2, extra=extra, kind=kind, gt=gt, H=H, nsteps=len(sps), name=name)
        return name

    def resolve_vm(self, name, preds):
        B = self.bodies[name]
        tr = vm_trace(B["seq"])
        nst = B["nsteps"]
        res = []
        for pos, (k, v) in enumerate(tr):
            if k != "mark": continue
            typ, arg = v.split(":")
            best = None
            for ptr in preds:
                full = ptr + tr[:pos]
                ops = [t for kk, t in full if kk == "op"]
                npre = len([1 for kk, t in ptr if kk == "op"])
                if typ == "G":
                    g = int(arg)
                    idxs = [i for i, t in enumerate(ops) if t and t[0] == "G" and ((i >= npre and t[1] == g and g >= 2) or (i < npre and g < 2 and t[1] == g + 6))]
                    if g < 2 and not idxs: N = 0; best = N if best is None else min(best, N); continue
                    last = max(idxs)
                else:
                    si = int(arg[-1])
                    rn = [(i, t[1]) for i, t in enumerate(ops) if t and t[0] == "R"]
                    order = []
                    for i, nm in rn:
                        key = (nm, i < npre)
                        if not order or order[-1][0] != key: order.append([key, i])
                        else: order[-1][1] = i
                    prior = [o for o in order if not (o[0][1] is False and int(o[0][0][-1]) >= si)]
                    if len(prior) < 2: N = 0; best = N if best is None else min(best, N); continue
                    last = prior[-2][1]
                N = len(ops) - 1 - last
                best = N if best is None else min(best, N)
            res.append(min(best, 63))
        return res

    def emit_body(self, name, preds):
        B = self.bodies[name]
        vmN = self.resolve_vm(name, preds)
        init = [[f"v{pool(f)+r}" for r in range(4)] for f in range(4)]
        lines, q = finalize(B["seq"], initial=init, extra=B["extra"], vmN=vmN)
        lines = fix_hazards(lines)
        ab = self.ab.split(",")
        if "nobar" in ab: lines = [l for l in lines if l.strip() != "s_barrier"]
        if "novm" in ab: lines = [l for l in lines if "vmcnt" not in l]
        if "nog" in ab: lines = [l for l in lines if "idxen" not in l]
        if "nor" in ab: lines = [l for l in lines if not (" lds" in l and "idxen" not in l)]
        if "nost" in ab: lines = [l for l in lines if "buffer_store" not in l]
        if "nolgkm" in ab: lines = [l for l in lines if "lgkmcnt" not in l]
        if "halfbar" in ab:
            out = []; k = 0
            for l in lines:
                if l.strip() == "s_barrier":
                    k += 1
                    if k % 2 == 1: continue
                out.append(l)
            lines = out
        if "nom0" in ab: lines = [l for l in lines if "m0," not in l]
        if "noI" in ab: lines = [l for l in lines if "ds_read_b32" not in l]
        if "noexp" in ab: lines = [l for l in lines if not l.strip().startswith("v_exp")]
        if "noval" in ab: lines = [l for l in lines if not (l.strip().startswith("v_") and not l.strip().startswith("v_mfma"))]
        if "nosal" in ab: lines = [l for l in lines if not (l.strip().startswith("s_add") or l.strip().startswith("s_cmp_ge") or l.strip().startswith("s_cselect")) or "s32" in l or "s66" in l or "s35" in l]
        if "nods" in ab: lines = [l for l in lines if not l.strip().startswith("ds_read")]
        if "nogds" in ab: lines = [l for l in lines if not (l.strip().startswith("ds_read") and any(f"v{r}" in l.split(",")[0] or f"v[{r}:" in l.split(",")[0] for r in list(range(PAIR, 256))))]
        if self.ab: lines = [l for l in lines if not l.strip().startswith("s_or_b64 vcc")]
        if self.ab: lines = [l.replace("s_cbranch_vccnz", "s_cbranch_scc1 ").replace("scc1  ", "scc1 ") if False else l for l in lines]
        if self.ab:
            out = []
            for l in lines:
                if l.strip().startswith("s_cbranch_vccnz"):
                    out.append(f"  s_mov_b64 vcc, s[{sFLAG}:{sFLAG+1}]"); out.append(l)
                else: out.append(l)
            lines = out
        print(f"[{name}] vmN={vmN}")
        return lines

    def rowmax(self, L, b, dst, tmp):
        s0, s1 = Sreg(0, b), Sreg(1, b)
        L.append(f"  v_max3_f32 v{dst}, v{s0}, v{s0+1}, v{s0+2}")
        L.append(f"  v_max3_f32 v{dst}, v{dst}, v{s0+3}, v{s1}")
        L.append(f"  v_max3_f32 v{dst}, v{dst}, v{s1+1}, v{s1+2}")
        L.append(f"  v_max_f32 v{dst}, v{dst}, v{s1+3}")
        L.append(f"  v_mov_b32 v{tmp}, v{dst}\n  s_nop 1\n  v_permlane16_swap_b32 v{dst}, v{tmp}\n  s_nop 1\n  v_max_f32 v{dst}, v{dst}, v{tmp}")
        L.append(f"  v_mov_b32 v{tmp}, v{dst}\n  s_nop 1\n  v_permlane32_swap_b32 v{dst}, v{tmp}\n  s_nop 1\n  v_max_f32 v{dst}, v{dst}, v{tmp}")
    def expcvt(self, L, b, par):
        for k in range(2):
            for h in range(2):
                s = Sreg(k, b) + 2*h
                L.append(f"  v_exp_f32 v{TMP}, v{s}\n  v_exp_f32 v{TMP+1}, v{s+1}\n  s_nop 0")
                L.append(f"  v_cvt_pk_bf16_f32 v{Preg(par,b)+2*k+h}, v{TMP}, v{TMP+1}")
    def routines(self):
        for kind in ("p1", "p2"):
            mb = [0, 1] if kind == "p1" else [2, 3]
            diag = sDA if kind == "p1" else sDB
            L = [f"MASK_{kind}:"]
            L.append(f"  s_sub_i32 s{sD}, s{sR1}, s{diag}\n  s_sub_i32 s{sD}, s{sD}, s{sWAVE}\n  s_lshl_b32 s{sD}, s{sD}, 5")
            L.append(f"  v_subrev_u32 v{TMP+7}, s{sD}, v{vX}")
            for kp in range(2):
                for bi, b in enumerate(mb):
                    for r in range(4):
                        L.append(f"  v_cmp_le_i32 s[{sMASK+2*r}:{sMASK+2*r+1}], {16*(kp-bi) + r}, v{TMP+7}")
                    dst = (NEGM + 4*b) if kp == 0 else (NEGM1 + 4*bi)
                    for r in range(4):
                        L.append(f"  v_cndmask_b32 v{dst+r}, v{vNINF}, v{MNEG+b}, s[{sMASK+2*r}:{sMASK+2*r+1}]")
            L.append(f"  s_nop 0\n  s_setpc_b64 s[{sRET}:{sRET+1}]")
            self.ool.append(L)
            qb = [0, 1, 2, 3] if kind == "p1" else [2, 3]
            for par in range(2):
                L = [f"RARE_{kind}_{par}:", "  s_nop 7\n  s_nop 7"]
                dl, al, t6, t7 = TMP+4, TMP+5, TMP+6, TMP+7
                for b in qb:
                    self.rowmax(L, b, dl, t6)
                    L.append(f"  v_ceil_f32 v{dl}, v{dl}")
                    L.append(f"  v_frexp_exp_i32_f32 v{t6}, v{L0+4*b}\n  v_add_u32 v{t6}, -12, v{t6}\n  v_cvt_f32_i32 v{t6}, v{t6}")
                    L.append(f"  v_max3_f32 v{dl}, v{dl}, v{t6}, 0")
                    L.append(f"  v_cvt_i32_f32 v{t6}, v{dl}\n  v_sub_u32 v{t6}, 0, v{t6}\n  v_ldexp_f32 v{al}, 1.0, v{t6}")
                    for k in range(2):
                        for r in range(4): L.append(f"  v_sub_f32 v{Sreg(k,b)+r}, v{Sreg(k,b)+r}, v{dl}")
                    for r in range(4): L.append(f"  v_sub_f32 v{NEGM+4*b+r}, v{NEGM+4*b+r}, v{dl}")
                    if b in mb:
                        for r in range(4): L.append(f"  v_sub_f32 v{NEGM1+4*mb.index(b)+r}, v{NEGM1+4*mb.index(b)+r}, v{dl}")
                    L.append(f"  v_sub_f32 v{MNEG+b}, v{MNEG+b}, v{dl}")
                    for d in range(12):
                        for r in range(4):
                            a = Oreg(b, d) + r
                            L.append(f"  v_accvgpr_read_b32 v{t6}, a{a}\n  s_nop 0\n  v_mul_f32 v{t6}, v{t6}, v{al}\n  s_nop 0\n  v_accvgpr_write_b32 a{a}, v{t6}")
                    self.expcvt(L, b, par)
                    L.append("  s_nop 1")
                    L.append(f"  v_mfma_f32_16x16x32_bf16 {vq(TMP)}, {vq(ONES)}, {vq(Preg(par,b))}, 0")
                    L.append("  s_nop 7\n  s_nop 1")
                    L.append(f"  v_mov_b32 v{t7}, 0x203\n  v_cmp_class_f32 vcc, v{L0+4*b}, v{t7}\n  v_mul_f32 v{t6}, v{L0+4*b}, v{al}\n  s_nop 1")
                    L.append(f"  v_cndmask_b32 v{t6}, v{t6}, v{TMP}, vcc")
                    for r in range(4): L.append(f"  v_mov_b32 v{L0+4*b+r}, v{t6}")
                L.append(f"  s_nop 3\n  s_setpc_b64 s[{sRET}:{sRET+1}]")
                self.ool.append(L)
        L = ["INIT_A:", "  s_nop 7\n  s_nop 7"]
        for b in (0, 1):
            dl, t6 = TMP+4, TMP+6
            self.rowmax(L, b, dl, t6)
            L.append(f"  v_ceil_f32 v{dl}, v{dl}")
            for k in range(2):
                for r in range(4): L.append(f"  v_sub_f32 v{Sreg(k,b)+r}, v{Sreg(k,b)+r}, v{dl}")
            L.append(f"  v_sub_f32 v{MNEG+b}, v{MNEG+b}, v{dl}")
            self.expcvt(L, b, 0)
            L.append("  s_nop 1")
            L.append(f"  v_mfma_f32_16x16x32_bf16 {vq(L0+4*b)}, {vq(ONES)}, {vq(Preg(0,b))}, 0")
        L.append(f"  s_nop 7\n  s_setpc_b64 s[{sRET}:{sRET+1}]")
        self.ool.append(L)
        def blk(k):
            k = min(k, 11); h = k // 6; r = k % 6
            return (r >> 1, 2*h + (r & 1))
        for m in range(4):
            L = [f"VSET_{m}:"]
            for j in range(4): L.append(f"  s_mov_b32 s{sVT+j}, {blk(3*m+j)[0]*128}")
            for j in range(1, 4):
                dg = blk(3*m+j)[1] - blk(3*m+j-1)[1]
                L.append(f"  s_mov_b32 s{sVI+j}, {dg*512}\n  s_mov_b32 s{sVP+j}, {dg*256}")
            base = sROWA if m < 2 else sROWB
            for j in range(3):
                T, gm = blk(3*m+j)
                L.append(f"  s_add_u32 s{sVO+j}, s{base}, {(gm & 1)*6144 + T*2048}")
            L.append(f"  s_setpc_b64 s[{sRET}:{sRET+1}]")
            self.ool.append(L)
        def cpq(gm):
            L = []
            for s in range(6):
                op = Qop(gm, s); base = int(op[2:op.index(':')])
                for r in range(4):
                    if op[0] == 'a': L.append(f"  v_accvgpr_read_b32 v{GQ+4*s+r}, a{base+r}")
                    else: L.append(f"  v_mov_b32 v{GQ+4*s+r}, v{base+r}")
            return L
        self.ool.append(["CPQ_0:"] + cpq(0) + [f"  s_nop 1\n  s_setpc_b64 s[{sRET}:{sRET+1}]"])
        for gm in range(4):
            fill = cpq(gm + 1) if gm < 3 else []
            def F(k=1):
                out = []
                for _ in range(k): out.append(fill.pop(0) if fill else "  s_nop 0")
                return out
            a, b, t0, t1 = GX, GX+1, TMP, TMP+1
            ctr = ["quad_perm:[1,0,3,2]", "quad_perm:[2,3,0,1]", "row_half_mirror"]
            L = [f"KEND_{gm}:"]
            L += F(2)
            L += [f"  v_mov_b32 v{t0}, v{a}", f"  v_mov_b32 v{t1}, v{b}"] + F(1)
            for c in ctr:
                L += [f"  v_max_f32_dpp v{t0}, v{t0}, v{t0} {c} row_mask:0xf bank_mask:0xf", f"  v_max_f32_dpp v{t1}, v{t1}, v{t1} {c} row_mask:0xf bank_mask:0xf"] + F(1)
            L += [f"  v_sub_f32 v{a}, v{a}, v{t0}", f"  v_sub_f32 v{b}, v{b}, v{t1}", f"  v_exp_f32 v{a}, v{a}", f"  v_exp_f32 v{b}, v{b}"] + F(1)
            L += [f"  v_mov_b32 v{t0}, v{a}", f"  v_mov_b32 v{t1}, v{b}"] + F(1)
            for c in ctr:
                L += [f"  v_add_f32_dpp v{t0}, v{t0}, v{t0} {c} row_mask:0xf bank_mask:0xf", f"  v_add_f32_dpp v{t1}, v{t1}, v{t1} {c} row_mask:0xf bank_mask:0xf"] + F(1)
            L += [f"  v_rcp_f32 v{t0}, v{t0}", f"  v_rcp_f32 v{t1}, v{t1}"] + F(1)
            L += [f"  v_mul_f32 v{t0}, s{sGG}, v{t0}", f"  v_mul_f32 v{t1}, s{sGG}, v{t1}", f"  v_mul_f32 v{a}, v{a}, v{t0}", f"  v_mul_f32 v{b}, v{b}, v{t1}",
                  f"  v_cvt_pk_bf16_f32 v{a}, v{a}, v{b}"] + F(1)
            L += [f"  ds_write_b16 v{vPW}, v{a} offset:{gm*256}", f"  ds_write_b16_d16_hi v{vPW}, v{a} offset:{gm*256+32}"]
            L += fill
            L += [f"  s_nop 1\n  s_setpc_b64 s[{sRET}:{sRET+1}]"]
            self.ool.append(L)

    def prologue(self):
        A = self.A
        A(f".globl {KNAME}\n.p2align 8\n.type {KNAME},@function\n{KNAME}:")
        A("  s_cmp_ge_u32 s2, 256\n  s_cbranch_scc1 AT_END")
        if self.instr: A("  s_memrealtime s[100:101]\n  s_memtime s[98:99]\n  s_waitcnt lgkmcnt(0)\n  v_mov_b32 v254, s98\n  v_mov_b32 v253, s100")
        A("  s_load_dwordx4 s[4:7], s[0:1], 0         ; q, k")
        A("  s_load_dwordx2 s[42:43], s[0:1], 16      ; v")
        A(f"  s_load_dwordx4 s[{sMK}:{sMK+3}], s[0:1], 24")
        A("  s_load_dwordx4 s[44:47], s[0:1], 40")
        A("  s_load_dwordx2 s[48:49], s[0:1], 56      ; out")
        A("  s_load_dwordx2 s[72:73], s[0:1], 72      ; ws")
        A(f"  v_and_b32 v1, 63, v0\n  v_lshrrev_b32 v0, 6, v0\n  s_nop 0\n  v_readfirstlane_b32 s{sWAVE}, v0")
        if self.instr:
            A(f"  s_nop 3\n  s_lshl_b32 s100, s{sWAVE}, 8\n  s_add_u32 s100, s100, {STAMPA}\n  v_mov_b32 v252, s100\n  ds_write_b32 v252, v254\n  ds_write_b32 v252, v253 offset:44")
        A(f"  s_and_b32 s3, s2, 7\n  s_lshr_b32 s96, s2, 3\n  s_and_b32 s{sI}, s96, 7\n  s_lshr_b32 s96, s96, 3\n  s_lshl_b32 s3, s3, 2\n  s_add_u32 s{sH}, s3, s96")
        A(f"  s_lshl_b32 s3, s{sI}, 2\n  s_sub_u32 s{sN}, 64, s3\n  s_mov_b32 s{sDA}, s3\n  s_sub_u32 s{sDB}, s{sN}, 4")
        A(f"  s_lshl_b32 s{sB1LAST}, s{sI}, 1\n  s_add_u32 s{sB1LAST}, s{sB1LAST}, 1\n  s_and_b32 s3, s{sI}, {self.P.get('epa_mask', 1)}\n  s_lshl_b32 s3, s3, 1\n  s_add_u32 s3, s3, 11\n  s_max_u32 s{sEPA}, s{sB1LAST}, s3")
        A(f"  s_mul_i32 s97, s{sH}, {HEAD}")
        A("  s_waitcnt lgkmcnt(0)")
        def srd(d, b, size=HEAD, sub=0):
            A(f"  s_add_u32 s{d}, s{b}, s97\n  s_addc_u32 s{d+1}, s{b+1}, 0")
            if sub: A(f"  s_sub_u32 s{d}, s{d}, {sub}\n  s_subb_u32 s{d+1}, s{d+1}, 0")
            A(f"  s_and_b32 s{d+1}, s{d+1}, 0xffff\n  s_mov_b32 s{d+2}, {size+sub}\n  s_mov_b32 s{d+3}, 0x20000")
        srd(sG, 4); srd(sK, 6); srd(sV, 42); srd(sO, 48); srd(sW, 72)
        for p in (sMK, sMV):
            A(f"  s_add_u32 s{p}, s{p}, s97\n  s_addc_u32 s{p+1}, s{p+1}, 0")
        A(f"  s_lshl_b32 s3, s{sH}, 16\n  s_add_u32 s{sTS}, s44, s3\n  s_addc_u32 s{sTS+1}, s45, 0\n  s_and_b32 s{sTS+1}, s{sTS+1}, 0xffff\n  s_mov_b32 s{sTS+2}, 65536\n  s_mov_b32 s{sTS+3}, 0x20000")
        A(f"  s_lshl_b32 s3, s{sH}, 1\n  s_and_b32 s96, s3, 0xfffffffc\n  s_add_u32 s46, s46, s96\n  s_addc_u32 s47, s47, 0\n  s_load_dword s96, s[46:47], 0")
        A("  v_lshrrev_b32 v16, 3, v1\n  v_and_b32 v17, 7, v1\n  v_and_b32 v18, 15, v1\n  v_lshrrev_b32 v19, 4, v1")
        for j in range(3):
            A(f"  v_add_u32 v20, {8*j}, v16\n  v_mul_u32_u24 v20, 0xAAAB, v20\n  v_lshrrev_b32 v20, 17, v20\n  v_and_b32 v20, 6, v20")
            A(f"  v_xor_b32 v20, v20, v17\n  v_lshlrev_b32 v20, 4, v20\n  v_lshl_add_u32 v{vDV+j}, v16, 7, v20")
        A(f"  v_lshlrev_b32 v{vLIN}, 4, v1")
        A(f"  s_lshl_b32 s3, s{sI}, 7\n  s_lshl_b32 s4, s{sWAVE}, 5\n  s_add_u32 s{sROWA}, s3, s4\n  s_sub_u32 s5, 1920, s3\n  s_add_u32 s{sROWB}, s5, s4")
        A(f"  s_lshl_b32 s3, s{sWAVE}, 11\n  s_add_u32 s6, s3, {IDX}\n  s_mov_b32 m0, s6\n  s_lshl_b32 s4, s{sROWA}, 5")
        A(f"  buffer_load_dwordx4 v{vLIN}, s[{sTS}:{sTS+3}], s4 offen lds")
        A(f"  s_add_u32 m0, s6, 1024\n  s_lshl_b32 s4, s{sROWB}, 5")
        A(f"  buffer_load_dwordx4 v{vLIN}, s[{sTS}:{sTS+3}], s4 offen lds")
        A(f"  s_mul_i32 s{sROWA}, s{sROWA}, 384\n  s_mul_i32 s{sROWB}, s{sROWB}, 384")
        if self.P.get("codepf", 1):
            A(f"  s_getpc_b64 s[44:45]\nL_CP:\n  s_sub_u32 s44, s44, L_CP-{KNAME}\n  s_subb_u32 s45, s45, 0\n  s_and_b32 s45, s45, 0xffff\n  s_mov_b32 s46, TILETAB-{KNAME}\n  s_mov_b32 s47, 0x20000")
            A(f"  s_lshr_b32 s3, s2, 3\n  s_lshl_b32 s3, s3, 12\n  s_lshl_b32 s5, s{sWAVE}, 10\n  s_add_u32 s3, s3, s5\n  v_and_b32 v20, 7, v1\n  v_lshlrev_b32 v20, 7, v20\n  s_mov_b32 m0, {DUMMY}\n  s_nop 0\n  buffer_load_dword v20, s[44:47], s3 offen lds")
        A(f"  s_getpc_b64 s[98:99]\nL_TT:\n  s_add_u32 s98, s98, TILETAB-L_TT\n  s_addc_u32 s99, s99, 0\n  s_lshl_b32 s3, s{sI}, 6\n  v_add_u32 v20, s3, v1\n  global_load_ubyte v{vSEQ}, v20, s[98:99]")
        A(f"  s_mov_b32 s7, {QAREA[0]}")
        for w in range(1, 4):
            A(f"  s_cmp_eq_u32 s{sWAVE}, {w}\n  s_cselect_b32 s7, {QAREA[w]}, s7")
        A(f"  s_mul_i32 s4, s{sWAVE}, 3072\n  s_add_u32 s{sKM0}, s4, {KR}\n  s_add_u32 s{sVM0}, s4, {VR}")
        if self.P.get("coop", 1):
            A(f"  s_and_b32 s5, s{sWAVE}, 1\n  s_cmp_eq_u32 s5, 1\n  s_cselect_b32 s{sTS}, s{sV}, s{sK}\n  s_cselect_b32 s{sTS+1}, s{sV+1}, s{sK+1}\n  s_mov_b32 s{sTS+2}, {HEAD}")
            A(f"  s_cmp_ge_u32 s{sWAVE}, 2\n  s_cselect_b32 s5, 64, 48\n  s_mul_i32 s3, s{sI}, s5\n  s_lshl_b32 s3, s3, 7")
            A(f"  s_cmp_ge_u32 s{sWAVE}, 2\n  s_cselect_b32 s98, 0, {32*TILE}\n  s_add_u32 s3, s3, s98")
            A(f"  v_lshlrev_b32 v{vTCH}, 7, v1\n  v_cmp_gt_u32 vcc, s5, v1\n  v_mov_b32 v20, 0x40000000\n  s_nop 0\n  v_cndmask_b32 v20, v20, v{vTCH}, vcc")
            A(f"  s_mov_b32 m0, {DUMMY}\n  s_nop 0\n  buffer_load_dword v20, s[{sTS}:{sTS+3}], s3 offen lds")
        self.stamp(48)
        D = []
        def tile(srdn, m0r, slot, off):
            for j in range(3):
                pre = [f"  s_add_u32 m0, s{m0r}, {slot*TILE}", f"  s_add_u32 s3, s4, {off}"] if j == 0 else []
                D.append(pre + [f"  buffer_load_dwordx4 v{vDV+j}, s[{srdn}:{srdn+3}], s3 offen offset:{1024*j} lds"])
        def qdma(b):
            base = sROWB if b >= 2 else sROWA
            lds = "s7" if b >= 2 else f"s{sGM0}"
            for half in range(2):
                for j in range(3):
                    pre = [f"  s_add_u32 m0, {lds}, {(b&1)*6144 + half*3072}", f"  s_add_u32 s3, s{base}, {(b&1)*6144 + half*3072}"] if j == 0 else []
                    D.append(pre + [f"  buffer_load_dwordx4 v{vDV+j}, s[{sG}:{sG+3}], s3 offen offset:{1024*j} lds"])
        A(f"  s_mul_i32 s{sGM0}, s{sWAVE}, 12288\n  s_add_u32 s{sGM0}, s{sGM0}, {GR}")
        qdma(2); qdma(3); tile(sK, sKM0, 0, 32*TILE); tile(sV, sVM0, 0, 32*TILE); tile(sK, sKM0, 1, 33*TILE)
        main = self.A
        B = Asm(); self.A = B; A = B
        A(f"  s_mov_b32 s{sWP}, s4")
        A(f"  v_and_b32 v20, 6, v18\n  v_xor_b32 v20, v20, v19\n  v_lshlrev_b32 v20, 4, v20\n  v_mul_u32_u24 v{vKA}, 384, v18\n  v_add_u32 v{vKA}, v{vKA}, v20\n  v_xor_b32 v{vKA+1}, 64, v{vKA}")
        A(f"  v_add_u32 v22, s7, v{vKA}\n  v_xor_b32 v23, 64, v22\n  v_add_u32 v24, s{sGM0}, v{vKA}\n  v_xor_b32 v25, 64, v24")
        for r in range(8): A(f"  v_mov_b32 v{Preg(1,0)+r}, 0")
        A(f"  v_mov_b32 v26, {hex(f2u(CSCALE))}\n  v_mov_b32 v27, {hex(f2u(CSCALE))}")
        A(f"  s_mov_b32 s{sC}, {hex(f2u(CSCALE))}\n  s_mov_b32 s{sHI}, 0xffff0000\n  s_mov_b32 s{sTHR}, 0x49800000\n  s_mov_b32 s{sT1}, 128\n  s_mov_b32 s{sT2}, 256")
        A(f"  v_mov_b32 v28, 0\n  v_mov_b32 v29, 0\n  v_mov_b32 v30, 0\n  v_mov_b32 v31, 0\n  v_add_u32 v20, {ZA}, v{vLIN}\n  ds_write_b128 v20, v[28:31]")
        for r in range(12): A(f"  v_mfma_f32_32x32x16_bf16 a[{16*r}:{16*r+15}], v[28:31], v[28:31], 0")
        A(f"  v_bfe_u32 v20, v1, 2, 2\n  v_lshl_add_u32 v20, v19, 2, v20")
        A(f"  v_mul_u32_u24 v{vVA}, 384, v20\n  v_and_b32 v20, 6, v20\n  v_bfe_u32 v21, v1, 1, 1\n  v_xor_b32 v20, v20, v21\n  v_lshl_add_u32 v{vVA}, v20, 4, v{vVA}")
        A(f"  v_and_b32 v20, 1, v1\n  v_lshl_add_u32 v{vVA}, v20, 3, v{vVA}\n  v_add_u32 v{vVA}, {VR}, v{vVA}")
        for x in range(1, 4): A(f"  v_xor_b32 v{vVA+x}, {32*x}, v{vVA}")
        A(f"  v_lshlrev_b32 v20, 2, v19\n  v_sub_u32 v{vX}, v18, v20\n  v_mov_b32 v{vNINF}, 0xff800000")
        A(f"  v_lshlrev_b32 v{vTCH}, 7, v1")
        A(f"  v_and_b32 v20, 2, v16\n  v_xor_b32 v20, v20, v17\n  v_lshlrev_b32 v20, 4, v20")
        for p in range(4):
            A(f"  v_mov_b32 v{PAIR+2*p+1}, v20" if p % 2 == 0 else f"  v_xor_b32 v{PAIR+2*p+1}, 64, v20")
        A(f"  v_and_b32 v20, 7, v18\n  v_lshrrev_b32 v21, 3, v18\n  v_lshlrev_b32 v{vKG}, 7, v20\n  v_lshl_add_u32 v{vKG}, v21, 10, v{vKG}")
        A(f"  v_and_b32 v20, 2, v20\n  v_xor_b32 v20, v20, v19\n  v_lshlrev_b32 v21, 2, v21\n  v_xor_b32 v20, v20, v21\n  v_lshl_add_u32 v{vKG}, v20, 4, v{vKG}")
        A(f"  v_add_u32 v{vKG}, s{sGM0}, v{vKG}\n  v_xor_b32 v{vKG+1}, 64, v{vKG}")
        A(f"  v_lshlrev_b32 v20, 6, v19\n  v_bfe_u32 v21, v1, 3, 1\n  v_lshl_add_u32 v20, v21, 4, v20\n  v_lshl_add_u32 v20, v17, 1, v20\n  s_lshl_b32 s5, s{sWAVE}, 10\n  s_add_u32 s5, s5, {PA}\n  v_add_u32 v{vPW}, s5, v20")
        for u in range(4):
            lo = 0xff << (16*u); hi = 0xff00 << (16*u)
            A(f"  s_mov_b32 s{sSEL+4*u}, {hex(lo & 0xffffffff)}\n  s_mov_b32 s{sSEL+4*u+1}, {hex(lo >> 32)}\n  s_mov_b32 s{sSEL+4*u+2}, {hex(hi & 0xffffffff)}\n  s_mov_b32 s{sSEL+4*u+3}, {hex(hi >> 32)}")
        for r in range(4): A(f"  v_mov_b32 v{ONES+r}, 0x3f803f80")
        for r in range(16): A(f"  v_mov_b32 v{L0+r}, 0\n  v_mov_b32 v{NEGM+r}, 0")
        for r in range(8): A(f"  v_mov_b32 v{NEGM1+r}, 0")
        for r in range(4): A(f"  v_mov_b32 v{MNEG+r}, 0")
        A(f"  v_lshlrev_b32 v1, 2, v16\n  v_add_u32 v{vIA}, s6, v1")
        A("  s_waitcnt lgkmcnt(0)")
        A(f"  s_lshl_b32 s5, s{sH}, 1\n  s_and_b32 s5, s5, 2\n  s_lshl_b32 s5, s5, 3\n  s_lshr_b32 s96, s96, s5\n  s_lshl_b32 s96, s96, 16")
        A(f"  v_mov_b32 v20, s96\n  v_mul_f32 v20, {hex(f2u(LOG2E))}, v20\n  v_exp_f32 v20, v20\n  s_nop 0\n  v_add_f32 v20, 1.0, v20\n  v_rcp_f32 v20, v20\n  s_nop 0\n  v_sub_f32 v21, 1.0, v20\n  v_readfirstlane_b32 s{sG1}, v20\n  s_nop 0\n  v_readfirstlane_b32 s{sGG}, v21")
        setup = [l for l in B.lines if l.strip()]
        self.A = main; A = main
        nset = 12
        per = -(-len(setup) // nset)
        sched_q = {13: (2, 5), 19: (3, 11)}
        pending = []
        for k, d in enumerate(D):
            for l in d: A(l)
            if k < nset:
                for l in setup[k*per:(k+1)*per]: A(l)
            if pending:
                for l in pending.pop(0): A(l)
            if k in sched_q:
                b, last = sched_q[k]
                for ch in pending:
                    for l in ch: A(l)
                A(f"  s_waitcnt vmcnt({k - last})")
                self.stamp(50 + b)
                reads, fr = self.qproc(b, 22 if b >= 2 else 24, 32)
                for l in reads: A(l)
                pending = fr
        for ch in pending:
            for l in ch: A(l)

    def qa_dma(self, k):
        b, r = divmod(k, 6); half, j = divmod(r, 3)
        off = b*6144 + half*3072
        return (f"s_add_u32 m0, s{sGM0}, {off}", f"s_add_u32 s{sQO}, s{sROWA}, {off}",
                f"buffer_load_dwordx4 v{vDV+j}, s[{sG}:{sG+3}], s{sQO} offen offset:{1024*j} lds")

    def qproc(self, b, areg, t):
        reads = [f"  ds_read_b128 {vq(POOL+16+4*(s%4) if False else POOL+4*s)}, v{areg+(s&1)} offset:{(b&1)*6144 + (s>>1)*128}" for s in range(6)]
        fr = []
        for s in range(6):
            L = [f"  s_waitcnt lgkmcnt({5-s})"]
            op = Qop(b, s); base = int(op[2:op.index(':')])
            for r in range(4):
                src = POOL + 4*s + r
                L += [f"  v_lshlrev_b32 v{t+2*r}, 16, v{src}", f"  v_and_b32 v{t+1+2*r}, s{sHI}, v{src}"]
            for r in range(4):
                L += [f"  v_pk_mul_f32 v[{t+2*r}:{t+1+2*r}], v[{t+2*r}:{t+1+2*r}], v[26:27]"]
            for r in range(4):
                L.append(f"  v_cvt_pk_bf16_f32 v{base+r if op[0] == 'v' else t+8+r}, v{t+2*r}, v{t+1+2*r}")
            if op[0] == 'a':
                for r in range(4): L.append(f"  v_accvgpr_write_b32 a{base+r}, v{t+8+r}")
            fr.append(L)
        return reads, fr

    def qproc_inplace(self, b):
        A = self.A
        ar = Sreg(0, 0); t = Sreg(1, 0)
        A(f"  v_mov_b32 v22, s{sC}\n  v_mov_b32 v23, s{sC}")
        for rnd in range(2):
            ss = [0, 1, 2, 3] if rnd == 0 else [4, 5]
            for k, s in enumerate(ss):
                A(f"  ds_read_b128 {vq(POOL+16+4*k)}, v{ar+(s&1)} offset:{(b&1)*6144 + (s>>1)*128}")
            for k, s in enumerate(ss):
                A(f"  s_waitcnt lgkmcnt({len(ss)-1-k})")
                op = Qop(b, s); base = int(op[2:op.index(':')])
                for r in range(4):
                    src = POOL + 16 + 4*k + r
                    A(f"  v_lshlrev_b32 v{t+2*r}, 16, v{src}\n  v_and_b32 v{t+1+2*r}, s{sHI}, v{src}")
                for r in range(4):
                    A(f"  v_pk_mul_f32 v[{t+2*r}:{t+1+2*r}], v[{t+2*r}:{t+1+2*r}], v[22:23]")
                for r in range(4):
                    A(f"  v_cvt_pk_bf16_f32 v{base+r if op[0] == 'v' else ar+2+r}, v{t+2*r}, v{t+1+2*r}")
                if op[0] == 'a':
                    for r in range(4): A(f"  v_accvgpr_write_b32 a{base+r}, v{ar+2+r}")

    def step0(self):
        A = self.A
        A(f"  s_mov_b32 s{sT}, 0")
        A("  s_waitcnt vmcnt(6)\n  s_barrier")
        A(f"  s_mov_b32 s{sR1}, 32\n  s_cmp_ge_u32 s{sR1}, s{sDB}\n  s_cbranch_scc0 S0_NM\n  s_call_b64 s[{sRET}:{sRET+1}], MASK_p2\nS0_NM:")
        A(f"  s_mov_b32 s{sR0}, 32\n  s_mov_b32 s{sR1}, 33\n  s_mov_b32 s{sR2}, 34\n  s_mov_b32 s{sR3}, 35\n  v_readlane_b32 s{sR4}, v{vSEQ}, 4")
        def tile(srdn, m0r, slot, tl):
            out = []
            for j in range(3):
                out.append([f"  s_add_u32 m0, s{m0r}, {slot*TILE}", (f"  s_add_u32 s3, s{sWP}, {tl*TILE}" if tl is not None else f"  s_nop 0"),
                            f"  buffer_load_dwordx4 v{vDV+j}, s[{srdn}:{srdn+3}], s3 offen offset:{1024*j} lds"])
            return out
        dm = tile(sV, sVM0, 1, 33) + tile(sK, sKM0, 2, 34) + tile(sK, sKM0, 3, 35)
        for k in range(2):
            for s in range(6):
                A(f"  ds_read_b128 {vq(POOL+4*s)}, v{vKA+(s&1)} offset:{k*6144 + (s>>1)*128}")
            for s in range(6):
                A(f"  s_waitcnt lgkmcnt({5-s})")
                for b in (2, 3):
                    c = self.cinit("p2", k, b) if s == 0 else vq(Sreg(k, b))
                    A(f"  v_mfma_f32_16x16x32_bf16 {vq(Sreg(k,b))}, {vq(POOL+4*s)}, {Qop(b,s)}, {c}")
                if dm and (s < 5):
                    for l in dm.pop(0): A(l)
        for d in dm:
            for l in d: A(l)
        A("  s_waitcnt vmcnt(9)\n  s_barrier")
        dm = tile(sV, sVM0, 2, 34)
        A(f"  s_mul_i32 s4, s{sR4}, {TILE}\n  s_add_u32 s4, s4, s{sWP}")
        for j in range(3):
            dm.append([f"  s_add_u32 m0, s{sKM0}, 0", "  s_nop 0", f"  buffer_load_dwordx4 v{vDV+j}, s[{sK}:{sK+3}], s4 offen offset:{1024*j} lds"])
        for k in range(6): dm.append(["  " + x for x in self.qa_dma(k)])
        for f in range(4): A("  " + self.kread(f, 1))
        L = []
        for b in (2, 3):
            self.rowmax(L, b, TMP+4, TMP+6)
            for k in range(2):
                for r in range(4): L.append(f"  v_sub_f32 v{Sreg(k,b)+r}, v{Sreg(k,b)+r}, v{TMP+4}")
            L.append(f"  v_sub_f32 v{MNEG+b}, 0, v{TMP+4}")
            for r in range(4): L.append(f"  v_sub_f32 v{NEGM+4*b+r}, 0, v{TMP+4}")
            for r in range(4): L.append(f"  v_sub_f32 v{NEGM1+4*(b-2)+r}, 0, v{TMP+4}")
            self.expcvt(L, b, 0)
        flat = [x for l in L for x in l.split("\n")]
        per = max(1, len(flat) // (len(dm) + 1))
        A("  s_nop 3")
        for k, l in enumerate(flat):
            A(l)
            if k % per == per - 1 and dm and not ("s_nop" in l or "v_mov_b32" in l or "permlane" in l or "v_exp" in l):
                for x in dm.pop(0): A(x)
        for d in dm:
            for x in d: A(x)
        A("  s_nop 1")
        for b in (2, 3):
            A(f"  v_mfma_f32_16x16x32_bf16 {vq(L0+4*b)}, {vq(ONES)}, {vq(Preg(0,b))}, {vq(L0+4*b)}")
        A(f"  s_mov_b32 s{sT}, 1")
        A(f"  s_cmp_ge_u32 s{sR1}, s{sDB}\n  s_cbranch_scc0 S1_NM\n  s_call_b64 s[{sRET}:{sRET+1}], MASK_p2\nS1_NM:")

    def gather_srd(self, ptr):
        A = self.A
        A(f"  s_mov_b32 s{sG}, s{ptr}\n  s_and_b32 s{sG+1}, s{ptr+1}, 0xffff\n  s_or_b32 s{sG+1}, s{sG+1}, 0x01800000\n  s_mov_b32 s{sG+2}, 2048\n  s_mov_b32 s{sG+3}, 0x20000")

    def prime(self, gt):
        A = self.A
        for gi in range(2):
            if gt == "K": Ti, qoff, newidx = gi, 0, gi == 0
            else: Ti, qoff, newidx = 0, gi*128, True
            so = ["0", f"s{sT1}", f"s{sT2}"][Ti]
            if newidx:
                for p in range(4): A(f"  ds_read_b32 v{PAIR+2*p}, v{vIA} offset:{qoff + 32*p}")
                A("  s_waitcnt lgkmcnt(0)")
            for p in range(4):
                A(f"  s_add_u32 m0, s{sGM0}, {gi*4096 + p*1024}\n  s_nop 0")
                A(f"  buffer_load_dwordx4 v[{PAIR+2*p}:{PAIR+2*p+1}], s[{sG}:{sG+3}], {so} idxen offen lds")

    def softmax8(self):
        A = self.A
        a, b, t0, t1 = GX, GX+1, TMP, TMP+1
        ctr = ["quad_perm:[1,0,3,2]", "quad_perm:[2,3,0,1]", "row_half_mirror"]
        A(f"  v_mov_b32 v{t0}, v{a}\n  v_mov_b32 v{t1}, v{b}\n  s_nop 0")
        for c in ctr:
            A(f"  v_max_f32_dpp v{t0}, v{t0}, v{t0} {c} row_mask:0xf bank_mask:0xf\n  v_max_f32_dpp v{t1}, v{t1}, v{t1} {c} row_mask:0xf bank_mask:0xf\n  s_nop 0")
        A(f"  v_sub_f32 v{a}, v{a}, v{t0}\n  v_sub_f32 v{b}, v{b}, v{t1}\n  v_exp_f32 v{a}, v{a}\n  v_exp_f32 v{b}, v{b}\n  s_nop 0")
        A(f"  v_mov_b32 v{t0}, v{a}\n  v_mov_b32 v{t1}, v{b}\n  s_nop 0")
        for c in ctr:
            A(f"  v_add_f32_dpp v{t0}, v{t0}, v{t0} {c} row_mask:0xf bank_mask:0xf\n  v_add_f32_dpp v{t1}, v{t1}, v{t1} {c} row_mask:0xf bank_mask:0xf\n  s_nop 0")
        A(f"  v_rcp_f32 v{t0}, v{t0}\n  v_rcp_f32 v{t1}, v{t1}\n  s_nop 0\n  v_mul_f32 v{t0}, s{sGG}, v{t0}\n  v_mul_f32 v{t1}, s{sGG}, v{t1}")
        A(f"  v_mul_f32 v{a}, v{a}, v{t0}\n  v_mul_f32 v{b}, v{b}, v{t1}\n  v_cvt_pk_bf16_f32 v{a}, v{a}, v{b}")
        A(f"  v_lshrrev_b32 v{t0}, 4, v{vLIN}          ; lane")
        A(f"  v_lshrrev_b32 v{t1}, 4, v{t0}\n  v_lshlrev_b32 v{t1}, 6, v{t1}           ; G*64")
        A(f"  v_bfe_u32 v{TMP+2}, v{t0}, 3, 1\n  v_lshl_add_u32 v{t1}, v{TMP+2}, 4, v{t1}\n  v_and_b32 v{t0}, 7, v{t0}\n  v_lshl_add_u32 v{t1}, v{t0}, 1, v{t1}")
        A(f"  s_lshl_b32 s3, s{sWAVE}, 10\n  s_lshr_b32 s4, s{sB}, 1\n  s_lshl_b32 s4, s4, 8\n  s_add_u32 s3, s3, s4\n  s_add_u32 s3, s3, {PA}\n  v_add_u32 v{t1}, s3, v{t1}")
        A(f"  ds_write_b16 v{t1}, v{a}\n  ds_write_b16_d16_hi v{t1}, v{a} offset:32")

    def vphase_setup(self):
        A = self.A
        t = TMP
        A(f"  v_lshrrev_b32 v{t}, 4, v{vLIN}          ; lane")
        A(f"  v_lshrrev_b32 v{t+1}, 4, v{t}           ; G\n  v_bfe_u32 v{t+2}, v{t}, 2, 2          ; r")
        A(f"  v_lshlrev_b32 v{vVG}, 10, v{t+1}\n  v_lshl_add_u32 v{vVG}, v{t+2}, 7, v{vVG}")
        A(f"  v_and_b32 v{t+2}, 2, v{t+2}\n  v_bfe_u32 v{t+3}, v{t}, 1, 1\n  v_xor_b32 v{t+2}, v{t+2}, v{t+3}\n  v_and_b32 v{t+3}, 1, v{t+1}\n  v_lshlrev_b32 v{t+3}, 2, v{t+3}\n  v_xor_b32 v{t+2}, v{t+2}, v{t+3}")
        A(f"  v_lshl_add_u32 v{vVG}, v{t+2}, 4, v{vVG}\n  v_and_b32 v{t+2}, 1, v{t}\n  v_lshl_add_u32 v{vVG}, v{t+2}, 3, v{vVG}\n  v_add_u32 v{vVG}, s{sGM0}, v{vVG}")
        for x in range(1, 4): A(f"  v_xor_b32 v{vVG+x}, {32*x}, v{vVG}")
        A(f"  v_and_b32 v{t+2}, 15, v{t}\n  v_sub_u32 v{t+3}, v{t+2}, v{t+1}\n  s_lshl_b32 s3, s{sWAVE}, 10\n  s_add_u32 s3, s3, {PA}")
        A(f"  v_lshlrev_b32 v{t+4}, 4, v{t+2}\n  v_add_u32 v{t+4}, s3, v{t+4}\n  v_mov_b32 v{t+5}, {ZA}")
        for c in range(4):
            A(f"  v_cmp_eq_u32 vcc, {4*c}, v{t+3}\n  s_nop 1\n  v_cndmask_b32 v{vPB+c}, v{t+5}, v{t+4}, vcc")
        A(f"  s_call_b64 s[{sRET}:{sRET+1}], VSET_0")

    def vphase_early(self):
        A = self.A
        t = TMP
        A(f"  v_lshrrev_b32 v{t}, 7, v{vLIN}\n  v_lshlrev_b32 v{t}, 2, v{t}\n  s_lshl_b32 s3, s{sWAVE}, 11\n  s_add_u32 s3, s3, {IDX}\n  v_add_u32 v{vIA}, s3, v{t}")
        self.gather_srd(sMVS)
        self.prime("V")

    def drain(self, betas, par, slot):
        A = self.A
        seq = []
        for d in range(12):
            r = POOL + 16 + (d % 4)*4
            if d >= 4:
                for b in betas:
                    seq.append(("M", f"v_mfma_f32_16x16x32_bf16 {aq(Oreg(b,d-4))}, {vq(r)}, {vq(Preg(par,b))}, {aq(Oreg(b,d-4))}", None))
            seq.append(("T", f"ds_read_b64_tr_b16 v[{r}:{r+1}], v{vVA+(d&3)} offset:{slot*TILE + (d>>2)*128}", None))
            seq.append(("T", f"ds_read_b64_tr_b16 v[{r+2}:{r+3}], v{vVA+(d&3)} offset:{slot*TILE + 6144 + (d>>2)*128}", None))
        for d in range(8, 12):
            r = POOL + 16 + (d % 4)*4
            for b in betas:
                seq.append(("M", f"v_mfma_f32_16x16x32_bf16 {aq(Oreg(b,d))}, {vq(r)}, {vq(Preg(par,b))}, {aq(Oreg(b,d))}", None))
        lines, _ = finalize(seq)
        for l in lines: A(l)

    def epilogue(self, betas, rowreg, T0):
        A = self.A
        OMR = [QV + 4*k for k in range(8)] + [Preg(0, 0), Preg(0, 1), Preg(1, 0), Preg(1, 1)]
        X = Sreg(0, 0); ST = Sreg(1, 0); WA = TMP; RA = TMP + 4
        A(f"  s_add_u32 s3, s{rowreg}, 4096\n  s_add_u32 s4, s{rowreg}, 8192")
        for qd in range(12):
            sreg, off = (f"s{rowreg}", qd*1024) if qd < 4 else (("s3", (qd-4)*1024) if qd < 8 else ("s4", (qd-8)*1024))
            A(f"  buffer_load_dwordx4 {vq(OMR[qd])}, v{vLIN}, s[{sW}:{sW+3}], {sreg} offen offset:{off}")
        A(f"  v_lshrrev_b32 v{X}, 4, v{vLIN}\n  v_and_b32 v{X+1}, 15, v{X}\n  v_lshrrev_b32 v{X+2}, 4, v{X}")
        A(f"  v_lshrrev_b32 v{X+3}, 1, v{X+2}\n  v_and_b32 v{X+4}, 7, v{X+1}\n  v_xor_b32 v{X+3}, v{X+3}, v{X+4}\n  v_lshlrev_b32 v{X+3}, 4, v{X+3}")
        A(f"  v_lshl_add_u32 v{WA}, v{X+1}, 7, v{X+3}\n  v_and_b32 v{X+3}, 1, v{X+2}\n  v_lshl_add_u32 v{WA}, v{X+3}, 3, v{WA}\n  s_add_u32 s5, s{sGM0}, 8192\n  v_add_u32 v{WA}, s5, v{WA}")
        for x in range(1, 4): A(f"  v_xor_b32 v{WA+x}, {32*x}, v{WA}")
        A(f"  v_lshrrev_b32 v{X+3}, 3, v{X}\n  v_and_b32 v{X+4}, 7, v{X}\n  v_xor_b32 v{X+5}, v{X+4}, v{X+3}\n  v_lshlrev_b32 v{X+5}, 4, v{X+5}\n  v_lshl_add_u32 v{RA}, v{X+3}, 7, v{X+5}\n  v_add_u32 v{RA}, s5, v{RA}")
        A(f"  v_mul_u32_u24 v{RA+1}, 384, v{X+3}\n  v_lshl_add_u32 v{RA+1}, v{X+4}, 4, v{RA+1}")
        for bi, b in enumerate(betas):
            A(f"  v_rcp_f32 v{RA+2+bi}, v{L0+4*b}")
        A("  s_nop 0")
        for bi, b in enumerate(betas):
            A(f"  v_mul_f32 v{RA+2+bi}, s{sG1}, v{RA+2+bi}")
        units = [(bi, T) for bi in range(2) for T in range(3)]
        nst = 0
        def flush(u):
            bi, T = units[u]; buf = (u & 1)*2048
            A(f"  ds_read_b128 {vq(ST)}, v{RA} offset:{buf}\n  ds_read_b128 {vq(ST+4)}, v{RA} offset:{buf+1024}")
            A(f"  s_add_u32 s6, s{rowreg}, {bi*6144 + T*128}\n  s_add_u32 s7, s6, 3072")
        def store(u):
            fl = self.P.get('ostf', '')
            if "noos" in self.ab:
                A("  s_waitcnt lgkmcnt(0)"); return
            A(f"  buffer_store_dwordx4 {vq(ST)}, v{RA+1}, s[{sO}:{sO+3}], s6 offen {fl}")
            A(f"  buffer_store_dwordx4 {vq(ST+4)}, v{RA+1}, s[{sO}:{sO+3}], s7 offen {fl}")
        for u, (bi, T) in enumerate(units):
            b = betas[bi]; f = RA + 2 + bi; buf = (u & 1)*2048
            A(f"  s_waitcnt vmcnt({(10 - 2*u) + (0 if 'noos' in self.ab else max(0, 2*(u-1)))})")
            for x in range(4):
                d = 4*T + x
                for h in range(2):
                    j = 2*d + h
                    om = OMR[6*bi + j // 4] + j % 4; a = Oreg(b, d) + 2*h
                    A(f"  v_accvgpr_read_b32 v{X}, a{a}\n  v_accvgpr_read_b32 v{X+1}, a{a+1}\n  v_lshlrev_b32 v{X+2}, 16, v{om}\n  v_and_b32 v{X+3}, s{sHI}, v{om}")
                    A(f"  v_fma_f32 v{X}, v{X}, v{f}, v{X+2}\n  v_fma_f32 v{X+1}, v{X+1}, v{f}, v{X+3}\n  v_cvt_pk_bf16_f32 v{X+4+2*(x&1)+h}, v{X}, v{X+1}")
                A(f"  ds_write_b64 v{WA+x}, v[{X+4+2*(x&1)}:{X+5+2*(x&1)}] offset:{buf}")
                if x == 1 and u >= 1:
                    A("  s_waitcnt lgkmcnt(2)")
                    flush(u - 1)
                if x == 3 and u >= 1:
                    A("  s_waitcnt lgkmcnt(2)")
                    store(u - 1)
        A("  s_waitcnt lgkmcnt(0)")
        flush(5)
        A("  s_waitcnt lgkmcnt(0)")
        store(5)

    def build(self):
        A = self.A
        self.routines()
        names = []
        na = self.body("p2", None, 0); nb = self.body("p2", None, 1)
        for kind in ("p1", "p2"):
            for gt in ("K", "V"):
                for H in (0, 1): names.append(self.body(kind, gt, H))
        tr = {nm: vm_trace(self.bodies[nm]["seq"]) for nm in self.bodies}
        op = lambda t, k: [("op", t)]*k
        prime_tr = op(("G", 6), 4) + op(("G", 7), 4)
        pre = op(("R", "pre0"), 6) + op(("R", "pre1"), 9) + op(("Q", "q"), 6)
        preds = {
            na: [pre], nb: [tr[na] + prime_tr],
            "P1K0": [tr["P1K1"], tr[na] + prime_tr + tr[nb]],
            "P1K1": [tr["P1K0"]],
            "P1V0": [tr["P1V1"]],
            "P1V1": [tr["P1V0"]],
            "P2K0": [tr["P2K1"], tr["P1K1"]],
            "P2K1": [tr["P2K0"]],
            "P2V0": [tr["P2V1"], tr["P1V1"]],
            "P2V1": [tr["P2V0"]],
        }
        self.prologue()
        self.stamp(1)
        self.step0()
        self.stamp(2)
        for l in self.emit_body(na, preds[na]): A(l)
        self.stamp(52)
        ops = [t for k, t in tr[na] if k == "op"]
        lastq = max(i for i, t in enumerate(ops) if t and t[0] == "Q")
        A(f"  s_waitcnt vmcnt({len(ops) - 1 - lastq}) lgkmcnt(0)\n  v_add_u32 v{Sreg(0,0)}, s{sGM0}, v{vKA}\n  v_xor_b32 v{Sreg(0,0)+1}, 64, v{Sreg(0,0)}")
        self.stamp(53)
        for b in (0, 1):
            self.qproc_inplace(b)
        self.gather_srd(sMK)
        A(f"  s_mov_b32 s{sMVS}, s{sMV}\n  s_and_b32 s{sMVS+1}, s{sMV+1}, 0xffff\n  s_mov_b32 s{sMVS+2}, {HEAD}\n  s_mov_b32 s{sMVS+3}, 0x20000")
        A(f"  s_mul_i32 s{sTOF2}, s{sI}, 98304\n  s_lshl_b32 s5, s{sWAVE}, 13\n  s_add_u32 s{sTOF2}, s{sTOF2}, s5\n  s_mov_b32 s{sTOFF}, 0")
        self.prime("K")
        A(f"  s_call_b64 s[{sRET}:{sRET+1}], CPQ_0")
        self.stamp(49)
        for l in self.emit_body(nb, preds[nb]): A(l)
        A(f"  s_call_b64 s[{sRET}:{sRET+1}], MASK_p1")
        A(f"  s_mov_b32 s{sB}, 0\n  s_mov_b32 s{sPH}, 1")
        self.stamp(3)
        A("  s_branch P1K0")
        for nm in names:
            B = self.bodies[nm]
            A(f".p2align 6\n{nm}:")
            self.stamp_dyn(16)
            for l in self.emit_body(nm, preds[nm]): A(l)
            self.stamp_dyn(32)
            kind, gt, H = B["kind"], B["gt"], B["H"]
            K = kind.upper()
            if gt == "K" and self.P.get("mvt", 1):
                A(f"  s_add_u32 s3, s{sB}, s{sI}\n  s_and_b32 s3, s3, {self.P.get('mvt_mask', 1)}\n  s_cmp_lg_u32 s3, 0\n  s_cbranch_scc1 {nm}_NT")
                A(f"  s_cmp_lt_u32 s{sB}, {self.P.get('mvt_first', 1)}\n  s_cbranch_scc1 {nm}_NT")
                A(f"  s_mov_b32 m0, {DUMMY}\n  s_nop 0\n  buffer_load_dword v{vTCH}, s[{sMVS}:{sMVS+3}], s{sTOF2} offen lds\n  s_add_u32 s{sTOF2}, s{sTOF2}, 32768\n  s_add_u32 s{sTOFF}, s{sTOFF}, 1\n  s_cmp_eq_u32 s{sTOFF}, 3\n  s_cselect_b32 s{sTOF2}, 0x40000000, s{sTOF2}")
                A(f"{nm}_NT:")
            if H == 0:
                A(f"  s_add_u32 s{sB}, s{sB}, 1\n  s_branch {K}{gt}1")
                continue
            if gt == "K":
                A(f"  s_cmp_eq_u32 s{sB}, 7\n  s_cbranch_scc0 {nm}_NVE\n  s_call_b64 s[{sRET2}:{sRET2+1}], VEARLY\n{nm}_NVE:")
                for gm in range(4):
                    A(f"  s_cmp_eq_u32 s{sB}, {2*gm+1}\n  s_cbranch_scc0 {nm}_NK{gm}\n  s_call_b64 s[{sRET}:{sRET+1}], KEND_{gm}\n{nm}_NK{gm}:")
            else:
                for m in range(1, 4):
                    A(f"  s_cmp_eq_u32 s{sB}, {7 + 2*m}\n  s_cbranch_scc0 {nm}_NV{m}\n  s_call_b64 s[{sRET}:{sRET+1}], VSET_{m}\n{nm}_NV{m}:")
            if kind == "p1":
                A(f"  s_cmp_eq_u32 s{sB}, s{sB1LAST}\n  s_cbranch_scc0 {nm}_NP")
                self.stamp(4)
                self.drain([0, 1], 1, 3)
                A(f"  s_call_b64 s[{sRET}:{sRET+1}], MASK_p2\n  s_mov_b32 s{sPH}, 2")
                A(f"{nm}_NP:")
            if gt == "V":
                A(f"  s_cmp_eq_u32 s{sB}, s{sEPA}\n  s_cbranch_scc0 {nm}_NE\n  s_nop 7")
                self.stamp(5)
                self.epilogue([0, 1], sROWA, QV)
                self.stamp(6)
                A(f"{nm}_NE:")
                A(f"  s_cmp_eq_u32 s{sB}, 15\n  s_cbranch_scc1 FINISH")
                A(f"  s_add_u32 s{sB}, s{sB}, 1")
                if kind == "p1": A(f"  s_cmp_eq_u32 s{sPH}, 2\n  s_cbranch_scc1 P2V0")
                A(f"  s_branch {K}V0")
            else:
                A(f"  s_add_u32 s{sB}, s{sB}, 1\n  s_cmp_eq_u32 s{sB}, 8\n  s_cbranch_scc1 SWITCH")
                if kind == "p1": A(f"  s_cmp_eq_u32 s{sPH}, 2\n  s_cbranch_scc1 P2K0")
                A(f"  s_branch {K}K0")
        A("SWITCH:")
        self.stamp(7)
        self.vphase_setup()
        A("  s_waitcnt vmcnt(0) lgkmcnt(0)")
        A(f"  s_cmp_eq_u32 s{sPH}, 2\n  s_cbranch_scc1 P2V0\n  s_branch P1V0")
        A("VEARLY:")
        self.vphase_early()
        A(f"  s_setpc_b64 s[{sRET2}:{sRET2+1}]")
        A("FINISH:")
        self.stamp(8)
        self.drain([2, 3], 1, 3)
        A("  s_nop 7")
        self.stamp(9)
        self.epilogue([2, 3], sROWB, QV)
        if self.instr:
            A("  s_waitcnt vmcnt(0)")
            self.stamp(10)
            A("  s_memrealtime s[98:99]\n  s_load_dwordx2 s[4:5], s[0:1], 72\n  s_waitcnt lgkmcnt(0)")
            A(f"  s_lshl_b32 s100, s{sWAVE}, 8\n  s_add_u32 s100, s100, {STAMPA}\n  v_mov_b32 v2, s100\n  v_mov_b32 v3, s98\n  ds_write_b32 v2, v3 offset:48\n  s_getreg_b32 s3, hwreg(HW_REG_XCC_ID)\n  v_mov_b32 v3, s3\n  ds_write_b32 v2, v3 offset:52")
            A(f"  v_lshrrev_b32 v4, 2, v{vLIN}\n  v_add_u32 v5, s100, v4\n  s_waitcnt lgkmcnt(0)\n  ds_read_b32 v6, v5\n  s_waitcnt lgkmcnt(0)")
            A("  s_add_u32 s4, s4, 0x8000000\n  s_addc_u32 s5, s5, 0")
            A(f"  s_lshl_b32 s3, s2, 2\n  s_add_u32 s3, s3, s{sWAVE}\n  s_lshl_b32 s3, s3, 8\n  v_add_u32 v2, s3, v4")
            A("  global_store_dword v2, v6, s[4:5]")
        A("AT_END:\n  s_endpgm")
        for blk in self.ool:
            for l in blk: A(l)
        import tileorder
        pm = self.P.get("perm", 2)
        if pm == 0: order = {i: [32, 33, 34, 35] + list(range(4*i + 4)) + [x for x in range(4*i + 4, 64 - 4*i) if not 32 <= x < 36] for i in range(8)}
        else: order, _ = tileorder.solve3(margin=self.P.get("margin", 2.0), quota=tuple(self.P.get("quota", (12, 10, 6))), pick=self.P.get("pick", "new"))
        A(".p2align 6\n.type TILETAB,@object\nTILETAB:")
        for i in range(8):
            row = order[i] + [255]*(64 - len(order[i]))
            A("  .byte " + ", ".join(str(x) for x in row))
        A(".size TILETAB, 512")
        return A

def desc(name, vgpr, accum, sgpr=102):
    return f""".section .rodata,"a"
.p2align 6
.amdhsa_kernel {name}
  .amdhsa_next_free_vgpr {vgpr}
  .amdhsa_next_free_sgpr {sgpr}
  .amdhsa_accum_offset {accum}
  .amdhsa_group_segment_fixed_size 0
  .amdhsa_kernarg_size 80
  .amdhsa_user_sgpr_count 2
  .amdhsa_user_sgpr_kernarg_segment_ptr 1
  .amdhsa_system_sgpr_workgroup_id_x 1
.end_amdhsa_kernel
"""
HDR = """; Memory-augmented causal attention (Memorizing Transformer block), hand-scheduled for gfx950.
; 16x16x32 bf16 MFMA, kNN memory attention (LDS-DMA row gather) interleaved in the same instruction stream.
; @launch grid=(256,1,1) block=(256,1,1) lds=163840
.amdgcn_target "amdgcn-amd-amdhsa--gfx950"
.text
"""
if __name__ == "__main__":
    instr = "instr" in sys.argv
    params = {"touch": 0}; tag = ""; ab = ""
    for a in sys.argv[1:]:
        if a.startswith("P="): params.update(json.loads(a[2:]))
        if a.startswith("tag="): tag = a[4:]
        if a.startswith("ab="): ab = a[3:]
    g = Gen(instr, params, ab)
    A = g.build()
    full = HDR + A.text() + desc(KNAME, 512, 256)
    fn = f"fused{'_i' if instr else ''}{tag}.s"
    open(fn, "w").write(full)
    print(fn, "bytes", len(full))
```

```python
import sys, json
from asmlib import Asm, fix_hazards
from sched3 import Item, optimize, emit, vm_trace, finalize

HEAD = 786432
LOG2E = 1.4426950408889634
CSCALE = (192 ** -0.5) * LOG2E
def f2u(x):
    import struct
    return struct.unpack("<I", struct.pack("<f", x))[0]
KNAME = "standalone__memory_aug_memorizing_tr__prompt_kernel"

TILE = 12288
KR = 0
VR = 49152
GR = 98304
IDX = 147456
PA = 155648
ZA = 159744
LDS_BYTES = 163840
STAMPA = 161024
DUMMY = 160768
QAREA = [73728, 86016, 24576, 36864]

vDUM = 0; vIA = 1; vKA = 2; vVA = 4; vDV = 8; vX = 11; vNINF = 12; vLIN = 13; vT0 = 14; vTCH = 15
S0 = 16; P0 = 48; NEGM = 80; L0 = 96; ONES = 112; MNEG = 116; QV = 120; POOL = 152; TMP = 184; NEGM1 = 192
PAIR = 200
GF = 208
GQ = 216
GD = 240
GX = 248
vKG = 250
vPW = 252
ACC = 216
GB = 232
vVG = 240
vPB = 244
OUTT = 248
vSTAMP = 0

def vq(r): return f"v[{r}:{r+3}]"
def aq(r): return f"a[{r}:{r+3}]"
def Sreg(k, b): return S0 + k*16 + b*4
def Preg(par, b): return P0 + par*16 + b*4
def Oreg(b, d): return (b*12 + d)*4
def Qop(b, s):
    if b >= 2: return aq(192 + ((b-2)*6 + s)*4)
    if b == 0 and s < 4: return aq(240 + s*4)
    k = (s - 4) if b == 0 else (2 + s)
    return vq(QV + k*4)
def pool(z): return POOL + (z % 8)*4

sK, sV, sG, sO, sW = 8, 12, 16, 20, 24
sWAVE, sI, sH, sN = 28, 29, 30, 31
sT, sB, sKOFF, sSPEC = 32, 33, 34, 35
sDA, sDB, sB1LAST, sEPA = 36, 37, 38, 39
sD, sTMP = 40, 41
sMASK = 42
sTHR = 50; sKM0 = 51; sVM0 = 52; sGM0 = 53; sC = 54; sHI = 55; sG1 = 56; sGG = 57
sROWA, sROWB = 58, 59
sT1, sT2 = 60, 61
sOM0, sOM1 = 62, 63
sCMP = 64
sFLAG = 66
sMK = 68
sMV = 70
sRET = 72
sRET2 = 4
sTS = 76
sSEL = 80
sVT = 80; sVI = 83; sVP = 86; sVO = 90
sTOFF = 96
sTOF2 = 97
sMVS = 68
sEPR = 94
sST = 98
sR0, sR1, sR2, sR3, sR4 = 76, 77, 78, 79, 74
sWP = 75
sQO = 35
sPH = 34
vSEQ = 0

class Gen:
    def __init__(self, instr=False, params=None, ablate=""):
        self.A = Asm(); self.ool = []; self.instr = instr; self.P = params or {}; self.ab = ablate
        self.bodies = {}
    def stamp(self, k):
        if not self.instr: return
        self.A(f"  s_memtime s[{sST}:{sST+1}]\n  s_lshl_b32 s100, s{sWAVE}, 8\n  s_add_u32 s100, s100, {STAMPA + 4*k}\n  s_waitcnt lgkmcnt(0)\n  v_mov_b32 v{TMP+6}, s{sST}\n  v_mov_b32 v{TMP+7}, s100\n  ds_write_b32 v{TMP+7}, v{TMP+6}")
    def stamp_dyn(self, base):
        if not self.instr: return
        self.A(f"  s_memtime s[{sST}:{sST+1}]\n  s_lshl_b32 s100, s{sWAVE}, 6\n  s_add_u32 s100, s100, s{sB}\n  s_lshl_b32 s100, s100, 2\n  s_add_u32 s100, s100, {STAMPA + 4*base}\n  s_waitcnt lgkmcnt(0)\n  v_mov_b32 v{TMP+6}, s{sST}\n  v_mov_b32 v{TMP+7}, s100\n  ds_write_b32 v{TMP+7}, v{TMP+6}")

    def kread(self, f, slot):
        k, s = divmod(f, 6)
        return f"ds_read_b128 {vq(pool(f))}, v{vKA+(s&1)} offset:{slot*TILE + k*6144 + (s>>1)*128}"
    def vread(self, d, rho, slot):
        r = pool(12 + d) + 2*rho
        return f"ds_read_b64_tr_b16 v[{r}:{r+1}], v{vVA+(d&3)} offset:{slot*TILE + rho*6144 + (d>>2)*128}"
    def cinit(self, kind, k, b):
        mb = (0, 1) if kind == "p1" else (2, 3)
        if k == 1 and b in mb: return vq(NEGM1 + 4*mb.index(b))
        return vq(NEGM + 4*b)

    def step_parts(self, kind, tm4):
        P = self.P.get(kind, {})
        par = tm4 & 1
        qb = [0, 1, 2, 3] if kind == "p1" else [2, 3]
        nq = len(qb); NQ = 12*nq
        mf = []
        for f in range(12):
            k, s = divmod(f, 6)
            for b in qb:
                c = self.cinit(kind, k, b) if s == 0 else vq(Sreg(k, b))
                mf.append(f"v_mfma_f32_16x16x32_bf16 {vq(Sreg(k,b))}, {vq(pool(f))}, {Qop(b,s)}, {c}")
        pv = []
        for d in range(12):
            for b in qb:
                pv.append(f"v_mfma_f32_16x16x32_bf16 {aq(Oreg(b,d))}, {vq(pool(12+d))}, {vq(Preg(par^1,b))}, {aq(Oreg(b,d))}")
        rs = [f"v_mfma_f32_16x16x32_bf16 {vq(L0+4*b)}, {vq(ONES)}, {vq(Preg(par,b))}, {vq(L0+4*b)}" for b in qb]
        RSD = P.get("RSD", 9 if nq == 4 else 9)
        rs_pos = NQ + RSD*nq
        mf = mf + pv[:RSD*nq] + rs + pv[RSD*nq:]
        return dict(kind=kind, tm4=tm4, par=par, qb=qb, nq=nq, NQ=NQ, mf=mf, RSD=RSD, rs_pos=rs_pos, n=len(mf), P=P)

    def step_streams(self, sp, base, F, name, last_in_body):
        kind, tm4, par, qb, nq, NQ, RSD, rs_pos, n, P = (sp[k] for k in ("kind","tm4","par","qb","nq","NQ","RSD","rs_pos","n","P"))
        nrs = len(qb)
        def G(a): return F(base + a)
        def pv(d): return NQ + d*nq + (nrs if d >= RSD else 0)
        LEAD = P.get("LEAD", 7)
        BG = P.get("BG", NQ - 2)
        KW = P.get("KW", 5)
        pair = P.get("pair", nq == 2)
        kslot = tm4; knext = (tm4 + 1) % 4; vslot = (tm4 + 3) % 4
        end = G(n - 1)
        ks = []
        for f in range(4, 12):
            use = f*nq
            if pair and f % 2 == 1: use = (f-1)*nq
            lo = G((f-8)*nq + nq - 1) if f >= 8 else G(0) - (1 if base > 0 else 0)
            lo = max(lo, G(0))
            hi = min(G(use) - LEAD, G(BG) - KW)
            ks.append(Item(self.kread(f, kslot), "D", lo, max(hi, lo)))
        vs = []
        for d in range(12):
            use = pv(d)
            if pair and d % 2 == 1: use = pv(d-1)
            prev = 4 + d
            free = (prev*nq + nq - 1) if prev < 12 else pv(prev - 12) + nq - 1
            lo = G(free); hi = max(G(use) - LEAD, lo)
            vs.append(Item(self.vread(d, 0, vslot), "T", lo, hi)); vs.append(Item(self.vread(d, 1, vslot), "T", lo, hi))
        kn = []
        for f in range(4):
            lo = max(G(pv(f + 4) + nq - 1), G(BG) + 1)
            hi = end if nq == 4 else min(end, end - LEAD + 2*(f - f % 2) + 2)
            kn.append(Item(self.kread(f, knext), "D", lo, max(lo, hi)))
        sm = []; ti = 0
        for k in range(2):
            pend = None
            for bi, b in enumerate(qb):
                ready = G((6*k + 5)*nq + bi) + 4
                hi = G(rs_pos) - 2
                for h in range(2):
                    s = Sreg(k, b) + 2*h
                    t0 = TMP + (ti % 4)*2; ti += 1
                    sm.append(Item(f"v_exp_f32 v{t0}, v{s}", "E", ready, hi))
                    if pend: sm.append(pend)
                    sm.append(Item(f"v_exp_f32 v{t0+1}, v{s+1}", "E", ready, hi))
                    pend = Item(f"v_cvt_pk_bf16_f32 v{Preg(par,b)+2*k+h}, v{t0}, v{t0+1}", "V", ready, hi)
            pend.sep = 1; sm.append(pend)
        ck = []
        cg = G(rs_pos + nrs - 1) + 4
        lr = [L0 + 4*b for b in qb]
        chi = max(cg + 1, end - 2)
        if nq == 4:
            ck.append(Item(f"v_max3_f32 v{vT0}, v{lr[0]}, v{lr[1]}, v{lr[2]}", "V", cg, chi))
            ck.append(Item(f"v_max_f32 v{vT0}, v{vT0}, v{lr[3]}", "V", cg, chi))
        else:
            ck.append(Item(f"v_max_f32 v{vT0}, v{lr[0]}, v{lr[1]}", "V", cg, chi))
        ck.append(Item(f"v_cmp_nge_f32 s[{sCMP}:{sCMP+1}], s{sTHR}, v{vT0}", "V", cg, chi))
        b0 = G(BG) - 1
        sKO, sVO_ = (62, 63) if par == 0 else (6, 7)
        sc = [Item(f"s_mov_b32 s{sR0}, s{sR1}", "S", G(0), b0), Item(f"s_mov_b32 s{sR1}, s{sR2}", "S", G(0), b0),
              Item(f"s_mov_b32 s{sR2}, s{sR3}", "S", G(0), b0), Item(f"s_mov_b32 s{sR3}, s{sR4}", "S", G(0), b0),
              Item(f"s_add_u32 s{sD}, s{sT}, 4", "S", G(0), b0),
              Item(f"v_readlane_b32 s{sR4}, v{vSEQ}, s{sD}", "V", G(0), b0 - 4, sep=1),
              Item(f"s_mul_i32 s{sVO_}, s{sR2}, {TILE}", "S", G(0), b0, sep=1), Item(f"s_add_u32 s{sVO_}, s{sVO_}, s{sWP}", "S", G(0), b0),
              Item(f"s_mul_i32 s{sKO}, s{sR4}, {TILE}", "S", G(0), b0, sep=2), Item(f"s_add_u32 s{sKO}, s{sKO}, s{sWP}", "S", G(0), b0),
              Item(f"s_add_u32 s{sT}, s{sT}, 1", "S", G(0), end - 2)]
        initA = (name == "P1K0s0")
        if kind == "p1":
            sc.append(Item([f"s_cmp_ge_u32 s{sR1}, s{sDA}", f"s_cselect_b64 s[{sFLAG}:{sFLAG+1}], -1, 0"], "S", G(0), end - 1))
            if initA: sc.append(Item([f"s_cmp_eq_u32 s{sT}, 5", f"s_cselect_b64 s[{sFLAG}:{sFLAG+1}], -1, s[{sFLAG}:{sFLAG+1}]"], "S", G(0), end - 1))
        else:
            sc.append(Item(f"s_max_u32 s{sD}, s{sR0}, s{sR1}", "S", G(0), end - 1))
            sc.append(Item([f"s_cmp_ge_u32 s{sD}, s{sDB}", f"s_cselect_b64 s[{sFLAG}:{sFLAG+1}], -1, 0"], "S", G(0), end - 1))
        R = []
        g0 = G(BG) + 1
        for j in range(3):
            R.append((f"s_add_u32 m0, s{sKM0}, {kslot*TILE}", f"buffer_load_dwordx4 v{vDV+j}, s[{sK}:{sK+3}], s{sKO} offen offset:{1024*j} lds", ("R", name)))
        vdst = (tm4 + 2) % 4
        for j in range(3):
            R.append((f"s_add_u32 m0, s{sVM0}, {vdst*TILE}", f"buffer_load_dwordx4 v{vDV+j}, s[{sV}:{sV+3}], s{sVO_} offen offset:{1024*j} lds", ("R", name)))
        fixed = {G(BG): [f"NEEDV R:{name}", "NEED " + " ".join(f"v{pool(11)+r}" for r in range(4)), "s_barrier"]}
        stub = f"{name}_SLOW"
        tail = [f"s_or_b64 vcc, s[{sCMP}:{sCMP+1}], s[{sFLAG}:{sFLAG+1}]", f"s_cbranch_vccnz {stub}", f"{stub}B:"]
        self.ool.append([f"{stub}:",
                         f"  s_cmp_eq_u64 s[{sCMP}:{sCMP+1}], 0", f"  s_cbranch_scc1 {stub}_M",
                         f"  s_call_b64 s[{sRET}:{sRET+1}], RARE_{kind}_{par}",
                         f"{stub}_M:"] +
                        ([f"  s_cmp_eq_u32 s{sT}, 5", f"  s_cbranch_scc0 {stub}_N", f"  s_call_b64 s[{sRET}:{sRET+1}], INIT_A", f"{stub}_N:"] if initA else []) +
                        [f"  s_call_b64 s[{sRET}:{sRET+1}], MASK_{kind}",
                         f"  s_branch {stub}B"])
        waits = []
        for f in range(12):
            if not (pair and f % 2 == 1) and (base + f*nq) > 0: waits.append(G(f*nq) - 1)
        for d in range(12):
            if not (pair and d % 2 == 1): waits.append(G(pv(d)) - 1)
        extra = {}
        if pair:
            for f in range(0, 12, 2): extra[G(f*nq)] = [f"v{pool(f+1)+r}" for r in range(4)]
            for d in range(0, 12, 2): extra[G(pv(d))] = [f"v{pool(12+d+1)+r}" for r in range(4)]
        return dict(streams=[ks, vs, kn, sm, ck, sc], R=R, Rwin=(g0, end), fixed=fixed, tail=(end, tail), waits=waits, extra=extra, BG=G(BG))

    def body(self, kind, gt, H):
        name = f"{kind.upper()}{gt or 'N'}{H}"
        tms = ([0, 1] if H == 0 else [2, 3]) if kind == "p1" else [0, 1, 2, 3]
        if gt is None: tms = [1, 2] if H == 0 else [3]
        sps = [self.step_parts(kind, t) for t in tms]
        att = []; bases = []
        for sp in sps: bases.append(len(att)); att += sp["mf"]
        nA = len(att)
        PG = self.P.get("g", {})
        gm = []
        if gt:
            for j in range(24):
                g, x = divmod(j, 4)
                if gt == "K":
                    cp, T = divmod(g, 3); cc, sg = divmod(x, 2)
                    c = "0" if (T == 0 and sg == 0) else vq(GD + 4*cc)
                    gm.append(f"v_mfma_f32_16x16x32_bf16 {vq(GD+4*cc)}, {vq(GQ+4*(2*T+sg))}, {vq(GF+4*(j&1))}, {c}")
                else:
                    gg = 6*H + g; jb, cp = divmod(gg, 4)
                    c = "0" if cp == 0 else vq(ACC + 4*x)
                    gm.append(f"v_mfma_f32_16x16x32_bf16 {vq(ACC+4*x)}, {vq(GF+4*(j&1))}, {vq(GB+4*(g&1))}, {c}")
            a0 = PG.get("a0", 14); a1 = nA - PG.get("aend", 14)
            ins = [a0 + int(round(j*(a1 - a0)/23.0)) for j in range(24)]
            pos = PG.get("pos_" + kind)
            if pos:
                per = 24 // len(sps); nst = nA // len(sps)
                ins = [si*nst + pos[k] for si in range(len(sps)) for k in range(per)]
                ins = sorted(min(max(x, a0), a1) for x in ins)
                for k in range(1, 24):
                    if ins[k] <= ins[k-1]: ins[k] = ins[k-1] + 1
        else:
            ins = []
        mf = []; Fmap = {}; gpos = []
        jj = 0
        for a in range(nA):
            while jj < len(ins) and ins[jj] == a:
                gpos.append(len(mf)); mf.append(gm[jj]); jj += 1
            Fmap[a] = len(mf); mf.append(att[a])
        n = len(mf)
        F = lambda a: Fmap[a]
        streams = []; fixed = {}; busy = [0]*n; extra = {}; vmlist = []; tails = []
        for si, sp in enumerate(sps):
            r = self.step_streams(sp, bases[si], F, f"{name}s{si}", si == len(sps)-1)
            streams += r["streams"]
            for g, v in r["fixed"].items(): fixed.setdefault(g, []).extend(v)
            for g in r["waits"]: busy[g] += 1
            extra.update(r["extra"])
            lo, hi = r["Rwin"]
            if self.P.get("rspill", 1) and si + 1 < len(sps):
                spn = sps[si + 1]
                hi = F(bases[si + 1] + spn["P"].get("BG", spn["NQ"] - 2)) - 2 - self.P.get("rspill_margin", 0)
            nR = len(r["R"])
            for k, (m0, dma, tag) in enumerate(r["R"]):
                tgt = lo + (k + 0.5)*(hi - lo)/nR
                vmlist.append((tgt, lo, hi, m0, dma, tag, None))
            tails.append(r["tail"])
            if gt is None and H == 0 and si == 0:
                for k in range(6):
                    m0, so, dma = self.qa_dma(6 + k)
                    vmlist.append((hi - 0.9 + 0.1*k, lo, hi, [m0, so], dma, ("Q", name), None))
        LG = PG.get("LEAD", 7)
        if gt:
            gr = []
            GW = []
            for g in range(6):
                w = gpos[4*g] - LG - 3
                GW.append(w)
                fixed.setdefault(w, []).append(f"NEEDV G:{g}")
            for j in range(24):
                g, x = divmod(j, 4); slot = g % 3
                lo = (gpos[j-2] if j >= 2 else 0)
                if x < 2: lo = max(lo, GW[g])
                hi = max(gpos[j] - LG, lo + (1 if gt == "V" else 0))
                if gt == "K":
                    cc, sg = divmod(x, 2)
                    gr.append(Item(f"ds_read_b128 {vq(GF+4*(j&1))}, v{vKG+sg} offset:{slot*4096 + cc*2048}", "D", lo + (1 if x < 2 and lo == GW[g] else 0), hi))
                else:
                    r0 = GF + 4*(j&1)
                    l2 = lo + (1 if x < 2 and lo == GW[g] else 0)
                    gr.append(Item(f"ds_read_b64_tr_b16 v[{r0}:{r0+1}], v{vVG+x} offset:{slot*4096}", "T", l2, max(hi, l2)))
                    gr.append(Item(f"ds_read_b64_tr_b16 v[{r0+2}:{r0+3}], v{vVG+x} offset:{slot*4096+512}", "T", l2, max(hi, l2)))
                busy[gpos[j] - 1] += 1
            streams.append(gr)
            ix = []
            prevB = -1
            win = None
            if kind == "p1" and self.P.get("touch", 1):
                g0 = self.P.get("win_g0", 2)
                w0 = gpos[4*g0 - 1] + 1 + self.P.get("win_gs", 13)
                win = (w0, w0 + self.P.get("win_w", 64))
                vmlist.append((w0 + 0.1, w0, w0 + 1, f"s_mov_b32 m0, {DUMMY}", f"buffer_load_dword v{vTCH}, s[{sTS}:{sTS+3}], s{sTOFF} offen lds", ("X", name), None))
                vmlist.append((w0 + 0.2, w0, w0 + 2, None, f"buffer_load_dword v{vTCH}, s[{sMVS}:{sMVS+3}], s{sTOF2} offen lds", ("X", name), None))
                vmlist.append((w0 + 0.3, w0, win[1], None, None, None, f"s_add_u32 s{sTOFF}, s{sTOFF}, 49152"))
                vmlist.append((w0 + 0.4, w0, win[1], None, None, None, [f"s_add_u32 s{sTOF2}, s{sTOF2}, 32768", f"s_cmp_gt_u32 s{sB}, 5", f"s_cselect_b32 s{sTOF2}, 0x40000000, s{sTOF2}"]))
                nv = []
                for e in vmlist:
                    tgt, lo, hi, m0, dma, tag, sal = e
                    if tag and tag[0] == "R":
                        if lo <= win[0]: hi = min(hi, win[0] - 1);
                        else: lo = max(lo, win[1] + 1)
                        e = (tgt, lo, hi, m0, dma, tag, sal)
                    nv.append(e)
                vmlist = nv
                byw = {}
                for e in vmlist:
                    if e[5] and e[5][0] == "R": byw.setdefault(e[5][1], []).append(e)
                nv = []
                for e in vmlist:
                    if e[5] and e[5][0] == "R":
                        grp = byw[e[5][1]]; k = grp.index(e)
                        e = (e[1] + (k + 0.5)*(e[2] - e[1])/len(grp),) + e[1:]
                    elif e[6] and isinstance(e[6], str) and "s34, s34" in e[6].replace(f"s{sKOFF}", "s34"):
                        lo_, hi_ = e[1], e[2]
                        if lo_ <= win[0]: e = (win[0] - 0.5, lo_, hi_) + e[3:]
                    nv.append(e)
                vmlist = nv
            for g in range(6):
                gi = g + 2
                A_ = (gpos[4*g - 1] + 1) if g > 0 else 1
                if win and A_ > win[0] - self.P.get("win_gs", 13) + 1: A_ = max(A_, win[1] + 1 + (prevB + 1 - win[1] - 1 if prevB > win[1] else 0))
                if gt == "K":
                    cpi, Ti = divmod(gi, 3)
                    newidx = (Ti == 0); qoff = cpi*128
                else:
                    ggi = 6*H + gi
                    ji, cpi = divmod(ggi, 4); newidx = True; qoff = cpi*128
                so = ["0", f"s{sT1}", f"s{sT2}"][Ti] if gt == "K" else f"s{sVT+ji}"
                if newidx:
                    ilo = prevB + 1
                    if gt == "V" and cpi == 0:
                        ix.append(Item(f"v_add_u32 v{vIA}, s{sVI+ji}, v{vIA}", "V", ilo, ilo + 2)); ilo += 1
                    A_ = max(A_, ilo + PG.get("ILEAD", 6))
                    for p in range(4):
                        ix.append(Item(f"ds_read_b32 v{PAIR+2*p}, v{vIA} offset:{qoff + 32*p}", "I", ilo, A_ - PG.get("ILEAD", 6) + 1))
                B_ = min(A_ + PG.get("GSPAN", 20), n - 1)
                if win and A_ <= win[0]: B_ = min(B_, win[0] - 1)
                for p in range(4):
                    tgt = A_ + 1 + p*(B_ - A_ - 1)/4.0
                    vmlist.append((tgt, A_, B_, f"s_add_u32 m0, s{sGM0}, {(gi % 3)*4096 + p*1024}",
                                   f"buffer_load_dwordx4 v[{PAIR+2*p}:{PAIR+2*p+1}], s[{sG}:{sG+3}], {so} idxen offen lds", ("G", gi), None))
                prevB = B_
            adv = 256 if gt == "K" else 0
            if adv: ix.append(Item(f"v_add_u32 v{vIA}, {adv}, v{vIA}", "V", ix[-1].hi, n - 1, sep=1))
            streams.append(ix)
            if gt == "K":
                se = []
                for cp in range(2):
                    g = 3*cp + 2; u = 2*H + cp
                    for cc in range(2):
                        j = 4*g + 2*cc + 1
                        lo = gpos[j] + 4
                        hi = (gpos[4*(g+1) + 2*cc] - 1) if g < 5 else n - 1
                        se.append(Item(f"v_cndmask_b32 v{GX+cc}, v{GX+cc}, v{GD+4*cc+2*cc}, s[{sSEL+4*u}:{sSEL+4*u+1}]", "V", lo, hi))
                        se.append(Item(f"v_cndmask_b32 v{GX+cc}, v{GX+cc}, v{GD+4*cc+2*cc+1}, s[{sSEL+4*u+2}:{sSEL+4*u+3}]", "V", lo, hi))
                streams.append(se)
            else:
                bs = []
                for g in range(6):
                    gg = 6*H + g; jb, cp = divmod(gg, 4)
                    lo = gpos[4*(g-2) + 3] if g >= 2 else 0
                    hi = max(gpos[4*g] - LG, lo)
                    bs.append(Item(f"ds_read_b128 {vq(GB+4*(g&1))}, v{vPB+cp}", "D", lo, hi))
                    bs.append(Item(f"v_add_u32 v{vPB+cp}, s{sVP+jb+1}, v{vPB+cp}", "V", lo, min(hi + 12, n - 1)))
                streams.append(bs)
                st = []
                for g in range(6):
                    gg = 6*H + g; jb, cp = divmod(gg, 4)
                    if cp != 3: continue
                    for x in range(4):
                        lo = gpos[4*g + x] + 4
                        hi = (gpos[4*(g+1) + x] - 1) if g < 5 else n - 3
                        st.append(Item(f"v_cvt_pk_bf16_f32 v{OUTT+2*x}, v{ACC+4*x}, v{ACC+4*x+1}", "V", lo, hi))
                        st.append(Item(f"v_cvt_pk_bf16_f32 v{OUTT+2*x+1}, v{ACC+4*x+2}, v{ACC+4*x+3}", "V", lo, hi))
                        if x == 1 or x == 3:
                            k = x >> 1
                            st.append(Item(f"buffer_store_dwordx4 {vq(OUTT+4*k)}, v{vLIN}, s[{sW}:{sW+3}], s{sVO+jb} offen offset:{k*1024} {self.P.get('omf','')}", "G",
                                           lo, (hi + 8 if g < 5 else n - 1), sep=1, tag=("S", jb)))
                streams.append(st)
        vmlist.sort(key=lambda x: x[0])
        vm = []
        for tgt, lo, hi, m0, dma, tag, sal in vmlist:
            if sal: vm.append(Item(sal, "S", lo, n - 1)); continue
            if m0:
                vm.append(Item(m0, "S", max(lo - 1, 0), hi - 1, sep=0))
                vm.append(Item(dma, "M", lo, hi, sep=1, tag=tag))
            else:
                vm.append(Item(dma, "M", lo, hi, tag=tag))
        streams.append(vm)
        for g, v in fixed.items():
            busy[g] += len([x for x in v if not x.endswith(":") and not x.startswith("NEED ")])
        for e, tl in tails: busy[e] += 0
        items = optimize(n, streams, busy1=busy, name=name, seed=self.P.get("seed", 1), iters=self.P.get("iters", 150000),
                         mspace=self.P.get("mspace", 4), ldsw=self.P.get("ldsw", 1.0))
        for e, tl in tails: fixed.setdefault(e, [])
        seq = emit(mf, items, fixed)
        seq2 = []; mi = -1; tl = {e: t for e, t in tails}; pend = None
        for cls, line, tag in seq:
            if cls == "M" and line.startswith("v_mfma"):
                if pend: seq2 += [("F", l, None) for l in pend]; pend = None
                mi += 1
                if mi in tl: pend = tl[mi]
            seq2.append((cls, line, tag))
        if pend: seq2 += [("F", l, None) for l in pend]
        self.bodies[name] = dict(seq=seq2, extra=extra, kind=kind, gt=gt, H=H, nsteps=len(sps), name=name)
        return name

    def resolve_vm(self, name, preds):
        B = self.bodies[name]
        tr = vm_trace(B["seq"])
        nst = B["nsteps"]
        res = []
        for pos, (k, v) in enumerate(tr):
            if k != "mark": continue
            typ, arg = v.split(":")
            best = None
            for ptr in preds:
                full = ptr + tr[:pos]
                ops = [t for kk, t in full if kk == "op"]
                npre = len([1 for kk, t in ptr if kk == "op"])
                if typ == "G":
                    g = int(arg)
                    idxs = [i for i, t in enumerate(ops) if t and t[0] == "G" and ((i >= npre and t[1] == g and g >= 2) or (i < npre and g < 2 and t[1] == g + 6))]
                    if g < 2 and not idxs: N = 0; best = N if best is None else min(best, N); continue
                    last = max(idxs)
                else:
                    si = int(arg[-1])
                    rn = [(i, t[1]) for i, t in enumerate(ops) if t and t[0] == "R"]
                    order = []
                    for i, nm in rn:
                        key = (nm, i < npre)
                        if not order or order[-1][0] != key: order.append([key, i])
                        else: order[-1][1] = i
                    prior = [o for o in order if not (o[0][1] is False and int(o[0][0][-1]) >= si)]
                    if len(prior) < 2: N = 0; best = N if best is None else min(best, N); continue
                    last = prior[-2][1]
                N = len(ops) - 1 - last
                best = N if best is None else min(best, N)
            res.append(min(best, 63))
        return res

    def emit_body(self, name, preds):
        B = self.bodies[name]
        vmN = self.resolve_vm(name, preds)
        init = [[f"v{pool(f)+r}" for r in range(4)] for f in range(4)]
        lines, q = finalize(B["seq"], initial=init, extra=B["extra"], vmN=vmN)
        lines = fix_hazards(lines)
        ab = self.ab.split(",")
        if "nobar" in ab: lines = [l for l in lines if l.strip() != "s_barrier"]
        if "novm" in ab: lines = [l for l in lines if "vmcnt" not in l]
        if "nog" in ab: lines = [l for l in lines if "idxen" not in l]
        if "nor" in ab: lines = [l for l in lines if not (" lds" in l and "idxen" not in l)]
        if "nost" in ab: lines = [l for l in lines if "buffer_store" not in l]
        if "nolgkm" in ab: lines = [l for l in lines if "lgkmcnt" not in l]
        if "halfbar" in ab:
            out = []; k = 0
            for l in lines:
                if l.strip() == "s_barrier":
                    k += 1
                    if k % 2 == 1: continue
                out.append(l)
            lines = out
        if "nom0" in ab: lines = [l for l in lines if "m0," not in l]
        if "noI" in ab: lines = [l for l in lines if "ds_read_b32" not in l]
        if "noexp" in ab: lines = [l for l in lines if not l.strip().startswith("v_exp")]
        if "noval" in ab: lines = [l for l in lines if not (l.strip().startswith("v_") and not l.strip().startswith("v_mfma"))]
        if "nosal" in ab: lines = [l for l in lines if not (l.strip().startswith("s_add") or l.strip().startswith("s_cmp_ge") or l.strip().startswith("s_cselect")) or "s32" in l or "s66" in l or "s35" in l]
        if "nods" in ab: lines = [l for l in lines if not l.strip().startswith("ds_read")]
        if "nogds" in ab: lines = [l for l in lines if not (l.strip().startswith("ds_read") and any(f"v{r}" in l.split(",")[0] or f"v[{r}:" in l.split(",")[0] for r in list(range(PAIR, 256))))]
        if self.ab: lines = [l for l in lines if not l.strip().startswith("s_or_b64 vcc")]
        if self.ab: lines = [l.replace("s_cbranch_vccnz", "s_cbranch_scc1 ").replace("scc1  ", "scc1 ") if False else l for l in lines]
        if self.ab:
            out = []
            for l in lines:
                if l.strip().startswith("s_cbranch_vccnz"):
                    out.append(f"  s_mov_b64 vcc, s[{sFLAG}:{sFLAG+1}]"); out.append(l)
                else: out.append(l)
            lines = out
        print(f"[{name}] vmN={vmN}")
        return lines

    def rowmax(self, L, b, dst, tmp):
        s0, s1 = Sreg(0, b), Sreg(1, b)
        L.append(f"  v_max3_f32 v{dst}, v{s0}, v{s0+1}, v{s0+2}")
        L.append(f"  v_max3_f32 v{dst}, v{dst}, v{s0+3}, v{s1}")
        L.append(f"  v_max3_f32 v{dst}, v{dst}, v{s1+1}, v{s1+2}")
        L.append(f"  v_max_f32 v{dst}, v{dst}, v{s1+3}")
        L.append(f"  v_mov_b32 v{tmp}, v{dst}\n  s_nop 1\n  v_permlane16_swap_b32 v{dst}, v{tmp}\n  s_nop 1\n  v_max_f32 v{dst}, v{dst}, v{tmp}")
        L.append(f"  v_mov_b32 v{tmp}, v{dst}\n  s_nop 1\n  v_permlane32_swap_b32 v{dst}, v{tmp}\n  s_nop 1\n  v_max_f32 v{dst}, v{dst}, v{tmp}")
    def expcvt(self, L, b, par):
        for k in range(2):
            for h in range(2):
                s = Sreg(k, b) + 2*h
                L.append(f"  v_exp_f32 v{TMP}, v{s}\n  v_exp_f32 v{TMP+1}, v{s+1}\n  s_nop 0")
                L.append(f"  v_cvt_pk_bf16_f32 v{Preg(par,b)+2*k+h}, v{TMP}, v{TMP+1}")
    def routines(self):
        for kind in ("p1", "p2"):
            mb = [0, 1] if kind == "p1" else [2, 3]
            diag = sDA if kind == "p1" else sDB
            L = [f"MASK_{kind}:"]
            L.append(f"  s_sub_i32 s{sD}, s{sR1}, s{diag}\n  s_sub_i32 s{sD}, s{sD}, s{sWAVE}\n  s_lshl_b32 s{sD}, s{sD}, 5")
            L.append(f"  v_subrev_u32 v{TMP+7}, s{sD}, v{vX}")
            for kp in range(2):
                for bi, b in enumerate(mb):
                    for r in range(4):
                        L.append(f"  v_cmp_le_i32 s[{sMASK+2*r}:{sMASK+2*r+1}], {16*(kp-bi) + r}, v{TMP+7}")
                    dst = (NEGM + 4*b) if kp == 0 else (NEGM1 + 4*bi)
                    for r in range(4):
                        L.append(f"  v_cndmask_b32 v{dst+r}, v{vNINF}, v{MNEG+b}, s[{sMASK+2*r}:{sMASK+2*r+1}]")
            L.append(f"  s_nop 0\n  s_setpc_b64 s[{sRET}:{sRET+1}]")
            self.ool.append(L)
            qb = [0, 1, 2, 3] if kind == "p1" else [2, 3]
            for par in range(2):
                L = [f"RARE_{kind}_{par}:", "  s_nop 7\n  s_nop 7"]
                dl, al, t6, t7 = TMP+4, TMP+5, TMP+6, TMP+7
                for b in qb:
                    self.rowmax(L, b, dl, t6)
                    L.append(f"  v_ceil_f32 v{dl}, v{dl}")
                    L.append(f"  v_frexp_exp_i32_f32 v{t6}, v{L0+4*b}\n  v_add_u32 v{t6}, -12, v{t6}\n  v_cvt_f32_i32 v{t6}, v{t6}")
                    L.append(f"  v_max3_f32 v{dl}, v{dl}, v{t6}, 0")
                    L.append(f"  v_cvt_i32_f32 v{t6}, v{dl}\n  v_sub_u32 v{t6}, 0, v{t6}\n  v_ldexp_f32 v{al}, 1.0, v{t6}")
                    for k in range(2):
                        for r in range(4): L.append(f"  v_sub_f32 v{Sreg(k,b)+r}, v{Sreg(k,b)+r}, v{dl}")
                    for r in range(4): L.append(f"  v_sub_f32 v{NEGM+4*b+r}, v{NEGM+4*b+r}, v{dl}")
                    if b in mb:
                        for r in range(4): L.append(f"  v_sub_f32 v{NEGM1+4*mb.index(b)+r}, v{NEGM1+4*mb.index(b)+r}, v{dl}")
                    L.append(f"  v_sub_f32 v{MNEG+b}, v{MNEG+b}, v{dl}")
                    for d in range(12):
                        for r in range(4):
                            a = Oreg(b, d) + r
                            L.append(f"  v_accvgpr_read_b32 v{t6}, a{a}\n  s_nop 0\n  v_mul_f32 v{t6}, v{t6}, v{al}\n  s_nop 0\n  v_accvgpr_write_b32 a{a}, v{t6}")
                    self.expcvt(L, b, par)
                    L.append("  s_nop 1")
                    L.append(f"  v_mfma_f32_16x16x32_bf16 {vq(TMP)}, {vq(ONES)}, {vq(Preg(par,b))}, 0")
                    L.append("  s_nop 7\n  s_nop 1")
                    L.append(f"  v_mov_b32 v{t7}, 0x203\n  v_cmp_class_f32 vcc, v{L0+4*b}, v{t7}\n  v_mul_f32 v{t6}, v{L0+4*b}, v{al}\n  s_nop 1")
                    L.append(f"  v_cndmask_b32 v{t6}, v{t6}, v{TMP}, vcc")
                    for r in range(4): L.append(f"  v_mov_b32 v{L0+4*b+r}, v{t6}")
                L.append(f"  s_nop 3\n  s_setpc_b64 s[{sRET}:{sRET+1}]")
                self.ool.append(L)
        L = ["INIT_A:", "  s_nop 7\n  s_nop 7"]
        for b in (0, 1):
            dl, t6 = TMP+4, TMP+6
            self.rowmax(L, b, dl, t6)
            L.append(f"  v_ceil_f32 v{dl}, v{dl}")
            for k in range(2):
                for r in range(4): L.append(f"  v_sub_f32 v{Sreg(k,b)+r}, v{Sreg(k,b)+r}, v{dl}")
            L.append(f"  v_sub_f32 v{MNEG+b}, v{MNEG+b}, v{dl}")
            self.expcvt(L, b, 0)
            L.append("  s_nop 1")
            L.append(f"  v_mfma_f32_16x16x32_bf16 {vq(L0+4*b)}, {vq(ONES)}, {vq(Preg(0,b))}, 0")
        L.append(f"  s_nop 7\n  s_setpc_b64 s[{sRET}:{sRET+1}]")
        self.ool.append(L)
        def blk(k):
            k = min(k, 11); h = k // 6; r = k % 6
            return (r >> 1, 2*h + (r & 1))
        for m in range(4):
            L = [f"VSET_{m}:"]
            for j in range(4): L.append(f"  s_mov_b32 s{sVT+j}, {blk(3*m+j)[0]*128}")
            for j in range(1, 4):
                dg = blk(3*m+j)[1] - blk(3*m+j-1)[1]
                L.append(f"  s_mov_b32 s{sVI+j}, {dg*512}\n  s_mov_b32 s{sVP+j}, {dg*256}")
            base = sROWA if m < 2 else sROWB
            for j in range(3):
                T, gm = blk(3*m+j)
                L.append(f"  s_add_u32 s{sVO+j}, s{base}, {(gm & 1)*6144 + T*2048}")
            L.append(f"  s_setpc_b64 s[{sRET}:{sRET+1}]")
            self.ool.append(L)
        def cpq(gm):
            L = []
            for s in range(6):
                op = Qop(gm, s); base = int(op[2:op.index(':')])
                for r in range(4):
                    if op[0] == 'a': L.append(f"  v_accvgpr_read_b32 v{GQ+4*s+r}, a{base+r}")
                    else: L.append(f"  v_mov_b32 v{GQ+4*s+r}, v{base+r}")
            return L
        self.ool.append(["CPQ_0:"] + cpq(0) + [f"  s_nop 1\n  s_setpc_b64 s[{sRET}:{sRET+1}]"])
        for gm in range(4):
            fill = cpq(gm + 1) if gm < 3 else []
            def F(k=1):
                out = []
                for _ in range(k): out.append(fill.pop(0) if fill else "  s_nop 0")
                return out
            a, b, t0, t1 = GX, GX+1, TMP, TMP+1
            ctr = ["quad_perm:[1,0,3,2]", "quad_perm:[2,3,0,1]", "row_half_mirror"]
            L = [f"KEND_{gm}:"]
            L += F(2)
            L += [f"  v_mov_b32 v{t0}, v{a}", f"  v_mov_b32 v{t1}, v{b}"] + F(1)
            for c in ctr:
                L += [f"  v_max_f32_dpp v{t0}, v{t0}, v{t0} {c} row_mask:0xf bank_mask:0xf", f"  v_max_f32_dpp v{t1}, v{t1}, v{t1} {c} row_mask:0xf bank_mask:0xf"] + F(1)
            L += [f"  v_sub_f32 v{a}, v{a}, v{t0}", f"  v_sub_f32 v{b}, v{b}, v{t1}", f"  v_exp_f32 v{a}, v{a}", f"  v_exp_f32 v{b}, v{b}"] + F(1)
            L += [f"  v_mov_b32 v{t0}, v{a}", f"  v_mov_b32 v{t1}, v{b}"] + F(1)
            for c in ctr:
                L += [f"  v_add_f32_dpp v{t0}, v{t0}, v{t0} {c} row_mask:0xf bank_mask:0xf", f"  v_add_f32_dpp v{t1}, v{t1}, v{t1} {c} row_mask:0xf bank_mask:0xf"] + F(1)
            L += [f"  v_rcp_f32 v{t0}, v{t0}", f"  v_rcp_f32 v{t1}, v{t1}"] + F(1)
            L += [f"  v_mul_f32 v{t0}, s{sGG}, v{t0}", f"  v_mul_f32 v{t1}, s{sGG}, v{t1}", f"  v_mul_f32 v{a}, v{a}, v{t0}", f"  v_mul_f32 v{b}, v{b}, v{t1}",
                  f"  v_cvt_pk_bf16_f32 v{a}, v{a}, v{b}"] + F(1)
            L += [f"  ds_write_b16 v{vPW}, v{a} offset:{gm*256}", f"  ds_write_b16_d16_hi v{vPW}, v{a} offset:{gm*256+32}"]
            L += fill
            L += [f"  s_nop 1\n  s_setpc_b64 s[{sRET}:{sRET+1}]"]
            self.ool.append(L)

    def prologue(self):
        A = self.A
        A(f".globl {KNAME}\n.p2align 8\n.type {KNAME},@function\n{KNAME}:")
        A("  s_cmp_ge_u32 s2, 256\n  s_cbranch_scc1 AT_END")
        if self.instr: A("  s_memrealtime s[100:101]\n  s_memtime s[98:99]\n  s_waitcnt lgkmcnt(0)\n  v_mov_b32 v254, s98\n  v_mov_b32 v253, s100")
        A("  s_load_dwordx4 s[4:7], s[0:1], 0         ; q, k")
        A("  s_load_dwordx2 s[42:43], s[0:1], 16      ; v")
        A(f"  s_load_dwordx4 s[{sMK}:{sMK+3}], s[0:1], 24")
        A("  s_load_dwordx4 s[44:47], s[0:1], 40")
        A("  s_load_dwordx2 s[48:49], s[0:1], 56      ; out")
        A("  s_load_dwordx2 s[72:73], s[0:1], 72      ; ws")
        A(f"  v_and_b32 v1, 63, v0\n  v_lshrrev_b32 v0, 6, v0\n  s_nop 0\n  v_readfirstlane_b32 s{sWAVE}, v0")
        if self.instr:
            A(f"  s_nop 3\n  s_lshl_b32 s100, s{sWAVE}, 8\n  s_add_u32 s100, s100, {STAMPA}\n  v_mov_b32 v252, s100\n  ds_write_b32 v252, v254\n  ds_write_b32 v252, v253 offset:44")
        A(f"  s_and_b32 s3, s2, 7\n  s_lshr_b32 s96, s2, 3\n  s_and_b32 s{sI}, s96, 7\n  s_lshr_b32 s96, s96, 3\n  s_lshl_b32 s3, s3, 2\n  s_add_u32 s{sH}, s3, s96")
        A(f"  s_lshl_b32 s3, s{sI}, 2\n  s_sub_u32 s{sN}, 64, s3\n  s_mov_b32 s{sDA}, s3\n  s_sub_u32 s{sDB}, s{sN}, 4")
        A(f"  s_lshl_b32 s{sB1LAST}, s{sI}, 1\n  s_add_u32 s{sB1LAST}, s{sB1LAST}, 1\n  s_add_u32 s3, s{sI}, s{sH}\n  s_and_b32 s3, s3, {self.P.get('epa_mask', 3)}\n  s_add_u32 s3, s3, 11\n  s_max_u32 s{sEPA}, s{sB1LAST}, s3")
        A(f"  s_mul_i32 s97, s{sH}, {HEAD}")
        A("  s_waitcnt lgkmcnt(0)")
        def srd(d, b, size=HEAD, sub=0):
            A(f"  s_add_u32 s{d}, s{b}, s97\n  s_addc_u32 s{d+1}, s{b+1}, 0")
            if sub: A(f"  s_sub_u32 s{d}, s{d}, {sub}\n  s_subb_u32 s{d+1}, s{d+1}, 0")
            A(f"  s_and_b32 s{d+1}, s{d+1}, 0xffff\n  s_mov_b32 s{d+2}, {size+sub}\n  s_mov_b32 s{d+3}, 0x20000")
        srd(sG, 4); srd(sK, 6); srd(sV, 42); srd(sO, 48); srd(sW, 72)
        for p in (sMK, sMV):
            A(f"  s_add_u32 s{p}, s{p}, s97\n  s_addc_u32 s{p+1}, s{p+1}, 0")
        A(f"  s_lshl_b32 s3, s{sH}, 16\n  s_add_u32 s{sTS}, s44, s3\n  s_addc_u32 s{sTS+1}, s45, 0\n  s_and_b32 s{sTS+1}, s{sTS+1}, 0xffff\n  s_mov_b32 s{sTS+2}, 65536\n  s_mov_b32 s{sTS+3}, 0x20000")
        A(f"  s_lshl_b32 s3, s{sH}, 1\n  s_and_b32 s96, s3, 0xfffffffc\n  s_add_u32 s46, s46, s96\n  s_addc_u32 s47, s47, 0\n  s_load_dword s96, s[46:47], 0")
        A("  v_lshrrev_b32 v16, 3, v1\n  v_and_b32 v17, 7, v1\n  v_and_b32 v18, 15, v1\n  v_lshrrev_b32 v19, 4, v1")
        for j in range(3):
            A(f"  v_add_u32 v20, {8*j}, v16\n  v_mul_u32_u24 v20, 0xAAAB, v20\n  v_lshrrev_b32 v20, 17, v20\n  v_and_b32 v20, 6, v20")
            A(f"  v_xor_b32 v20, v20, v17\n  v_lshlrev_b32 v20, 4, v20\n  v_lshl_add_u32 v{vDV+j}, v16, 7, v20")
        A(f"  v_lshlrev_b32 v{vLIN}, 4, v1")
        A(f"  s_lshl_b32 s3, s{sI}, 7\n  s_lshl_b32 s4, s{sWAVE}, 5\n  s_add_u32 s{sROWA}, s3, s4\n  s_sub_u32 s5, 1920, s3\n  s_add_u32 s{sROWB}, s5, s4")
        A(f"  s_lshl_b32 s3, s{sWAVE}, 11\n  s_add_u32 s6, s3, {IDX}\n  s_mov_b32 m0, s6\n  s_lshl_b32 s4, s{sROWA}, 5")
        A(f"  buffer_load_dwordx4 v{vLIN}, s[{sTS}:{sTS+3}], s4 offen lds")
        A(f"  s_add_u32 m0, s6, 1024\n  s_lshl_b32 s4, s{sROWB}, 5")
        A(f"  buffer_load_dwordx4 v{vLIN}, s[{sTS}:{sTS+3}], s4 offen lds")
        A(f"  s_mul_i32 s{sROWA}, s{sROWA}, 384\n  s_mul_i32 s{sROWB}, s{sROWB}, 384")
        if self.P.get("codepf", 1):
            A(f"  s_getpc_b64 s[44:45]\nL_CP:\n  s_sub_u32 s44, s44, L_CP-{KNAME}\n  s_subb_u32 s45, s45, 0\n  s_and_b32 s45, s45, 0xffff\n  s_mov_b32 s46, TILETAB-{KNAME}\n  s_mov_b32 s47, 0x20000")
            A(f"  s_lshr_b32 s3, s2, 3\n  s_lshl_b32 s3, s3, 12\n  s_lshl_b32 s5, s{sWAVE}, 10\n  s_add_u32 s3, s3, s5\n  v_and_b32 v20, 7, v1\n  v_lshlrev_b32 v20, 7, v20\n  s_mov_b32 m0, {DUMMY}\n  s_nop 0\n  buffer_load_dword v20, s[44:47], s3 offen lds")
        A(f"  s_getpc_b64 s[98:99]\nL_TT:\n  s_add_u32 s98, s98, TILETAB-L_TT\n  s_addc_u32 s99, s99, 0\n  s_lshl_b32 s3, s{sI}, 6\n  v_add_u32 v20, s3, v1\n  global_load_ubyte v{vSEQ}, v20, s[98:99]")
        A(f"  s_mov_b32 s7, {QAREA[0]}")
        for w in range(1, 4):
            A(f"  s_cmp_eq_u32 s{sWAVE}, {w}\n  s_cselect_b32 s7, {QAREA[w]}, s7")
        A(f"  s_mul_i32 s4, s{sWAVE}, 3072\n  s_add_u32 s{sKM0}, s4, {KR}\n  s_add_u32 s{sVM0}, s4, {VR}")
        if self.P.get("coop", 1):
            A(f"  s_and_b32 s5, s{sWAVE}, 1\n  s_cmp_eq_u32 s5, 1\n  s_cselect_b32 s{sTS}, s{sV}, s{sK}\n  s_cselect_b32 s{sTS+1}, s{sV+1}, s{sK+1}\n  s_mov_b32 s{sTS+2}, {HEAD}")
            A(f"  s_cmp_ge_u32 s{sWAVE}, 2\n  s_cselect_b32 s5, 64, 48\n  s_mul_i32 s3, s{sI}, s5\n  s_lshl_b32 s3, s3, 7")
            A(f"  s_cmp_ge_u32 s{sWAVE}, 2\n  s_cselect_b32 s98, 0, {32*TILE}\n  s_add_u32 s3, s3, s98")
            A(f"  v_lshlrev_b32 v{vTCH}, 7, v1\n  v_cmp_gt_u32 vcc, s5, v1\n  v_mov_b32 v20, 0x40000000\n  s_nop 0\n  v_cndmask_b32 v20, v20, v{vTCH}, vcc")
            A(f"  s_mov_b32 m0, {DUMMY}\n  s_nop 0\n  buffer_load_dword v20, s[{sTS}:{sTS+3}], s3 offen lds")
        self.stamp(48)
        D = []
        def tile(srdn, m0r, slot, off):
            for j in range(3):
                pre = [f"  s_add_u32 m0, s{m0r}, {slot*TILE}", f"  s_add_u32 s3, s4, {off}"] if j == 0 else []
                D.append(pre + [f"  buffer_load_dwordx4 v{vDV+j}, s[{srdn}:{srdn+3}], s3 offen offset:{1024*j} lds"])
        def qdma(b):
            base = sROWB if b >= 2 else sROWA
            lds = "s7" if b >= 2 else f"s{sGM0}"
            for half in range(2):
                for j in range(3):
                    pre = [f"  s_add_u32 m0, {lds}, {(b&1)*6144 + half*3072}", f"  s_add_u32 s3, s{base}, {(b&1)*6144 + half*3072}"] if j == 0 else []
                    D.append(pre + [f"  buffer_load_dwordx4 v{vDV+j}, s[{sG}:{sG+3}], s3 offen offset:{1024*j} lds"])
        A(f"  s_mul_i32 s{sGM0}, s{sWAVE}, 12288\n  s_add_u32 s{sGM0}, s{sGM0}, {GR}")
        qdma(2); qdma(3); tile(sK, sKM0, 0, 32*TILE); tile(sV, sVM0, 0, 32*TILE); tile(sK, sKM0, 1, 33*TILE)
        main = self.A
        B = Asm(); self.A = B; A = B
        A(f"  s_mov_b32 s{sWP}, s4")
        A(f"  v_and_b32 v20, 6, v18\n  v_xor_b32 v20, v20, v19\n  v_lshlrev_b32 v20, 4, v20\n  v_mul_u32_u24 v{vKA}, 384, v18\n  v_add_u32 v{vKA}, v{vKA}, v20\n  v_xor_b32 v{vKA+1}, 64, v{vKA}")
        A(f"  v_add_u32 v22, s7, v{vKA}\n  v_xor_b32 v23, 64, v22\n  v_add_u32 v24, s{sGM0}, v{vKA}\n  v_xor_b32 v25, 64, v24")
        for r in range(8): A(f"  v_mov_b32 v{Preg(1,0)+r}, 0")
        A(f"  v_mov_b32 v26, {hex(f2u(CSCALE))}\n  v_mov_b32 v27, {hex(f2u(CSCALE))}")
        A(f"  s_mov_b32 s{sC}, {hex(f2u(CSCALE))}\n  s_mov_b32 s{sHI}, 0xffff0000\n  s_mov_b32 s{sTHR}, 0x49800000\n  s_mov_b32 s{sT1}, 128\n  s_mov_b32 s{sT2}, 256")
        A(f"  v_mov_b32 v28, 0\n  v_mov_b32 v29, 0\n  v_mov_b32 v30, 0\n  v_mov_b32 v31, 0\n  v_add_u32 v20, {ZA}, v{vLIN}\n  ds_write_b128 v20, v[28:31]")
        for r in range(12): A(f"  v_mfma_f32_32x32x16_bf16 a[{16*r}:{16*r+15}], v[28:31], v[28:31], 0")
        A(f"  v_bfe_u32 v20, v1, 2, 2\n  v_lshl_add_u32 v20, v19, 2, v20")
        A(f"  v_mul_u32_u24 v{vVA}, 384, v20\n  v_and_b32 v20, 6, v20\n  v_bfe_u32 v21, v1, 1, 1\n  v_xor_b32 v20, v20, v21\n  v_lshl_add_u32 v{vVA}, v20, 4, v{vVA}")
        A(f"  v_and_b32 v20, 1, v1\n  v_lshl_add_u32 v{vVA}, v20, 3, v{vVA}\n  v_add_u32 v{vVA}, {VR}, v{vVA}")
        for x in range(1, 4): A(f"  v_xor_b32 v{vVA+x}, {32*x}, v{vVA}")
        A(f"  v_lshlrev_b32 v20, 2, v19\n  v_sub_u32 v{vX}, v18, v20\n  v_mov_b32 v{vNINF}, 0xff800000")
        A(f"  v_lshlrev_b32 v{vTCH}, 7, v1")
        A(f"  v_and_b32 v20, 2, v16\n  v_xor_b32 v20, v20, v17\n  v_lshlrev_b32 v20, 4, v20")
        for p in range(4):
            A(f"  v_mov_b32 v{PAIR+2*p+1}, v20" if p % 2 == 0 else f"  v_xor_b32 v{PAIR+2*p+1}, 64, v20")
        A(f"  v_and_b32 v20, 7, v18\n  v_lshrrev_b32 v21, 3, v18\n  v_lshlrev_b32 v{vKG}, 7, v20\n  v_lshl_add_u32 v{vKG}, v21, 10, v{vKG}")
        A(f"  v_and_b32 v20, 2, v20\n  v_xor_b32 v20, v20, v19\n  v_lshlrev_b32 v21, 2, v21\n  v_xor_b32 v20, v20, v21\n  v_lshl_add_u32 v{vKG}, v20, 4, v{vKG}")
        A(f"  v_add_u32 v{vKG}, s{sGM0}, v{vKG}\n  v_xor_b32 v{vKG+1}, 64, v{vKG}")
        A(f"  v_lshlrev_b32 v20, 6, v19\n  v_bfe_u32 v21, v1, 3, 1\n  v_lshl_add_u32 v20, v21, 4, v20\n  v_lshl_add_u32 v20, v17, 1, v20\n  s_lshl_b32 s5, s{sWAVE}, 10\n  s_add_u32 s5, s5, {PA}\n  v_add_u32 v{vPW}, s5, v20")
        for u in range(4):
            lo = 0xff << (16*u); hi = 0xff00 << (16*u)
            A(f"  s_mov_b32 s{sSEL+4*u}, {hex(lo & 0xffffffff)}\n  s_mov_b32 s{sSEL+4*u+1}, {hex(lo >> 32)}\n  s_mov_b32 s{sSEL+4*u+2}, {hex(hi & 0xffffffff)}\n  s_mov_b32 s{sSEL+4*u+3}, {hex(hi >> 32)}")
        for r in range(4): A(f"  v_mov_b32 v{ONES+r}, 0x3f803f80")
        for r in range(16): A(f"  v_mov_b32 v{L0+r}, 0\n  v_mov_b32 v{NEGM+r}, 0")
        for r in range(8): A(f"  v_mov_b32 v{NEGM1+r}, 0")
        for r in range(4): A(f"  v_mov_b32 v{MNEG+r}, 0")
        A(f"  v_lshlrev_b32 v1, 2, v16\n  v_add_u32 v{vIA}, s6, v1")
        A("  s_waitcnt lgkmcnt(0)")
        A(f"  s_lshl_b32 s5, s{sH}, 1\n  s_and_b32 s5, s5, 2\n  s_lshl_b32 s5, s5, 3\n  s_lshr_b32 s96, s96, s5\n  s_lshl_b32 s96, s96, 16")
        A(f"  v_mov_b32 v20, s96\n  v_mul_f32 v20, {hex(f2u(LOG2E))}, v20\n  v_exp_f32 v20, v20\n  s_nop 0\n  v_add_f32 v20, 1.0, v20\n  v_rcp_f32 v20, v20\n  s_nop 0\n  v_sub_f32 v21, 1.0, v20\n  v_readfirstlane_b32 s{sG1}, v20\n  s_nop 0\n  v_readfirstlane_b32 s{sGG}, v21")
        setup = [l for l in B.lines if l.strip()]
        self.A = main; A = main
        nset = 12
        per = -(-len(setup) // nset)
        sched_q = {13: (2, 5), 19: (3, 11)}
        pending = []
        for k, d in enumerate(D):
            for l in d: A(l)
            if k < nset:
                for l in setup[k*per:(k+1)*per]: A(l)
            if pending:
                for l in pending.pop(0): A(l)
            if k in sched_q:
                b, last = sched_q[k]
                for ch in pending:
                    for l in ch: A(l)
                A(f"  s_waitcnt vmcnt({k - last})")
                self.stamp(50 + b)
                reads, fr = self.qproc(b, 22 if b >= 2 else 24, 32)
                for l in reads: A(l)
                pending = fr
        for ch in pending:
            for l in ch: A(l)

    def qa_dma(self, k):
        b, r = divmod(k, 6); half, j = divmod(r, 3)
        off = b*6144 + half*3072
        return (f"s_add_u32 m0, s{sGM0}, {off}", f"s_add_u32 s{sQO}, s{sROWA}, {off}",
                f"buffer_load_dwordx4 v{vDV+j}, s[{sG}:{sG+3}], s{sQO} offen offset:{1024*j} lds")

    def qproc(self, b, areg, t):
        reads = [f"  ds_read_b128 {vq(POOL+16+4*(s%4) if False else POOL+4*s)}, v{areg+(s&1)} offset:{(b&1)*6144 + (s>>1)*128}" for s in range(6)]
        fr = []
        for s in range(6):
            L = [f"  s_waitcnt lgkmcnt({5-s})"]
            op = Qop(b, s); base = int(op[2:op.index(':')])
            for r in range(4):
                src = POOL + 4*s + r
                L += [f"  v_lshlrev_b32 v{t+2*r}, 16, v{src}", f"  v_and_b32 v{t+1+2*r}, s{sHI}, v{src}"]
            for r in range(4):
                L += [f"  v_pk_mul_f32 v[{t+2*r}:{t+1+2*r}], v[{t+2*r}:{t+1+2*r}], v[26:27]"]
            for r in range(4):
                L.append(f"  v_cvt_pk_bf16_f32 v{base+r if op[0] == 'v' else t+8+r}, v{t+2*r}, v{t+1+2*r}")
            if op[0] == 'a':
                for r in range(4): L.append(f"  v_accvgpr_write_b32 a{base+r}, v{t+8+r}")
            fr.append(L)
        return reads, fr

    def qproc_inplace(self, b):
        A = self.A
        ar = Sreg(0, 0); t = Sreg(1, 0)
        A(f"  v_mov_b32 v22, s{sC}\n  v_mov_b32 v23, s{sC}")
        for rnd in range(2):
            ss = [0, 1, 2, 3] if rnd == 0 else [4, 5]
            for k, s in enumerate(ss):
                A(f"  ds_read_b128 {vq(POOL+16+4*k)}, v{ar+(s&1)} offset:{(b&1)*6144 + (s>>1)*128}")
            for k, s in enumerate(ss):
                A(f"  s_waitcnt lgkmcnt({len(ss)-1-k})")
                op = Qop(b, s); base = int(op[2:op.index(':')])
                for r in range(4):
                    src = POOL + 16 + 4*k + r
                    A(f"  v_lshlrev_b32 v{t+2*r}, 16, v{src}\n  v_and_b32 v{t+1+2*r}, s{sHI}, v{src}")
                for r in range(4):
                    A(f"  v_pk_mul_f32 v[{t+2*r}:{t+1+2*r}], v[{t+2*r}:{t+1+2*r}], v[22:23]")
                for r in range(4):
                    A(f"  v_cvt_pk_bf16_f32 v{base+r if op[0] == 'v' else ar+2+r}, v{t+2*r}, v{t+1+2*r}")
                if op[0] == 'a':
                    for r in range(4): A(f"  v_accvgpr_write_b32 a{base+r}, v{ar+2+r}")

    def step0(self):
        A = self.A
        A(f"  s_mov_b32 s{sT}, 0")
        A("  s_waitcnt vmcnt(6)\n  s_barrier")
        A(f"  s_mov_b32 s{sR1}, 32\n  s_cmp_ge_u32 s{sR1}, s{sDB}\n  s_cbranch_scc0 S0_NM\n  s_call_b64 s[{sRET}:{sRET+1}], MASK_p2\nS0_NM:")
        A(f"  s_mov_b32 s{sR0}, 32\n  s_mov_b32 s{sR1}, 33\n  s_mov_b32 s{sR2}, 34\n  s_mov_b32 s{sR3}, 35\n  v_readlane_b32 s{sR4}, v{vSEQ}, 4")
        def tile(srdn, m0r, slot, tl):
            out = []
            for j in range(3):
                out.append([f"  s_add_u32 m0, s{m0r}, {slot*TILE}", (f"  s_add_u32 s3, s{sWP}, {tl*TILE}" if tl is not None else f"  s_nop 0"),
                            f"  buffer_load_dwordx4 v{vDV+j}, s[{srdn}:{srdn+3}], s3 offen offset:{1024*j} lds"])
            return out
        dm = tile(sV, sVM0, 1, 33) + tile(sK, sKM0, 2, 34) + tile(sK, sKM0, 3, 35)
        for k in range(2):
            for s in range(6):
                A(f"  ds_read_b128 {vq(POOL+4*s)}, v{vKA+(s&1)} offset:{k*6144 + (s>>1)*128}")
            for s in range(6):
                A(f"  s_waitcnt lgkmcnt({5-s})")
                for b in (2, 3):
                    c = self.cinit("p2", k, b) if s == 0 else vq(Sreg(k, b))
                    A(f"  v_mfma_f32_16x16x32_bf16 {vq(Sreg(k,b))}, {vq(POOL+4*s)}, {Qop(b,s)}, {c}")
                if dm and (s < 5):
                    for l in dm.pop(0): A(l)
        for d in dm:
            for l in d: A(l)
        A("  s_waitcnt vmcnt(9)\n  s_barrier")
        dm = tile(sV, sVM0, 2, 34)
        A(f"  s_mul_i32 s4, s{sR4}, {TILE}\n  s_add_u32 s4, s4, s{sWP}")
        for j in range(3):
            dm.append([f"  s_add_u32 m0, s{sKM0}, 0", "  s_nop 0", f"  buffer_load_dwordx4 v{vDV+j}, s[{sK}:{sK+3}], s4 offen offset:{1024*j} lds"])
        for k in range(6): dm.append(["  " + x for x in self.qa_dma(k)])
        for f in range(4): A("  " + self.kread(f, 1))
        L = []
        for b in (2, 3):
            self.rowmax(L, b, TMP+4, TMP+6)
            for k in range(2):
                for r in range(4): L.append(f"  v_sub_f32 v{Sreg(k,b)+r}, v{Sreg(k,b)+r}, v{TMP+4}")
            L.append(f"  v_sub_f32 v{MNEG+b}, 0, v{TMP+4}")
            for r in range(4): L.append(f"  v_sub_f32 v{NEGM+4*b+r}, 0, v{TMP+4}")
            for r in range(4): L.append(f"  v_sub_f32 v{NEGM1+4*(b-2)+r}, 0, v{TMP+4}")
            self.expcvt(L, b, 0)
        flat = [x for l in L for x in l.split("\n")]
        per = max(1, len(flat) // (len(dm) + 1))
        A("  s_nop 3")
        for k, l in enumerate(flat):
            A(l)
            if k % per == per - 1 and dm and not ("s_nop" in l or "v_mov_b32" in l or "permlane" in l or "v_exp" in l):
                for x in dm.pop(0): A(x)
        for d in dm:
            for x in d: A(x)
        A("  s_nop 1")
        for b in (2, 3):
            A(f"  v_mfma_f32_16x16x32_bf16 {vq(L0+4*b)}, {vq(ONES)}, {vq(Preg(0,b))}, {vq(L0+4*b)}")
        A(f"  s_mov_b32 s{sT}, 1")
        A(f"  s_cmp_ge_u32 s{sR1}, s{sDB}\n  s_cbranch_scc0 S1_NM\n  s_call_b64 s[{sRET}:{sRET+1}], MASK_p2\nS1_NM:")

    def gather_srd(self, ptr):
        A = self.A
        A(f"  s_mov_b32 s{sG}, s{ptr}\n  s_and_b32 s{sG+1}, s{ptr+1}, 0xffff\n  s_or_b32 s{sG+1}, s{sG+1}, 0x01800000\n  s_mov_b32 s{sG+2}, 2048\n  s_mov_b32 s{sG+3}, 0x20000")

    def prime(self, gt):
        A = self.A
        for gi in range(2):
            if gt == "K": Ti, qoff, newidx = gi, 0, gi == 0
            else: Ti, qoff, newidx = 0, gi*128, True
            so = ["0", f"s{sT1}", f"s{sT2}"][Ti]
            if newidx:
                for p in range(4): A(f"  ds_read_b32 v{PAIR+2*p}, v{vIA} offset:{qoff + 32*p}")
                A("  s_waitcnt lgkmcnt(0)")
            for p in range(4):
                A(f"  s_add_u32 m0, s{sGM0}, {gi*4096 + p*1024}\n  s_nop 0")
                A(f"  buffer_load_dwordx4 v[{PAIR+2*p}:{PAIR+2*p+1}], s[{sG}:{sG+3}], {so} idxen offen lds")

    def softmax8(self):
        A = self.A
        a, b, t0, t1 = GX, GX+1, TMP, TMP+1
        ctr = ["quad_perm:[1,0,3,2]", "quad_perm:[2,3,0,1]", "row_half_mirror"]
        A(f"  v_mov_b32 v{t0}, v{a}\n  v_mov_b32 v{t1}, v{b}\n  s_nop 0")
        for c in ctr:
            A(f"  v_max_f32_dpp v{t0}, v{t0}, v{t0} {c} row_mask:0xf bank_mask:0xf\n  v_max_f32_dpp v{t1}, v{t1}, v{t1} {c} row_mask:0xf bank_mask:0xf\n  s_nop 0")
        A(f"  v_sub_f32 v{a}, v{a}, v{t0}\n  v_sub_f32 v{b}, v{b}, v{t1}\n  v_exp_f32 v{a}, v{a}\n  v_exp_f32 v{b}, v{b}\n  s_nop 0")
        A(f"  v_mov_b32 v{t0}, v{a}\n  v_mov_b32 v{t1}, v{b}\n  s_nop 0")
        for c in ctr:
            A(f"  v_add_f32_dpp v{t0}, v{t0}, v{t0} {c} row_mask:0xf bank_mask:0xf\n  v_add_f32_dpp v{t1}, v{t1}, v{t1} {c} row_mask:0xf bank_mask:0xf\n  s_nop 0")
        A(f"  v_rcp_f32 v{t0}, v{t0}\n  v_rcp_f32 v{t1}, v{t1}\n  s_nop 0\n  v_mul_f32 v{t0}, s{sGG}, v{t0}\n  v_mul_f32 v{t1}, s{sGG}, v{t1}")
        A(f"  v_mul_f32 v{a}, v{a}, v{t0}\n  v_mul_f32 v{b}, v{b}, v{t1}\n  v_cvt_pk_bf16_f32 v{a}, v{a}, v{b}")
        A(f"  v_lshrrev_b32 v{t0}, 4, v{vLIN}          ; lane")
        A(f"  v_lshrrev_b32 v{t1}, 4, v{t0}\n  v_lshlrev_b32 v{t1}, 6, v{t1}           ; G*64")
        A(f"  v_bfe_u32 v{TMP+2}, v{t0}, 3, 1\n  v_lshl_add_u32 v{t1}, v{TMP+2}, 4, v{t1}\n  v_and_b32 v{t0}, 7, v{t0}\n  v_lshl_add_u32 v{t1}, v{t0}, 1, v{t1}")
        A(f"  s_lshl_b32 s3, s{sWAVE}, 10\n  s_lshr_b32 s4, s{sB}, 1\n  s_lshl_b32 s4, s4, 8\n  s_add_u32 s3, s3, s4\n  s_add_u32 s3, s3, {PA}\n  v_add_u32 v{t1}, s3, v{t1}")
        A(f"  ds_write_b16 v{t1}, v{a}\n  ds_write_b16_d16_hi v{t1}, v{a} offset:32")

    def vphase_setup(self):
        A = self.A
        t = TMP
        A(f"  v_lshrrev_b32 v{t}, 4, v{vLIN}          ; lane")
        A(f"  v_lshrrev_b32 v{t+1}, 4, v{t}           ; G\n  v_bfe_u32 v{t+2}, v{t}, 2, 2          ; r")
        A(f"  v_lshlrev_b32 v{vVG}, 10, v{t+1}\n  v_lshl_add_u32 v{vVG}, v{t+2}, 7, v{vVG}")
        A(f"  v_and_b32 v{t+2}, 2, v{t+2}\n  v_bfe_u32 v{t+3}, v{t}, 1, 1\n  v_xor_b32 v{t+2}, v{t+2}, v{t+3}\n  v_and_b32 v{t+3}, 1, v{t+1}\n  v_lshlrev_b32 v{t+3}, 2, v{t+3}\n  v_xor_b32 v{t+2}, v{t+2}, v{t+3}")
        A(f"  v_lshl_add_u32 v{vVG}, v{t+2}, 4, v{vVG}\n  v_and_b32 v{t+2}, 1, v{t}\n  v_lshl_add_u32 v{vVG}, v{t+2}, 3, v{vVG}\n  v_add_u32 v{vVG}, s{sGM0}, v{vVG}")
        for x in range(1, 4): A(f"  v_xor_b32 v{vVG+x}, {32*x}, v{vVG}")
        A(f"  v_and_b32 v{t+2}, 15, v{t}\n  v_sub_u32 v{t+3}, v{t+2}, v{t+1}\n  s_lshl_b32 s3, s{sWAVE}, 10\n  s_add_u32 s3, s3, {PA}")
        A(f"  v_lshlrev_b32 v{t+4}, 4, v{t+2}\n  v_add_u32 v{t+4}, s3, v{t+4}\n  v_mov_b32 v{t+5}, {ZA}")
        for c in range(4):
            A(f"  v_cmp_eq_u32 vcc, {4*c}, v{t+3}\n  s_nop 1\n  v_cndmask_b32 v{vPB+c}, v{t+5}, v{t+4}, vcc")
        A(f"  s_call_b64 s[{sRET}:{sRET+1}], VSET_0")

    def vphase_early(self):
        A = self.A
        t = TMP
        A(f"  v_lshrrev_b32 v{t}, 7, v{vLIN}\n  v_lshlrev_b32 v{t}, 2, v{t}\n  s_lshl_b32 s3, s{sWAVE}, 11\n  s_add_u32 s3, s3, {IDX}\n  v_add_u32 v{vIA}, s3, v{t}")
        self.gather_srd(sMVS)
        self.prime("V")

    def drain(self, betas, par, slot):
        A = self.A
        seq = []
        for d in range(12):
            r = POOL + 16 + (d % 4)*4
            if d >= 4:
                for b in betas:
                    seq.append(("M", f"v_mfma_f32_16x16x32_bf16 {aq(Oreg(b,d-4))}, {vq(r)}, {vq(Preg(par,b))}, {aq(Oreg(b,d-4))}", None))
            seq.append(("T", f"ds_read_b64_tr_b16 v[{r}:{r+1}], v{vVA+(d&3)} offset:{slot*TILE + (d>>2)*128}", None))
            seq.append(("T", f"ds_read_b64_tr_b16 v[{r+2}:{r+3}], v{vVA+(d&3)} offset:{slot*TILE + 6144 + (d>>2)*128}", None))
        for d in range(8, 12):
            r = POOL + 16 + (d % 4)*4
            for b in betas:
                seq.append(("M", f"v_mfma_f32_16x16x32_bf16 {aq(Oreg(b,d))}, {vq(r)}, {vq(Preg(par,b))}, {aq(Oreg(b,d))}", None))
        lines, _ = finalize(seq)
        for l in lines: A(l)

    def epilogue(self, betas, rowreg, T0):
        A = self.A
        OMR = [QV + 4*k for k in range(8)] + [Preg(0, 0), Preg(0, 1), Preg(1, 0), Preg(1, 1)]
        X = Sreg(0, 0); ST = Sreg(1, 0); WA = TMP; RA = TMP + 4
        A(f"  s_add_u32 s3, s{rowreg}, 4096\n  s_add_u32 s4, s{rowreg}, 8192")
        for qd in range(12):
            sreg, off = (f"s{rowreg}", qd*1024) if qd < 4 else (("s3", (qd-4)*1024) if qd < 8 else ("s4", (qd-8)*1024))
            A(f"  buffer_load_dwordx4 {vq(OMR[qd])}, v{vLIN}, s[{sW}:{sW+3}], {sreg} offen offset:{off}")
        A(f"  v_lshrrev_b32 v{X}, 4, v{vLIN}\n  v_and_b32 v{X+1}, 15, v{X}\n  v_lshrrev_b32 v{X+2}, 4, v{X}")
        A(f"  v_lshrrev_b32 v{X+3}, 1, v{X+2}\n  v_and_b32 v{X+4}, 7, v{X+1}\n  v_xor_b32 v{X+3}, v{X+3}, v{X+4}\n  v_lshlrev_b32 v{X+3}, 4, v{X+3}")
        A(f"  v_lshl_add_u32 v{WA}, v{X+1}, 7, v{X+3}\n  v_and_b32 v{X+3}, 1, v{X+2}\n  v_lshl_add_u32 v{WA}, v{X+3}, 3, v{WA}\n  s_add_u32 s5, s{sGM0}, 8192\n  v_add_u32 v{WA}, s5, v{WA}")
        for x in range(1, 4): A(f"  v_xor_b32 v{WA+x}, {32*x}, v{WA}")
        A(f"  v_lshrrev_b32 v{X+3}, 3, v{X}\n  v_and_b32 v{X+4}, 7, v{X}\n  v_xor_b32 v{X+5}, v{X+4}, v{X+3}\n  v_lshlrev_b32 v{X+5}, 4, v{X+5}\n  v_lshl_add_u32 v{RA}, v{X+3}, 7, v{X+5}\n  v_add_u32 v{RA}, s5, v{RA}")
        A(f"  v_mul_u32_u24 v{RA+1}, 384, v{X+3}\n  v_lshl_add_u32 v{RA+1}, v{X+4}, 4, v{RA+1}")
        for bi, b in enumerate(betas):
            A(f"  v_rcp_f32 v{RA+2+bi}, v{L0+4*b}")
        A("  s_nop 0")
        for bi, b in enumerate(betas):
            A(f"  v_mul_f32 v{RA+2+bi}, s{sG1}, v{RA+2+bi}")
        units = [(bi, T) for bi in range(2) for T in range(3)]
        nst = 0
        def flush(u):
            bi, T = units[u]; buf = (u & 1)*2048
            A(f"  ds_read_b128 {vq(ST)}, v{RA} offset:{buf}\n  ds_read_b128 {vq(ST+4)}, v{RA} offset:{buf+1024}")
            A(f"  s_add_u32 s6, s{rowreg}, {bi*6144 + T*128}\n  s_add_u32 s7, s6, 3072")
        def store(u):
            fl = self.P.get('ostf', '')
            if "noos" in self.ab:
                A("  s_waitcnt lgkmcnt(0)"); return
            A(f"  buffer_store_dwordx4 {vq(ST)}, v{RA+1}, s[{sO}:{sO+3}], s6 offen {fl}")
            A(f"  buffer_store_dwordx4 {vq(ST+4)}, v{RA+1}, s[{sO}:{sO+3}], s7 offen {fl}")
        for u, (bi, T) in enumerate(units):
            b = betas[bi]; f = RA + 2 + bi; buf = (u & 1)*2048
            A(f"  s_waitcnt vmcnt({(10 - 2*u) + (0 if 'noos' in self.ab else max(0, 2*(u-1)))})")
            for x in range(4):
                d = 4*T + x
                for h in range(2):
                    j = 2*d + h
                    om = OMR[6*bi + j // 4] + j % 4; a = Oreg(b, d) + 2*h
                    A(f"  v_accvgpr_read_b32 v{X}, a{a}\n  v_accvgpr_read_b32 v{X+1}, a{a+1}\n  v_lshlrev_b32 v{X+2}, 16, v{om}\n  v_and_b32 v{X+3}, s{sHI}, v{om}")
                    A(f"  v_fma_f32 v{X}, v{X}, v{f}, v{X+2}\n  v_fma_f32 v{X+1}, v{X+1}, v{f}, v{X+3}\n  v_cvt_pk_bf16_f32 v{X+4+2*(x&1)+h}, v{X}, v{X+1}")
                A(f"  ds_write_b64 v{WA+x}, v[{X+4+2*(x&1)}:{X+5+2*(x&1)}] offset:{buf}")
                if x == 1 and u >= 1:
                    A("  s_waitcnt lgkmcnt(2)")
                    flush(u - 1)
                if x == 3 and u >= 1:
                    A("  s_waitcnt lgkmcnt(2)")
                    store(u - 1)
        A("  s_waitcnt lgkmcnt(0)")
        flush(5)
        A("  s_waitcnt lgkmcnt(0)")
        store(5)

    def build(self):
        A = self.A
        self.routines()
        names = []
        na = self.body("p2", None, 0); nb = self.body("p2", None, 1)
        for kind in ("p1", "p2"):
            for gt in ("K", "V"):
                for H in (0, 1): names.append(self.body(kind, gt, H))
        tr = {nm: vm_trace(self.bodies[nm]["seq"]) for nm in self.bodies}
        op = lambda t, k: [("op", t)]*k
        prime_tr = op(("G", 6), 4) + op(("G", 7), 4)
        pre = op(("R", "pre0"), 6) + op(("R", "pre1"), 9) + op(("Q", "q"), 6)
        preds = {
            na: [pre], nb: [tr[na] + prime_tr],
            "P1K0": [tr["P1K1"], tr[na] + prime_tr + tr[nb]],
            "P1K1": [tr["P1K0"]],
            "P1V0": [tr["P1V1"]],
            "P1V1": [tr["P1V0"]],
            "P2K0": [tr["P2K1"], tr["P1K1"]],
            "P2K1": [tr["P2K0"]],
            "P2V0": [tr["P2V1"], tr["P1V1"]],
            "P2V1": [tr["P2V0"]],
        }
        self.prologue()
        self.stamp(1)
        self.step0()
        self.stamp(2)
        for l in self.emit_body(na, preds[na]): A(l)
        self.stamp(52)
        ops = [t for k, t in tr[na] if k == "op"]
        lastq = max(i for i, t in enumerate(ops) if t and t[0] == "Q")
        A(f"  s_waitcnt vmcnt({len(ops) - 1 - lastq}) lgkmcnt(0)\n  v_add_u32 v{Sreg(0,0)}, s{sGM0}, v{vKA}\n  v_xor_b32 v{Sreg(0,0)+1}, 64, v{Sreg(0,0)}")
        self.stamp(53)
        for b in (0, 1):
            self.qproc_inplace(b)
        self.gather_srd(sMK)
        A(f"  s_mov_b32 s{sMVS}, s{sMV}\n  s_and_b32 s{sMVS+1}, s{sMV+1}, 0xffff\n  s_mov_b32 s{sMVS+2}, {HEAD}\n  s_mov_b32 s{sMVS+3}, 0x20000")
        A(f"  s_mul_i32 s{sTOF2}, s{sI}, 98304\n  s_lshl_b32 s5, s{sWAVE}, 13\n  s_add_u32 s{sTOF2}, s{sTOF2}, s5\n  s_mov_b32 s{sTOFF}, 0")
        self.prime("K")
        A(f"  s_call_b64 s[{sRET}:{sRET+1}], CPQ_0")
        self.stamp(49)
        for l in self.emit_body(nb, preds[nb]): A(l)
        A(f"  s_call_b64 s[{sRET}:{sRET+1}], MASK_p1")
        A(f"  s_mov_b32 s{sB}, 0\n  s_mov_b32 s{sPH}, 1")
        self.stamp(3)
        A("  s_branch P1K0")
        for nm in names:
            B = self.bodies[nm]
            A(f".p2align 6\n{nm}:")
            self.stamp_dyn(16)
            for l in self.emit_body(nm, preds[nm]): A(l)
            self.stamp_dyn(32)
            kind, gt, H = B["kind"], B["gt"], B["H"]
            K = kind.upper()
            if gt == "K" and self.P.get("mvt", 1):
                A(f"  s_add_u32 s3, s{sB}, s{sI}\n  s_and_b32 s3, s3, {self.P.get('mvt_mask', 1)}\n  s_cmp_lg_u32 s3, 0\n  s_cbranch_scc1 {nm}_NT")
                A(f"  s_cmp_lt_u32 s{sB}, {self.P.get('mvt_first', 1)}\n  s_cbranch_scc1 {nm}_NT")
                A(f"  s_mov_b32 m0, {DUMMY}\n  s_nop 0\n  buffer_load_dword v{vTCH}, s[{sMVS}:{sMVS+3}], s{sTOF2} offen lds\n  s_add_u32 s{sTOF2}, s{sTOF2}, 32768\n  s_add_u32 s{sTOFF}, s{sTOFF}, 1\n  s_cmp_eq_u32 s{sTOFF}, 3\n  s_cselect_b32 s{sTOF2}, 0x40000000, s{sTOF2}")
                A(f"{nm}_NT:")
            if H == 0:
                if gt == "V" and kind == "p2":
                    A(f"  s_cmp_eq_u32 s{sB}, s{sEPA}\n  s_cbranch_scc0 {nm}_NE\n  s_call_b64 s[{sEPR}:{sEPR+1}], EPI_A\n{nm}_NE:")
                A(f"  s_add_u32 s{sB}, s{sB}, 1\n  s_branch {K}{gt}1")
                continue
            if gt == "K":
                A(f"  s_cmp_eq_u32 s{sB}, 7\n  s_cbranch_scc0 {nm}_NVE\n  s_call_b64 s[{sRET2}:{sRET2+1}], VEARLY\n{nm}_NVE:")
                for gm in range(4):
                    A(f"  s_cmp_eq_u32 s{sB}, {2*gm+1}\n  s_cbranch_scc0 {nm}_NK{gm}\n  s_call_b64 s[{sRET}:{sRET+1}], KEND_{gm}\n{nm}_NK{gm}:")
            else:
                for m in range(1, 4):
                    A(f"  s_cmp_eq_u32 s{sB}, {7 + 2*m}\n  s_cbranch_scc0 {nm}_NV{m}\n  s_call_b64 s[{sRET}:{sRET+1}], VSET_{m}\n{nm}_NV{m}:")
            if kind == "p1":
                A(f"  s_cmp_eq_u32 s{sB}, s{sB1LAST}\n  s_cbranch_scc0 {nm}_NP")
                self.stamp(4)
                self.drain([0, 1], 1, 3)
                A(f"  s_call_b64 s[{sRET}:{sRET+1}], MASK_p2\n  s_mov_b32 s{sPH}, 2")
                A(f"{nm}_NP:")
            if gt == "V":
                A(f"  s_cmp_eq_u32 s{sB}, s{sEPA}\n  s_cbranch_scc0 {nm}_NE\n  s_call_b64 s[{sEPR}:{sEPR+1}], EPI_A\n{nm}_NE:")
                A(f"  s_cmp_eq_u32 s{sB}, 15\n  s_cbranch_scc1 FINISH")
                A(f"  s_add_u32 s{sB}, s{sB}, 1")
                if kind == "p1": A(f"  s_cmp_eq_u32 s{sPH}, 2\n  s_cbranch_scc1 P2V0")
                A(f"  s_branch {K}V0")
            else:
                A(f"  s_add_u32 s{sB}, s{sB}, 1\n  s_cmp_eq_u32 s{sB}, 8\n  s_cbranch_scc1 SWITCH")
                if kind == "p1": A(f"  s_cmp_eq_u32 s{sPH}, 2\n  s_cbranch_scc1 P2K0")
                A(f"  s_branch {K}K0")
        A("SWITCH:")
        self.stamp(7)
        self.vphase_setup()
        A("  s_waitcnt vmcnt(0) lgkmcnt(0)")
        A(f"  s_cmp_eq_u32 s{sPH}, 2\n  s_cbranch_scc1 P2V0\n  s_branch P1V0")
        A("EPI_A:\n  s_nop 7")
        self.stamp(5)
        self.epilogue([0, 1], sROWA, QV)
        self.stamp(6)
        A(f"  s_setpc_b64 s[{sEPR}:{sEPR+1}]")
        A("VEARLY:")
        self.vphase_early()
        A(f"  s_setpc_b64 s[{sRET2}:{sRET2+1}]")
        A("FINISH:")
        self.stamp(8)
        self.drain([2, 3], 1, 3)
        A("  s_nop 7")
        self.stamp(9)
        self.epilogue([2, 3], sROWB, QV)
        if self.instr:
            A("  s_waitcnt vmcnt(0)")
            self.stamp(10)
            A("  s_memrealtime s[98:99]\n  s_load_dwordx2 s[4:5], s[0:1], 72\n  s_waitcnt lgkmcnt(0)")
            A(f"  s_lshl_b32 s100, s{sWAVE}, 8\n  s_add_u32 s100, s100, {STAMPA}\n  v_mov_b32 v2, s100\n  v_mov_b32 v3, s98\n  ds_write_b32 v2, v3 offset:48\n  s_getreg_b32 s3, hwreg(HW_REG_XCC_ID)\n  v_mov_b32 v3, s3\n  ds_write_b32 v2, v3 offset:52")
            A(f"  v_lshrrev_b32 v4, 2, v{vLIN}\n  v_add_u32 v5, s100, v4\n  s_waitcnt lgkmcnt(0)\n  ds_read_b32 v6, v5\n  s_waitcnt lgkmcnt(0)")
            A("  s_add_u32 s4, s4, 0x8000000\n  s_addc_u32 s5, s5, 0")
            A(f"  s_lshl_b32 s3, s2, 2\n  s_add_u32 s3, s3, s{sWAVE}\n  s_lshl_b32 s3, s3, 8\n  v_add_u32 v2, s3, v4")
            A("  global_store_dword v2, v6, s[4:5]")
        A("AT_END:\n  s_endpgm")
        for blk in self.ool:
            for l in blk: A(l)
        import tileorder
        pm = self.P.get("perm", 2)
        if pm == 0: order = {i: [32, 33, 34, 35] + list(range(4*i + 4)) + [x for x in range(4*i + 4, 64 - 4*i) if not 32 <= x < 36] for i in range(8)}
        else: order, _ = tileorder.solve3(margin=self.P.get("margin", 2.0), quota=tuple(self.P.get("quota", (12, 10, 6))), pick=self.P.get("pick", "new"))
        A(".p2align 6\n.type TILETAB,@object\nTILETAB:")
        for i in range(8):
            row = order[i] + [255]*(64 - len(order[i]))
            A("  .byte " + ", ".join(str(x) for x in row))
        A(".size TILETAB, 512")
        return A

def desc(name, vgpr, accum, sgpr=102):
    return f""".section .rodata,"a"
.p2align 6
.amdhsa_kernel {name}
  .amdhsa_next_free_vgpr {vgpr}
  .amdhsa_next_free_sgpr {sgpr}
  .amdhsa_accum_offset {accum}
  .amdhsa_group_segment_fixed_size 0
  .amdhsa_kernarg_size 80
  .amdhsa_user_sgpr_count 2
  .amdhsa_user_sgpr_kernarg_segment_ptr 1
  .amdhsa_system_sgpr_workgroup_id_x 1
.end_amdhsa_kernel
"""
HDR = """; Memory-augmented causal attention (Memorizing Transformer block), hand-scheduled for gfx950.
; 16x16x32 bf16 MFMA, kNN memory attention (LDS-DMA row gather) interleaved in the same instruction stream.
; @launch grid=(256,1,1) block=(256,1,1) lds=163840
.amdgcn_target "amdgcn-amd-amdhsa--gfx950"
.text
"""
if __name__ == "__main__":
    instr = "instr" in sys.argv
    params = {"touch": 0, "coop": 0, "ostf": "sc1", "omf": "sc1", "iters": 600000}; tag = ""; ab = ""
    for a in sys.argv[1:]:
        if a.startswith("P="): params.update(json.loads(a[2:]))
        if a.startswith("tag="): tag = a[4:]
        if a.startswith("ab="): ab = a[3:]
    g = Gen(instr, params, ab)
    A = g.build()
    full = HDR + A.text() + desc(KNAME, 512, 256)
    fn = f"fused{'_i' if instr else ''}{tag}.s"
    open(fn, "w").write(full)
    print(fn, "bytes", len(full))
```

```python
def times(i):
    T = []; t = 0.0
    N = 64 - 4*i
    for s in range(N):
        T.append(t)
        p1 = s < 4*i + 4
        t += 2.0 if p1 else 1.0
        if s == 4*i + 3: t += 0.8
        if s >= 1:
            if p1: b = (s - 2)//2 if (s - 2) % 2 == 1 else None
            else:
                u = s - (4*i + 4); b = 2*i + 1 + u//4 if u % 4 == 3 else None
            if b is not None:
                if b < 8 and b % 2 == 1: t += 0.5
                if b == 7: t += 2.0
                if b == max(2*i, 11): t += 3.5
    return T
def solve(margin=2.0, buf=4, verbose=False):
    TT = [times(i) for i in range(8)]
    INF = 1e9
    touch = {x: INF for x in range(64)}
    for i in range(8):
        for s in range(4*i + 4):
            ti = TT[i][max(s - 4, 0)]
            touch[s] = min(touch[s], ti)
    order = {i: list(range(4*i + 4)) for i in range(8)}
    remain = {i: set(range(4*i + 4, 64 - 4*i)) for i in range(8)}
    leads = {i: 0 for i in range(8)}; stalls = {i: 0 for i in range(8)}
    ev = sorted((TT[i][max(s - 4, 0)], i, s) for i in range(8) for s in range(4*i + 4, 64 - 4*i))
    started = lambda j, ti: TT[j][max(4*j + 4 - 4, 0)] <= ti
    BUF = buf
    for (ti, i, s) in ev:
        free = [x for x in remain[i] if touch[x] + margin <= ti]
        cand = [x for x in remain[i] if touch[x] == INF]
        act = [j for j in range(8) if remain[j] and started(j, ti)]
        bufmin = min(len([x for x in remain[j] if touch[x] <= ti])
                     if [x for x in remain[j] if touch[x] == INF] else 99 for j in act)
        able = [j for j in act if [x for x in remain[j] if touch[x] == INF]]
        turn = min(able, key=lambda j: (leads[j], -j)) if able else None
        lead = cand and (not free or (bufmin <= BUF and turn == i))
        if lead:
            def score(x): return sum(1 for j in range(8) if j != i and x in remain[j])
            x = max(cand, key=lambda x: (score(x), -x))
            leads[i] += 1
        elif free:
            x = min(free, key=lambda x: touch[x])
        else:
            x = min(remain[i], key=lambda x: touch[x]); stalls[i] += 1
        touch[x] = min(touch[x], ti)
        remain[i].discard(x); order[i].append(x)
    if verbose:
        for i in range(8): print(i, "leads", leads[i], "stalls", stalls[i], order[i][4*i+4:])
    return order, leads
if __name__ == "__main__":
    for buf in (2,3,4):
        print("buf",buf); solve(buf=buf, verbose=True)


def solve2(margin=2.0, quota=(12, 10, 6, 4), pick="old", verbose=False):
    TT = [times(i) for i in range(8)]
    INF = 1e9
    touch = {x: INF for x in range(64)}
    for i in range(8):
        for s in range(4*i + 4):
            touch[s] = min(touch[s], TT[i][max(s - 4, 0)])
    lead = {}; hi = 63
    for i, q in enumerate(quota):
        lead[i] = list(range(hi, hi - q, -1)); hi -= q
    order = {i: list(range(4*i + 4)) for i in range(8)}
    remain = {i: set(range(4*i + 4, 64 - 4*i)) for i in range(8)}
    leads = {i: 0 for i in range(8)}
    ev = sorted((TT[i][max(s - 4, 0)], i, s) for i in range(8) for s in range(4*i + 4, 64 - 4*i))
    for (ti, i, s) in ev:
        mine = [x for x in lead.get(i, []) if x in remain[i] and touch[x] == INF]
        free = [x for x in remain[i] if touch[x] + margin <= ti]
        if mine:
            x = mine[0]; leads[i] += 1
        elif free:
            x = min(free, key=lambda x: touch[x]) if pick == "old" else max(free, key=lambda x: touch[x])
        else:
            x = min(remain[i], key=lambda x: (touch[x], x))
            if touch[x] > ti: leads[i] += 1
        touch[x] = min(touch[x], ti)
        remain[i].discard(x); order[i].append(x)
    if verbose:
        for i in range(8): print(i, "leads", leads[i], order[i][4*i+4:])
    return order, leads
if __name__ == "__main__":
    print("solve2"); solve2(verbose=True); print(); solve2(quota=(12,10,6,4), pick="new", verbose=True)


def times3(i):
    T = []; t = 0.0; N = 64 - 4*i
    for s in range(N):
        T.append(t)
        p1 = 4 <= s < 4*i + 8
        t += 2.0 if p1 else 1.0
        if s == 2: t += 1.2
        if s == 4*i + 7: t += 0.8
        b = None
        if p1 and (s - 4) % 2 == 1: b = (s - 4)//2
        if s >= 4*i + 8 and (s - 4*i - 8) % 4 == 3: b = 2*i + 2 + (s - 4*i - 8)//4
        if b is not None:
            if b < 8 and b % 2 == 1: t += 0.5
            if b == 7: t += 2.0
            if b == max(2*i + 1, 11): t += 3.5
    return T
def solve3(margin=2.0, quota=(12, 10, 6), pick="new", verbose=False):
    TT = [times3(i) for i in range(8)]
    INF = 1e9
    touch = {x: INF for x in range(64)}
    for x in range(32, 36): touch[x] = 0
    for i in range(8):
        for x in range(4*i + 4): touch[x] = min(touch[x], TT[i][x])
    lead = {}; hi = 63
    for i, q in enumerate(quota):
        lead[i] = [x for x in range(hi, hi - q, -1) if x >= 36]; hi -= q
    order = {i: [32, 33, 34, 35] + list(range(4*i + 4)) for i in range(8)}
    remain = {i: set(x for x in range(4*i + 4, 64 - 4*i) if not 32 <= x < 36) for i in range(8)}
    leads = {i: 0 for i in range(8)}
    ev = sorted((TT[i][s - 4], i, s) for i in range(8) for s in range(4*i + 8, 64 - 4*i))
    for (ti, i, s) in ev:
        mine = [x for x in lead.get(i, []) if x in remain[i] and touch[x] == INF]
        free = [x for x in remain[i] if touch[x] + margin <= ti]
        if mine: x = mine[0]; leads[i] += 1
        elif free: x = min(free, key=lambda x: touch[x]) if pick == "old" else max(free, key=lambda x: touch[x])
        else:
            x = min(remain[i], key=lambda x: (touch[x], x))
            if touch[x] > ti: leads[i] += 1
        touch[x] = min(touch[x], ti)
        remain[i].discard(x); order[i].append(x)
    if verbose:
        for i in range(8): print(i, "leads", leads[i], order[i][4*i+8:])
    for i in range(8): assert sorted(order[i]) == list(range(64 - 4*i)), i
    return order, leads
if __name__ == "__main__":
    print("solve3"); solve3(verbose=True)


def solve4(mode="rot", verbose=False):
    order = {}
    for i in range(8):
        o = [32, 33, 34, 35] + list(range(4*i + 4))
        for tau in range(4*i + 4, 32):
            n = (tau - 4)//4 + 1
            lead = (tau % n) == i if mode == "rot" else (i == 0 if mode == "zero" else (i + tau) % 2 == 0)
            hi = 67 - tau
            o += [hi, tau] if lead else [tau, hi]
        order[i] = o
        assert sorted(o) == list(range(64 - 4*i)), i
    if verbose:
        for i in range(8): print(i, order[i][4*i+8:])
    return order, None
if __name__ == "__main__":
    print("solve4"); solve4(verbose=True)
```

```python
import sys, json
from asmlib import Asm, fix_hazards
from sched3 import Item, optimize, emit, vm_trace, finalize

HEAD = 786432
LOG2E = 1.4426950408889634
CSCALE = (192 ** -0.5) * LOG2E
def f2u(x):
    import struct
    return struct.unpack("<I", struct.pack("<f", x))[0]
KNAME = "standalone__memory_aug_memorizing_tr__prompt_kernel"

TILE = 12288
KR = 0
VR = 49152
GR = 98304
IDX = 147456
PA = 155648
ZA = 159744
LDS_BYTES = 163840
STAMPA = 161024
DUMMY = 160768
QAREA = [73728, 86016, 24576, 36864]

vDUM = 0; vIA = 1; vKA = 2; vVA = 4; vDV = 8; vX = 11; vNINF = 12; vLIN = 13; vT0 = 14; vTCH = 15
S0 = 16; P0 = 48; NEGM = 80; L0 = 96; ONES = 112; MNEG = 116; QV = 120; POOL = 152; TMP = 184; NEGM1 = 192
PAIR = 200
GF = 208
GQ = 216
GD = 240
GX = 248
vKG = 250
vPW = 252
ACC = 216
GB = 232
vVG = 240
vPB = 244
OUTT = 248
vSTAMP = 0

def vq(r): return f"v[{r}:{r+3}]"
def aq(r): return f"a[{r}:{r+3}]"
def Sreg(k, b): return S0 + k*16 + b*4
def Preg(par, b): return P0 + par*16 + b*4
def Oreg(b, d): return (b*12 + d)*4
def Qop(b, s):
    if b >= 2: return aq(192 + ((b-2)*6 + s)*4)
    if b == 0 and s < 4: return aq(240 + s*4)
    k = (s - 4) if b == 0 else (2 + s)
    return vq(QV + k*4)
def pool(z): return POOL + (z % 8)*4

sK, sV, sG, sO, sW = 8, 12, 16, 20, 24
sWAVE, sI, sH, sN = 28, 29, 30, 31
sT, sB, sKOFF, sSPEC = 32, 33, 34, 35
sDA, sDB, sB1LAST, sEPA = 36, 37, 38, 39
sD, sTMP = 40, 41
sMASK = 42
sTHR = 50; sKM0 = 51; sVM0 = 52; sGM0 = 53; sC = 54; sHI = 55; sG1 = 56; sGG = 57
sROWA, sROWB = 58, 59
sT1, sT2 = 60, 61
sOM0, sOM1 = 62, 63
sCMP = 64
sFLAG = 66
sMK = 68
sMV = 70
sRET = 72
sRET2 = 4
sTS = 76
sSEL = 80
sVT = 80; sVI = 83; sVP = 86; sVO = 90
sTOFF = 96
sTOF2 = 97
sMVS = 68
sEPR = 94
sST = 98
sR0, sR1, sR2, sR3, sR4 = 76, 77, 78, 79, 74
sWP = 75
sQO = 35
sPH = 34
vSEQ = 0

class Gen:
    def __init__(self, instr=False, params=None, ablate=""):
        self.A = Asm(); self.ool = []; self.instr = instr; self.P = params or {}; self.ab = ablate
        self.bodies = {}
    def stamp(self, k):
        if not self.instr: return
        self.A(f"  s_memtime s[{sST}:{sST+1}]\n  s_lshl_b32 s100, s{sWAVE}, 8\n  s_add_u32 s100, s100, {STAMPA + 4*k}\n  s_waitcnt lgkmcnt(0)\n  v_mov_b32 v{TMP+6}, s{sST}\n  v_mov_b32 v{TMP+7}, s100\n  ds_write_b32 v{TMP+7}, v{TMP+6}")
    def stamp_dyn(self, base):
        if not self.instr: return
        self.A(f"  s_memtime s[{sST}:{sST+1}]\n  s_lshl_b32 s100, s{sWAVE}, 6\n  s_add_u32 s100, s100, s{sB}\n  s_lshl_b32 s100, s100, 2\n  s_add_u32 s100, s100, {STAMPA + 4*base}\n  s_waitcnt lgkmcnt(0)\n  v_mov_b32 v{TMP+6}, s{sST}\n  v_mov_b32 v{TMP+7}, s100\n  ds_write_b32 v{TMP+7}, v{TMP+6}")

    def kread(self, f, slot):
        k, s = divmod(f, 6)
        return f"ds_read_b128 {vq(pool(f))}, v{vKA+(s&1)} offset:{slot*TILE + k*6144 + (s>>1)*128}"
    def vread(self, d, rho, slot):
        r = pool(12 + d) + 2*rho
        return f"ds_read_b64_tr_b16 v[{r}:{r+1}], v{vVA+(d&3)} offset:{slot*TILE + rho*6144 + (d>>2)*128}"
    def cinit(self, kind, k, b):
        mb = (0, 1) if kind == "p1" else (2, 3)
        if k == 1 and b in mb: return vq(NEGM1 + 4*mb.index(b))
        return vq(NEGM + 4*b)

    def step_parts(self, kind, tm4):
        P = self.P.get(kind, {})
        par = tm4 & 1
        qb = [0, 1, 2, 3] if kind == "p1" else [2, 3]
        nq = len(qb); NQ = 12*nq
        mf = []
        for f in range(12):
            k, s = divmod(f, 6)
            for b in qb:
                c = self.cinit(kind, k, b) if s == 0 else vq(Sreg(k, b))
                mf.append(f"v_mfma_f32_16x16x32_bf16 {vq(Sreg(k,b))}, {vq(pool(f))}, {Qop(b,s)}, {c}")
        pv = []
        for d in range(12):
            for b in qb:
                pv.append(f"v_mfma_f32_16x16x32_bf16 {aq(Oreg(b,d))}, {vq(pool(12+d))}, {vq(Preg(par^1,b))}, {aq(Oreg(b,d))}")
        rs = [f"v_mfma_f32_16x16x32_bf16 {vq(L0+4*b)}, {vq(ONES)}, {vq(Preg(par,b))}, {vq(L0+4*b)}" for b in qb]
        RSD = P.get("RSD", 9 if nq == 4 else 9)
        rs_pos = NQ + RSD*nq
        mf = mf + pv[:RSD*nq] + rs + pv[RSD*nq:]
        return dict(kind=kind, tm4=tm4, par=par, qb=qb, nq=nq, NQ=NQ, mf=mf, RSD=RSD, rs_pos=rs_pos, n=len(mf), P=P)

    def step_streams(self, sp, base, F, name, last_in_body):
        kind, tm4, par, qb, nq, NQ, RSD, rs_pos, n, P = (sp[k] for k in ("kind","tm4","par","qb","nq","NQ","RSD","rs_pos","n","P"))
        nrs = len(qb)
        def G(a): return F(base + a)
        def pv(d): return NQ + d*nq + (nrs if d >= RSD else 0)
        LEAD = P.get("LEAD", 7)
        BG = P.get("BG", NQ - 2)
        KW = P.get("KW", 5)
        pair = P.get("pair", nq == 2)
        kslot = tm4; knext = (tm4 + 1) % 4; vslot = (tm4 + 3) % 4
        end = G(n - 1)
        ks = []
        for f in range(4, 12):
            use = f*nq
            if pair and f % 2 == 1: use = (f-1)*nq
            lo = G((f-8)*nq + nq - 1) if f >= 8 else G(0) - (1 if base > 0 else 0)
            lo = max(lo, G(0))
            hi = min(G(use) - LEAD, G(BG) - KW)
            ks.append(Item(self.kread(f, kslot), "D", lo, max(hi, lo)))
        vs = []
        for d in range(12):
            use = pv(d)
            if pair and d % 2 == 1: use = pv(d-1)
            prev = 4 + d
            free = (prev*nq + nq - 1) if prev < 12 else pv(prev - 12) + nq - 1
            lo = G(free); hi = max(G(use) - LEAD, lo)
            vs.append(Item(self.vread(d, 0, vslot), "T", lo, hi)); vs.append(Item(self.vread(d, 1, vslot), "T", lo, hi))
        kn = []
        for f in range(4):
            lo = max(G(pv(f + 4) + nq - 1), G(BG) + 1)
            hi = end if nq == 4 else min(end, end - LEAD + 2*(f - f % 2) + 2)
            kn.append(Item(self.kread(f, knext), "D", lo, max(lo, hi)))
        sm = []; ti = 0
        for k in range(2):
            pend = None
            for bi, b in enumerate(qb):
                ready = G((6*k + 5)*nq + bi) + 4
                hi = G(rs_pos) - 2
                for h in range(2):
                    s = Sreg(k, b) + 2*h
                    t0 = TMP + (ti % 4)*2; ti += 1
                    sm.append(Item(f"v_exp_f32 v{t0}, v{s}", "E", ready, hi))
                    if pend: sm.append(pend)
                    sm.append(Item(f"v_exp_f32 v{t0+1}, v{s+1}", "E", ready, hi))
                    pend = Item(f"v_cvt_pk_bf16_f32 v{Preg(par,b)+2*k+h}, v{t0}, v{t0+1}", "V", ready, hi)
            pend.sep = 1; sm.append(pend)
        ck = []
        cg = G(rs_pos + nrs - 1) + 4
        lr = [L0 + 4*b for b in qb]
        chi = max(cg + 1, end - 2)
        if nq == 4:
            ck.append(Item(f"v_max3_f32 v{vT0}, v{lr[0]}, v{lr[1]}, v{lr[2]}", "V", cg, chi))
            ck.append(Item(f"v_max_f32 v{vT0}, v{vT0}, v{lr[3]}", "V", cg, chi))
        else:
            ck.append(Item(f"v_max_f32 v{vT0}, v{lr[0]}, v{lr[1]}", "V", cg, chi))
        ck.append(Item(f"v_cmp_nge_f32 s[{sCMP}:{sCMP+1}], s{sTHR}, v{vT0}", "V", cg, chi))
        b0 = G(BG) - 1
        sKO, sVO_ = (62, 63) if par == 0 else (6, 7)
        sc = [Item(f"s_mov_b32 s{sR0}, s{sR1}", "S", G(0), b0), Item(f"s_mov_b32 s{sR1}, s{sR2}", "S", G(0), b0),
              Item(f"s_mov_b32 s{sR2}, s{sR3}", "S", G(0), b0), Item(f"s_mov_b32 s{sR3}, s{sR4}", "S", G(0), b0),
              Item(f"s_add_u32 s{sD}, s{sT}, 4", "S", G(0), b0),
              Item(f"v_readlane_b32 s{sR4}, v{vSEQ}, s{sD}", "V", G(0), b0 - 4, sep=1),
              Item(f"s_mul_i32 s{sVO_}, s{sR2}, {TILE}", "S", G(0), b0, sep=1), Item(f"s_add_u32 s{sVO_}, s{sVO_}, s{sWP}", "S", G(0), b0),
              Item(f"s_mul_i32 s{sKO}, s{sR4}, {TILE}", "S", G(0), b0, sep=2), Item(f"s_add_u32 s{sKO}, s{sKO}, s{sWP}", "S", G(0), b0),
              Item(f"s_add_u32 s{sT}, s{sT}, 1", "S", G(0), end - 2)]
        initA = (name == "P1K0s0")
        if kind == "p1":
            sc.append(Item([f"s_cmp_ge_u32 s{sR1}, s{sDA}", f"s_cselect_b64 s[{sFLAG}:{sFLAG+1}], -1, 0"], "S", G(0), end - 1))
            if initA: sc.append(Item([f"s_cmp_eq_u32 s{sT}, 5", f"s_cselect_b64 s[{sFLAG}:{sFLAG+1}], -1, s[{sFLAG}:{sFLAG+1}]"], "S", G(0), end - 1))
        else:
            sc.append(Item(f"s_max_u32 s{sD}, s{sR0}, s{sR1}", "S", G(0), end - 1))
            sc.append(Item([f"s_cmp_ge_u32 s{sD}, s{sDB}", f"s_cselect_b64 s[{sFLAG}:{sFLAG+1}], -1, 0"], "S", G(0), end - 1))
        R = []
        g0 = G(BG) + 1
        for j in range(3):
            R.append((f"s_add_u32 m0, s{sKM0}, {kslot*TILE}", f"buffer_load_dwordx4 v{vDV+j}, s[{sK}:{sK+3}], s{sKO} offen offset:{1024*j} {self.P.get('rf','')} lds", ("R", name)))
        vdst = (tm4 + 2) % 4
        for j in range(3):
            R.append((f"s_add_u32 m0, s{sVM0}, {vdst*TILE}", f"buffer_load_dwordx4 v{vDV+j}, s[{sV}:{sV+3}], s{sVO_} offen offset:{1024*j} {self.P.get('rf','')} lds", ("R", name)))
        fixed = {G(BG): [f"NEEDV R:{name}", "NEED " + " ".join(f"v{pool(11)+r}" for r in range(4)), "s_barrier"]}
        stub = f"{name}_SLOW"
        tail = [f"s_or_b64 vcc, s[{sCMP}:{sCMP+1}], s[{sFLAG}:{sFLAG+1}]", f"s_cbranch_vccnz {stub}", f"{stub}B:"]
        self.ool.append([f"{stub}:",
                         f"  s_cmp_eq_u64 s[{sCMP}:{sCMP+1}], 0", f"  s_cbranch_scc1 {stub}_M",
                         f"  s_call_b64 s[{sRET}:{sRET+1}], RARE_{kind}_{par}",
                         f"{stub}_M:"] +
                        ([f"  s_cmp_eq_u32 s{sT}, 5", f"  s_cbranch_scc0 {stub}_N", f"  s_call_b64 s[{sRET}:{sRET+1}], INIT_A", f"{stub}_N:"] if initA else []) +
                        [f"  s_call_b64 s[{sRET}:{sRET+1}], MASK_{kind}",
                         f"  s_branch {stub}B"])
        waits = []
        for f in range(12):
            if not (pair and f % 2 == 1) and (base + f*nq) > 0: waits.append(G(f*nq) - 1)
        for d in range(12):
            if not (pair and d % 2 == 1): waits.append(G(pv(d)) - 1)
        extra = {}
        if pair:
            for f in range(0, 12, 2): extra[G(f*nq)] = [f"v{pool(f+1)+r}" for r in range(4)]
            for d in range(0, 12, 2): extra[G(pv(d))] = [f"v{pool(12+d+1)+r}" for r in range(4)]
        return dict(streams=[ks, vs, kn, sm, ck, sc], R=R, Rwin=(g0, end), fixed=fixed, tail=(end, tail), waits=waits, extra=extra, BG=G(BG))

    def body(self, kind, gt, H):
        name = f"{kind.upper()}{gt or 'N'}{H}"
        tms = ([0, 1] if H == 0 else [2, 3]) if kind == "p1" else [0, 1, 2, 3]
        if gt is None: tms = [1, 2] if H == 0 else [3]
        sps = [self.step_parts(kind, t) for t in tms]
        att = []; bases = []
        for sp in sps: bases.append(len(att)); att += sp["mf"]
        nA = len(att)
        PG = self.P.get("g", {})
        gm = []
        if gt:
            for j in range(24):
                g, x = divmod(j, 4)
                if gt == "K":
                    cp, T = divmod(g, 3); cc, sg = divmod(x, 2)
                    c = "0" if (T == 0 and sg == 0) else vq(GD + 4*cc)
                    gm.append(f"v_mfma_f32_16x16x32_bf16 {vq(GD+4*cc)}, {vq(GQ+4*(2*T+sg))}, {vq(GF+4*(j&1))}, {c}")
                else:
                    gg = 6*H + g; jb, cp = divmod(gg, 4)
                    c = "0" if cp == 0 else vq(ACC + 4*x)
                    gm.append(f"v_mfma_f32_16x16x32_bf16 {vq(ACC+4*x)}, {vq(GF+4*(j&1))}, {vq(GB+4*(g&1))}, {c}")
            a0 = PG.get("a0", 14); a1 = nA - PG.get("aend", 14)
            ins = [a0 + int(round(j*(a1 - a0)/23.0)) for j in range(24)]
            pos = PG.get("pos_" + kind)
            if pos:
                per = 24 // len(sps); nst = nA // len(sps)
                ins = [si*nst + pos[k] for si in range(len(sps)) for k in range(per)]
                ins = sorted(min(max(x, a0), a1) for x in ins)
                for k in range(1, 24):
                    if ins[k] <= ins[k-1]: ins[k] = ins[k-1] + 1
        else:
            ins = []
        mf = []; Fmap = {}; gpos = []
        jj = 0
        for a in range(nA):
            while jj < len(ins) and ins[jj] == a:
                gpos.append(len(mf)); mf.append(gm[jj]); jj += 1
            Fmap[a] = len(mf); mf.append(att[a])
        n = len(mf)
        F = lambda a: Fmap[a]
        streams = []; fixed = {}; busy = [0]*n; extra = {}; vmlist = []; tails = []
        for si, sp in enumerate(sps):
            r = self.step_streams(sp, bases[si], F, f"{name}s{si}", si == len(sps)-1)
            streams += r["streams"]
            for g, v in r["fixed"].items(): fixed.setdefault(g, []).extend(v)
            for g in r["waits"]: busy[g] += 1
            extra.update(r["extra"])
            lo, hi = r["Rwin"]
            if self.P.get("rspill", 1) and si + 1 < len(sps):
                spn = sps[si + 1]
                hi = F(bases[si + 1] + spn["P"].get("BG", spn["NQ"] - 2)) - 2 - self.P.get("rspill_margin", 0)
            nR = len(r["R"])
            for k, (m0, dma, tag) in enumerate(r["R"]):
                tgt = lo + (k + 0.5)*(hi - lo)/nR
                vmlist.append((tgt, lo, hi, m0, dma, tag, None))
            tails.append(r["tail"])
            if gt is None and H == 0 and si == 0:
                for k in range(6):
                    m0, so, dma = self.qa_dma(6 + k)
                    vmlist.append((hi - 0.9 + 0.1*k, lo, hi, [m0, so], dma, ("Q", name), None))
        LG = PG.get("LEAD", 7)
        if gt:
            gr = []
            GW = []
            for g in range(6):
                w = gpos[4*g] - LG - 3
                GW.append(w)
                fixed.setdefault(w, []).append(f"NEEDV G:{g}")
            for j in range(24):
                g, x = divmod(j, 4); slot = g % 3
                lo = (gpos[j-2] if j >= 2 else 0)
                if x < 2: lo = max(lo, GW[g])
                hi = max(gpos[j] - LG, lo + (1 if gt == "V" else 0))
                if gt == "K":
                    cc, sg = divmod(x, 2)
                    gr.append(Item(f"ds_read_b128 {vq(GF+4*(j&1))}, v{vKG+sg} offset:{slot*4096 + cc*2048}", "D", lo + (1 if x < 2 and lo == GW[g] else 0), hi))
                else:
                    r0 = GF + 4*(j&1)
                    l2 = lo + (1 if x < 2 and lo == GW[g] else 0)
                    gr.append(Item(f"ds_read_b64_tr_b16 v[{r0}:{r0+1}], v{vVG+x} offset:{slot*4096}", "T", l2, max(hi, l2)))
                    gr.append(Item(f"ds_read_b64_tr_b16 v[{r0+2}:{r0+3}], v{vVG+x} offset:{slot*4096+512}", "T", l2, max(hi, l2)))
                busy[gpos[j] - 1] += 1
            streams.append(gr)
            ix = []
            prevB = -1
            win = None
            if kind == "p1" and self.P.get("touch", 1):
                g0 = self.P.get("win_g0", 2)
                w0 = gpos[4*g0 - 1] + 1 + self.P.get("win_gs", 13)
                win = (w0, w0 + self.P.get("win_w", 64))
                vmlist.append((w0 + 0.1, w0, w0 + 1, f"s_mov_b32 m0, {DUMMY}", f"buffer_load_dword v{vTCH}, s[{sTS}:{sTS+3}], s{sTOFF} offen lds", ("X", name), None))
                vmlist.append((w0 + 0.2, w0, w0 + 2, None, f"buffer_load_dword v{vTCH}, s[{sMVS}:{sMVS+3}], s{sTOF2} offen lds", ("X", name), None))
                vmlist.append((w0 + 0.3, w0, win[1], None, None, None, f"s_add_u32 s{sTOFF}, s{sTOFF}, 49152"))
                vmlist.append((w0 + 0.4, w0, win[1], None, None, None, [f"s_add_u32 s{sTOF2}, s{sTOF2}, 32768", f"s_cmp_gt_u32 s{sB}, 5", f"s_cselect_b32 s{sTOF2}, 0x40000000, s{sTOF2}"]))
                nv = []
                for e in vmlist:
                    tgt, lo, hi, m0, dma, tag, sal = e
                    if tag and tag[0] == "R":
                        if lo <= win[0]: hi = min(hi, win[0] - 1);
                        else: lo = max(lo, win[1] + 1)
                        e = (tgt, lo, hi, m0, dma, tag, sal)
                    nv.append(e)
                vmlist = nv
                byw = {}
                for e in vmlist:
                    if e[5] and e[5][0] == "R": byw.setdefault(e[5][1], []).append(e)
                nv = []
                for e in vmlist:
                    if e[5] and e[5][0] == "R":
                        grp = byw[e[5][1]]; k = grp.index(e)
                        e = (e[1] + (k + 0.5)*(e[2] - e[1])/len(grp),) + e[1:]
                    elif e[6] and isinstance(e[6], str) and "s34, s34" in e[6].replace(f"s{sKOFF}", "s34"):
                        lo_, hi_ = e[1], e[2]
                        if lo_ <= win[0]: e = (win[0] - 0.5, lo_, hi_) + e[3:]
                    nv.append(e)
                vmlist = nv
            for g in range(6):
                gi = g + 2
                A_ = (gpos[4*g - 1] + 1) if g > 0 else 1
                if win and A_ > win[0] - self.P.get("win_gs", 13) + 1: A_ = max(A_, win[1] + 1 + (prevB + 1 - win[1] - 1 if prevB > win[1] else 0))
                if gt == "K":
                    cpi, Ti = divmod(gi, 3)
                    newidx = (Ti == 0); qoff = cpi*128
                else:
                    ggi = 6*H + gi
                    ji, cpi = divmod(ggi, 4); newidx = True; qoff = cpi*128
                so = ["0", f"s{sT1}", f"s{sT2}"][Ti] if gt == "K" else f"s{sVT+ji}"
                if newidx:
                    ilo = prevB + 1
                    if gt == "V" and cpi == 0:
                        ix.append(Item(f"v_add_u32 v{vIA}, s{sVI+ji}, v{vIA}", "V", ilo, ilo + 2)); ilo += 1
                    A_ = max(A_, ilo + PG.get("ILEAD", 6))
                    for p in range(4):
                        ix.append(Item(f"ds_read_b32 v{PAIR+2*p}, v{vIA} offset:{qoff + 32*p}", "I", ilo, A_ - PG.get("ILEAD", 6) + 1))
                B_ = min(A_ + PG.get("GSPAN", 20), n - 1)
                if win and A_ <= win[0]: B_ = min(B_, win[0] - 1)
                for p in range(4):
                    tgt = A_ + 1 + p*(B_ - A_ - 1)/4.0
                    vmlist.append((tgt, A_, B_, f"s_add_u32 m0, s{sGM0}, {(gi % 3)*4096 + p*1024}",
                                   f"buffer_load_dwordx4 v[{PAIR+2*p}:{PAIR+2*p+1}], s[{sG}:{sG+3}], {so} idxen offen {self.P.get('gf','')} lds", ("G", gi), None))
                prevB = B_
            adv = 256 if gt == "K" else 0
            if adv: ix.append(Item(f"v_add_u32 v{vIA}, {adv}, v{vIA}", "V", ix[-1].hi, n - 1, sep=1))
            streams.append(ix)
            if gt == "K":
                se = []
                for cp in range(2):
                    g = 3*cp + 2; u = 2*H + cp
                    for cc in range(2):
                        j = 4*g + 2*cc + 1
                        lo = gpos[j] + 4
                        hi = (gpos[4*(g+1) + 2*cc] - 1) if g < 5 else n - 1
                        se.append(Item(f"v_cndmask_b32 v{GX+cc}, v{GX+cc}, v{GD+4*cc+2*cc}, s[{sSEL+4*u}:{sSEL+4*u+1}]", "V", lo, hi))
                        se.append(Item(f"v_cndmask_b32 v{GX+cc}, v{GX+cc}, v{GD+4*cc+2*cc+1}, s[{sSEL+4*u+2}:{sSEL+4*u+3}]", "V", lo, hi))
                streams.append(se)
            else:
                bs = []
                for g in range(6):
                    gg = 6*H + g; jb, cp = divmod(gg, 4)
                    lo = gpos[4*(g-2) + 3] if g >= 2 else 0
                    hi = max(gpos[4*g] - LG, lo)
                    bs.append(Item(f"ds_read_b128 {vq(GB+4*(g&1))}, v{vPB+cp}", "D", lo, hi))
                    bs.append(Item(f"v_add_u32 v{vPB+cp}, s{sVP+jb+1}, v{vPB+cp}", "V", lo, min(hi + 12, n - 1)))
                streams.append(bs)
                st = []
                for g in range(6):
                    gg = 6*H + g; jb, cp = divmod(gg, 4)
                    if cp != 3: continue
                    for x in range(4):
                        lo = gpos[4*g + x] + 4
                        hi = (gpos[4*(g+1) + x] - 1) if g < 5 else n - 3
                        st.append(Item(f"v_cvt_pk_bf16_f32 v{OUTT+2*x}, v{ACC+4*x}, v{ACC+4*x+1}", "V", lo, hi))
                        st.append(Item(f"v_cvt_pk_bf16_f32 v{OUTT+2*x+1}, v{ACC+4*x+2}, v{ACC+4*x+3}", "V", lo, hi))
                        if x == 1 or x == 3:
                            k = x >> 1
                            st.append(Item(f"buffer_store_dwordx4 {vq(OUTT+4*k)}, v{vLIN}, s[{sW}:{sW+3}], s{sVO+jb} offen offset:{k*1024} {self.P.get('omf','')}", "G",
                                           lo, (hi + 8 if g < 5 else n - 1), sep=1, tag=("S", jb)))
                streams.append(st)
        vmlist.sort(key=lambda x: x[0])
        vm = []
        for tgt, lo, hi, m0, dma, tag, sal in vmlist:
            if sal: vm.append(Item(sal, "S", lo, n - 1)); continue
            if m0:
                vm.append(Item(m0, "S", max(lo - 1, 0), hi - 1, sep=0))
                vm.append(Item(dma, "M", lo, hi, sep=1, tag=tag))
            else:
                vm.append(Item(dma, "M", lo, hi, tag=tag))
        streams.append(vm)
        for g, v in fixed.items():
            busy[g] += len([x for x in v if not x.endswith(":") and not x.startswith("NEED ")])
        for e, tl in tails: busy[e] += 0
        items = optimize(n, streams, busy1=busy, name=name, seed=self.P.get("seed", 1), iters=self.P.get("iters", 150000),
                         mspace=self.P.get("mspace", 4), ldsw=self.P.get("ldsw", 1.0))
        for e, tl in tails: fixed.setdefault(e, [])
        seq = emit(mf, items, fixed)
        seq2 = []; mi = -1; tl = {e: t for e, t in tails}; pend = None
        for cls, line, tag in seq:
            if cls == "M" and line.startswith("v_mfma"):
                if pend: seq2 += [("F", l, None) for l in pend]; pend = None
                mi += 1
                if mi in tl: pend = tl[mi]
            seq2.append((cls, line, tag))
        if pend: seq2 += [("F", l, None) for l in pend]
        self.bodies[name] = dict(seq=seq2, extra=extra, kind=kind, gt=gt, H=H, nsteps=len(sps), name=name)
        return name

    def resolve_vm(self, name, preds):
        B = self.bodies[name]
        tr = vm_trace(B["seq"])
        nst = B["nsteps"]
        res = []
        for pos, (k, v) in enumerate(tr):
            if k != "mark": continue
            typ, arg = v.split(":")
            best = None
            for ptr in preds:
                full = ptr + tr[:pos]
                ops = [t for kk, t in full if kk == "op"]
                npre = len([1 for kk, t in ptr if kk == "op"])
                if typ == "G":
                    g = int(arg)
                    idxs = [i for i, t in enumerate(ops) if t and t[0] == "G" and ((i >= npre and t[1] == g and g >= 2) or (i < npre and g < 2 and t[1] == g + 6))]
                    if g < 2 and not idxs: N = 0; best = N if best is None else min(best, N); continue
                    last = max(idxs)
                else:
                    si = int(arg[-1])
                    rn = [(i, t[1]) for i, t in enumerate(ops) if t and t[0] == "R"]
                    order = []
                    for i, nm in rn:
                        key = (nm, i < npre)
                        if not order or order[-1][0] != key: order.append([key, i])
                        else: order[-1][1] = i
                    prior = [o for o in order if not (o[0][1] is False and int(o[0][0][-1]) >= si)]
                    if len(prior) < 2: N = 0; best = N if best is None else min(best, N); continue
                    last = prior[-2][1]
                N = len(ops) - 1 - last
                best = N if best is None else min(best, N)
            res.append(min(best, 63))
        return res

    def emit_body(self, name, preds):
        B = self.bodies[name]
        vmN = self.resolve_vm(name, preds)
        init = [[f"v{pool(f)+r}" for r in range(4)] for f in range(4)]
        lines, q = finalize(B["seq"], initial=init, extra=B["extra"], vmN=vmN)
        lines = fix_hazards(lines)
        ab = self.ab.split(",")
        if "nobar" in ab: lines = [l for l in lines if l.strip() != "s_barrier"]
        if "novm" in ab: lines = [l for l in lines if "vmcnt" not in l]
        if "nog" in ab: lines = [l for l in lines if "idxen" not in l]
        if "nor" in ab: lines = [l for l in lines if not (" lds" in l and "idxen" not in l)]
        if "nost" in ab: lines = [l for l in lines if "buffer_store" not in l]
        if "nolgkm" in ab: lines = [l for l in lines if "lgkmcnt" not in l]
        if "halfbar" in ab:
            out = []; k = 0
            for l in lines:
                if l.strip() == "s_barrier":
                    k += 1
                    if k % 2 == 1: continue
                out.append(l)
            lines = out
        if "nom0" in ab: lines = [l for l in lines if "m0," not in l]
        if "noI" in ab: lines = [l for l in lines if "ds_read_b32" not in l]
        if "noexp" in ab: lines = [l for l in lines if not l.strip().startswith("v_exp")]
        if "noval" in ab: lines = [l for l in lines if not (l.strip().startswith("v_") and not l.strip().startswith("v_mfma"))]
        if "nosal" in ab: lines = [l for l in lines if not (l.strip().startswith("s_add") or l.strip().startswith("s_cmp_ge") or l.strip().startswith("s_cselect")) or "s32" in l or "s66" in l or "s35" in l]
        if "nods" in ab: lines = [l for l in lines if not l.strip().startswith("ds_read")]
        if "nogds" in ab: lines = [l for l in lines if not (l.strip().startswith("ds_read") and any(f"v{r}" in l.split(",")[0] or f"v[{r}:" in l.split(",")[0] for r in list(range(PAIR, 256))))]
        if self.ab: lines = [l for l in lines if not l.strip().startswith("s_or_b64 vcc")]
        if self.ab: lines = [l.replace("s_cbranch_vccnz", "s_cbranch_scc1 ").replace("scc1  ", "scc1 ") if False else l for l in lines]
        if self.ab:
            out = []
            for l in lines:
                if l.strip().startswith("s_cbranch_vccnz"):
                    out.append(f"  s_mov_b64 vcc, s[{sFLAG}:{sFLAG+1}]"); out.append(l)
                else: out.append(l)
            lines = out
        print(f"[{name}] vmN={vmN}")
        return lines

    def rowmax(self, L, b, dst, tmp):
        s0, s1 = Sreg(0, b), Sreg(1, b)
        L.append(f"  v_max3_f32 v{dst}, v{s0}, v{s0+1}, v{s0+2}")
        L.append(f"  v_max3_f32 v{dst}, v{dst}, v{s0+3}, v{s1}")
        L.append(f"  v_max3_f32 v{dst}, v{dst}, v{s1+1}, v{s1+2}")
        L.append(f"  v_max_f32 v{dst}, v{dst}, v{s1+3}")
        L.append(f"  v_mov_b32 v{tmp}, v{dst}\n  s_nop 1\n  v_permlane16_swap_b32 v{dst}, v{tmp}\n  s_nop 1\n  v_max_f32 v{dst}, v{dst}, v{tmp}")
        L.append(f"  v_mov_b32 v{tmp}, v{dst}\n  s_nop 1\n  v_permlane32_swap_b32 v{dst}, v{tmp}\n  s_nop 1\n  v_max_f32 v{dst}, v{dst}, v{tmp}")
    def expcvt(self, L, b, par):
        for k in range(2):
            for h in range(2):
                s = Sreg(k, b) + 2*h
                L.append(f"  v_exp_f32 v{TMP}, v{s}\n  v_exp_f32 v{TMP+1}, v{s+1}\n  s_nop 0")
                L.append(f"  v_cvt_pk_bf16_f32 v{Preg(par,b)+2*k+h}, v{TMP}, v{TMP+1}")
    def routines(self):
        for kind in ("p1", "p2"):
            mb = [0, 1] if kind == "p1" else [2, 3]
            diag = sDA if kind == "p1" else sDB
            L = [f"MASK_{kind}:"]
            L.append(f"  s_sub_i32 s{sD}, s{sR1}, s{diag}\n  s_sub_i32 s{sD}, s{sD}, s{sWAVE}\n  s_lshl_b32 s{sD}, s{sD}, 5")
            L.append(f"  v_subrev_u32 v{TMP+7}, s{sD}, v{vX}")
            for kp in range(2):
                for bi, b in enumerate(mb):
                    for r in range(4):
                        L.append(f"  v_cmp_le_i32 s[{sMASK+2*r}:{sMASK+2*r+1}], {16*(kp-bi) + r}, v{TMP+7}")
                    dst = (NEGM + 4*b) if kp == 0 else (NEGM1 + 4*bi)
                    for r in range(4):
                        L.append(f"  v_cndmask_b32 v{dst+r}, v{vNINF}, v{MNEG+b}, s[{sMASK+2*r}:{sMASK+2*r+1}]")
            L.append(f"  s_nop 0\n  s_setpc_b64 s[{sRET}:{sRET+1}]")
            self.ool.append(L)
            qb = [0, 1, 2, 3] if kind == "p1" else [2, 3]
            for par in range(2):
                L = [f"RARE_{kind}_{par}:", "  s_nop 7\n  s_nop 7"]
                dl, al, t6, t7 = TMP+4, TMP+5, TMP+6, TMP+7
                for b in qb:
                    self.rowmax(L, b, dl, t6)
                    L.append(f"  v_ceil_f32 v{dl}, v{dl}")
                    L.append(f"  v_frexp_exp_i32_f32 v{t6}, v{L0+4*b}\n  v_add_u32 v{t6}, -12, v{t6}\n  v_cvt_f32_i32 v{t6}, v{t6}")
                    L.append(f"  v_max3_f32 v{dl}, v{dl}, v{t6}, 0")
                    L.append(f"  v_cvt_i32_f32 v{t6}, v{dl}\n  v_sub_u32 v{t6}, 0, v{t6}\n  v_ldexp_f32 v{al}, 1.0, v{t6}")
                    for k in range(2):
                        for r in range(4): L.append(f"  v_sub_f32 v{Sreg(k,b)+r}, v{Sreg(k,b)+r}, v{dl}")
                    for r in range(4): L.append(f"  v_sub_f32 v{NEGM+4*b+r}, v{NEGM+4*b+r}, v{dl}")
                    if b in mb:
                        for r in range(4): L.append(f"  v_sub_f32 v{NEGM1+4*mb.index(b)+r}, v{NEGM1+4*mb.index(b)+r}, v{dl}")
                    L.append(f"  v_sub_f32 v{MNEG+b}, v{MNEG+b}, v{dl}")
                    for d in range(12):
                        for r in range(4):
                            a = Oreg(b, d) + r
                            L.append(f"  v_accvgpr_read_b32 v{t6}, a{a}\n  s_nop 0\n  v_mul_f32 v{t6}, v{t6}, v{al}\n  s_nop 0\n  v_accvgpr_write_b32 a{a}, v{t6}")
                    self.expcvt(L, b, par)
                    L.append("  s_nop 1")
                    L.append(f"  v_mfma_f32_16x16x32_bf16 {vq(TMP)}, {vq(ONES)}, {vq(Preg(par,b))}, 0")
                    L.append("  s_nop 7\n  s_nop 1")
                    L.append(f"  v_mov_b32 v{t7}, 0x203\n  v_cmp_class_f32 vcc, v{L0+4*b}, v{t7}\n  v_mul_f32 v{t6}, v{L0+4*b}, v{al}\n  s_nop 1")
                    L.append(f"  v_cndmask_b32 v{t6}, v{t6}, v{TMP}, vcc")
                    for r in range(4): L.append(f"  v_mov_b32 v{L0+4*b+r}, v{t6}")
                L.append(f"  s_nop 3\n  s_setpc_b64 s[{sRET}:{sRET+1}]")
                self.ool.append(L)
        L = ["INIT_A:", "  s_nop 7\n  s_nop 7"]
        for b in (0, 1):
            dl, t6 = TMP+4, TMP+6
            self.rowmax(L, b, dl, t6)
            L.append(f"  v_ceil_f32 v{dl}, v{dl}")
            for k in range(2):
                for r in range(4): L.append(f"  v_sub_f32 v{Sreg(k,b)+r}, v{Sreg(k,b)+r}, v{dl}")
            L.append(f"  v_sub_f32 v{MNEG+b}, v{MNEG+b}, v{dl}")
            self.expcvt(L, b, 0)
            L.append("  s_nop 1")
            L.append(f"  v_mfma_f32_16x16x32_bf16 {vq(L0+4*b)}, {vq(ONES)}, {vq(Preg(0,b))}, 0")
        L.append(f"  s_nop 7\n  s_setpc_b64 s[{sRET}:{sRET+1}]")
        self.ool.append(L)
        def blk(k):
            k = min(k, 11); h = k // 6; r = k % 6
            return (r >> 1, 2*h + (r & 1))
        for m in range(4):
            L = [f"VSET_{m}:"]
            for j in range(4): L.append(f"  s_mov_b32 s{sVT+j}, {blk(3*m+j)[0]*128}")
            for j in range(1, 4):
                dg = blk(3*m+j)[1] - blk(3*m+j-1)[1]
                L.append(f"  s_mov_b32 s{sVI+j}, {dg*512}\n  s_mov_b32 s{sVP+j}, {dg*256}")
            base = sROWA if m < 2 else sROWB
            for j in range(3):
                T, gm = blk(3*m+j)
                L.append(f"  s_add_u32 s{sVO+j}, s{base}, {(gm & 1)*6144 + T*2048}")
            L.append(f"  s_setpc_b64 s[{sRET}:{sRET+1}]")
            self.ool.append(L)
        def cpq(gm):
            L = []
            for s in range(6):
                op = Qop(gm, s); base = int(op[2:op.index(':')])
                for r in range(4):
                    if op[0] == 'a': L.append(f"  v_accvgpr_read_b32 v{GQ+4*s+r}, a{base+r}")
                    else: L.append(f"  v_mov_b32 v{GQ+4*s+r}, v{base+r}")
            return L
        self.ool.append(["CPQ_0:"] + cpq(0) + [f"  s_nop 1\n  s_setpc_b64 s[{sRET}:{sRET+1}]"])
        for gm in range(4):
            fill = cpq(gm + 1) if gm < 3 else []
            def F(k=1):
                out = []
                for _ in range(k): out.append(fill.pop(0) if fill else "  s_nop 0")
                return out
            a, b, t0, t1 = GX, GX+1, TMP, TMP+1
            ctr = ["quad_perm:[1,0,3,2]", "quad_perm:[2,3,0,1]", "row_half_mirror"]
            L = [f"KEND_{gm}:"]
            L += F(2)
            L += [f"  v_mov_b32 v{t0}, v{a}", f"  v_mov_b32 v{t1}, v{b}"] + F(1)
            for c in ctr:
                L += [f"  v_max_f32_dpp v{t0}, v{t0}, v{t0} {c} row_mask:0xf bank_mask:0xf", f"  v_max_f32_dpp v{t1}, v{t1}, v{t1} {c} row_mask:0xf bank_mask:0xf"] + F(1)
            L += [f"  v_sub_f32 v{a}, v{a}, v{t0}", f"  v_sub_f32 v{b}, v{b}, v{t1}", f"  v_exp_f32 v{a}, v{a}", f"  v_exp_f32 v{b}, v{b}"] + F(1)
            L += [f"  v_mov_b32 v{t0}, v{a}", f"  v_mov_b32 v{t1}, v{b}"] + F(1)
            for c in ctr:
                L += [f"  v_add_f32_dpp v{t0}, v{t0}, v{t0} {c} row_mask:0xf bank_mask:0xf", f"  v_add_f32_dpp v{t1}, v{t1}, v{t1} {c} row_mask:0xf bank_mask:0xf"] + F(1)
            L += [f"  v_rcp_f32 v{t0}, v{t0}", f"  v_rcp_f32 v{t1}, v{t1}"] + F(1)
            L += [f"  v_mul_f32 v{t0}, s{sGG}, v{t0}", f"  v_mul_f32 v{t1}, s{sGG}, v{t1}", f"  v_mul_f32 v{a}, v{a}, v{t0}", f"  v_mul_f32 v{b}, v{b}, v{t1}",
                  f"  v_cvt_pk_bf16_f32 v{a}, v{a}, v{b}"] + F(1)
            L += [f"  ds_write_b16 v{vPW}, v{a} offset:{gm*256}", f"  ds_write_b16_d16_hi v{vPW}, v{a} offset:{gm*256+32}"]
            L += fill
            L += [f"  s_nop 1\n  s_setpc_b64 s[{sRET}:{sRET+1}]"]
            self.ool.append(L)

    def prologue(self):
        A = self.A
        A(f".globl {KNAME}\n.p2align 8\n.type {KNAME},@function\n{KNAME}:")
        A("  s_cmp_ge_u32 s2, 256\n  s_cbranch_scc1 AT_END")
        if self.instr: A("  s_memrealtime s[100:101]\n  s_memtime s[98:99]\n  s_waitcnt lgkmcnt(0)\n  v_mov_b32 v254, s98\n  v_mov_b32 v253, s100")
        A("  s_load_dwordx4 s[4:7], s[0:1], 0         ; q, k")
        A("  s_load_dwordx2 s[42:43], s[0:1], 16      ; v")
        A(f"  s_load_dwordx4 s[{sMK}:{sMK+3}], s[0:1], 24")
        A("  s_load_dwordx4 s[44:47], s[0:1], 40")
        A("  s_load_dwordx2 s[48:49], s[0:1], 56      ; out")
        A("  s_load_dwordx2 s[72:73], s[0:1], 72      ; ws")
        A(f"  v_and_b32 v1, 63, v0\n  v_lshrrev_b32 v0, 6, v0\n  s_nop 0\n  v_readfirstlane_b32 s{sWAVE}, v0")
        if self.instr:
            A(f"  s_nop 3\n  s_lshl_b32 s100, s{sWAVE}, 8\n  s_add_u32 s100, s100, {STAMPA}\n  v_mov_b32 v252, s100\n  ds_write_b32 v252, v254\n  ds_write_b32 v252, v253 offset:44")
        A(f"  s_and_b32 s3, s2, 7\n  s_lshr_b32 s96, s2, 3\n  s_and_b32 s{sI}, s96, 7\n  s_lshr_b32 s96, s96, 3\n  s_lshl_b32 s3, s3, 2\n  s_add_u32 s{sH}, s3, s96")
        A(f"  s_lshl_b32 s3, s{sI}, 2\n  s_sub_u32 s{sN}, 64, s3\n  s_mov_b32 s{sDA}, s3\n  s_sub_u32 s{sDB}, s{sN}, 4")
        A(f"  s_lshl_b32 s{sB1LAST}, s{sI}, 1\n  s_add_u32 s{sB1LAST}, s{sB1LAST}, 1\n  s_add_u32 s3, s{sI}, s{sH}\n  s_and_b32 s3, s3, {self.P.get('epa_mask', 3)}\n  s_add_u32 s3, s3, 11\n  s_max_u32 s{sEPA}, s{sB1LAST}, s3")
        A(f"  s_mul_i32 s97, s{sH}, {HEAD}")
        A("  s_waitcnt lgkmcnt(0)")
        def srd(d, b, size=HEAD, sub=0):
            A(f"  s_add_u32 s{d}, s{b}, s97\n  s_addc_u32 s{d+1}, s{b+1}, 0")
            if sub: A(f"  s_sub_u32 s{d}, s{d}, {sub}\n  s_subb_u32 s{d+1}, s{d+1}, 0")
            A(f"  s_and_b32 s{d+1}, s{d+1}, 0xffff\n  s_mov_b32 s{d+2}, {size+sub}\n  s_mov_b32 s{d+3}, 0x20000")
        srd(sG, 4); srd(sK, 6); srd(sV, 42); srd(sO, 48); srd(sW, 72)
        for p in (sMK, sMV):
            A(f"  s_add_u32 s{p}, s{p}, s97\n  s_addc_u32 s{p+1}, s{p+1}, 0")
        A(f"  s_lshl_b32 s3, s{sH}, 16\n  s_add_u32 s{sTS}, s44, s3\n  s_addc_u32 s{sTS+1}, s45, 0\n  s_and_b32 s{sTS+1}, s{sTS+1}, 0xffff\n  s_mov_b32 s{sTS+2}, 65536\n  s_mov_b32 s{sTS+3}, 0x20000")
        A(f"  s_lshl_b32 s3, s{sH}, 1\n  s_and_b32 s96, s3, 0xfffffffc\n  s_add_u32 s46, s46, s96\n  s_addc_u32 s47, s47, 0\n  s_load_dword s96, s[46:47], 0")
        A("  v_lshrrev_b32 v16, 3, v1\n  v_and_b32 v17, 7, v1\n  v_and_b32 v18, 15, v1\n  v_lshrrev_b32 v19, 4, v1")
        for j in range(3):
            A(f"  v_add_u32 v20, {8*j}, v16\n  v_mul_u32_u24 v20, 0xAAAB, v20\n  v_lshrrev_b32 v20, 17, v20\n  v_and_b32 v20, 6, v20")
            A(f"  v_xor_b32 v20, v20, v17\n  v_lshlrev_b32 v20, 4, v20\n  v_lshl_add_u32 v{vDV+j}, v16, 7, v20")
        A(f"  v_lshlrev_b32 v{vLIN}, 4, v1")
        A(f"  s_lshl_b32 s3, s{sI}, 7\n  s_lshl_b32 s4, s{sWAVE}, 5\n  s_add_u32 s{sROWA}, s3, s4\n  s_sub_u32 s5, 1920, s3\n  s_add_u32 s{sROWB}, s5, s4")
        A(f"  s_lshl_b32 s3, s{sWAVE}, 11\n  s_add_u32 s6, s3, {IDX}\n  s_mov_b32 m0, s6\n  s_lshl_b32 s4, s{sROWA}, 5")
        A(f"  buffer_load_dwordx4 v{vLIN}, s[{sTS}:{sTS+3}], s4 offen {self.P.get('qf','')} lds")
        A(f"  s_add_u32 m0, s6, 1024\n  s_lshl_b32 s4, s{sROWB}, 5")
        A(f"  buffer_load_dwordx4 v{vLIN}, s[{sTS}:{sTS+3}], s4 offen {self.P.get('qf','')} lds")
        A(f"  s_mul_i32 s{sROWA}, s{sROWA}, 384\n  s_mul_i32 s{sROWB}, s{sROWB}, 384")
        if self.P.get("codepf", 1):
            A(f"  s_getpc_b64 s[44:45]\nL_CP:\n  s_sub_u32 s44, s44, L_CP-{KNAME}\n  s_subb_u32 s45, s45, 0\n  s_and_b32 s45, s45, 0xffff\n  s_mov_b32 s46, TILETAB-{KNAME}\n  s_mov_b32 s47, 0x20000")
            A(f"  s_lshr_b32 s3, s2, 3\n  s_lshl_b32 s3, s3, 12\n  s_lshl_b32 s5, s{sWAVE}, 10\n  s_add_u32 s3, s3, s5\n  v_and_b32 v20, 7, v1\n  v_lshlrev_b32 v20, 7, v20\n  s_mov_b32 m0, {DUMMY}\n  s_nop 0\n  buffer_load_dword v20, s[44:47], s3 offen lds")
        A(f"  s_getpc_b64 s[98:99]\nL_TT:\n  s_add_u32 s98, s98, TILETAB-L_TT\n  s_addc_u32 s99, s99, 0\n  s_lshl_b32 s3, s{sI}, 6\n  v_add_u32 v20, s3, v1\n  global_load_ubyte v{vSEQ}, v20, s[98:99]")
        A(f"  s_mov_b32 s7, {QAREA[0]}")
        for w in range(1, 4):
            A(f"  s_cmp_eq_u32 s{sWAVE}, {w}\n  s_cselect_b32 s7, {QAREA[w]}, s7")
        A(f"  s_mul_i32 s4, s{sWAVE}, 3072\n  s_add_u32 s{sKM0}, s4, {KR}\n  s_add_u32 s{sVM0}, s4, {VR}")
        if self.P.get("coop", 1):
            A(f"  s_and_b32 s5, s{sWAVE}, 1\n  s_cmp_eq_u32 s5, 1\n  s_cselect_b32 s{sTS}, s{sV}, s{sK}\n  s_cselect_b32 s{sTS+1}, s{sV+1}, s{sK+1}\n  s_mov_b32 s{sTS+2}, {HEAD}")
            A(f"  s_cmp_ge_u32 s{sWAVE}, 2\n  s_cselect_b32 s5, 64, 48\n  s_mul_i32 s3, s{sI}, s5\n  s_lshl_b32 s3, s3, 7")
            A(f"  s_cmp_ge_u32 s{sWAVE}, 2\n  s_cselect_b32 s98, 0, {32*TILE}\n  s_add_u32 s3, s3, s98")
            A(f"  v_lshlrev_b32 v{vTCH}, 7, v1\n  v_cmp_gt_u32 vcc, s5, v1\n  v_mov_b32 v20, 0x40000000\n  s_nop 0\n  v_cndmask_b32 v20, v20, v{vTCH}, vcc")
            A(f"  s_mov_b32 m0, {DUMMY}\n  s_nop 0\n  buffer_load_dword v20, s[{sTS}:{sTS+3}], s3 offen lds")
        self.stamp(48)
        D = []
        def tile(srdn, m0r, slot, off):
            for j in range(3):
                pre = [f"  s_add_u32 m0, s{m0r}, {slot*TILE}", f"  s_add_u32 s3, s4, {off}"] if j == 0 else []
                D.append(pre + [f"  buffer_load_dwordx4 v{vDV+j}, s[{srdn}:{srdn+3}], s3 offen offset:{1024*j} lds"])
        def qdma(b):
            base = sROWB if b >= 2 else sROWA
            lds = "s7" if b >= 2 else f"s{sGM0}"
            for half in range(2):
                for j in range(3):
                    pre = [f"  s_add_u32 m0, {lds}, {(b&1)*6144 + half*3072}", f"  s_add_u32 s3, s{base}, {(b&1)*6144 + half*3072}"] if j == 0 else []
                    D.append(pre + [f"  buffer_load_dwordx4 v{vDV+j}, s[{sG}:{sG+3}], s3 offen offset:{1024*j} {self.P.get('qf','')} lds"])
        A(f"  s_mul_i32 s{sGM0}, s{sWAVE}, 12288\n  s_add_u32 s{sGM0}, s{sGM0}, {GR}")
        qdma(2); qdma(3); tile(sK, sKM0, 0, 32*TILE); tile(sV, sVM0, 0, 32*TILE); tile(sK, sKM0, 1, 33*TILE)
        main = self.A
        B = Asm(); self.A = B; A = B
        A(f"  s_mov_b32 s{sWP}, s4")
        A(f"  v_and_b32 v20, 6, v18\n  v_xor_b32 v20, v20, v19\n  v_lshlrev_b32 v20, 4, v20\n  v_mul_u32_u24 v{vKA}, 384, v18\n  v_add_u32 v{vKA}, v{vKA}, v20\n  v_xor_b32 v{vKA+1}, 64, v{vKA}")
        A(f"  v_add_u32 v22, s7, v{vKA}\n  v_xor_b32 v23, 64, v22\n  v_add_u32 v24, s{sGM0}, v{vKA}\n  v_xor_b32 v25, 64, v24")
        for r in range(8): A(f"  v_mov_b32 v{Preg(1,0)+r}, 0")
        A(f"  v_mov_b32 v26, {hex(f2u(CSCALE))}\n  v_mov_b32 v27, {hex(f2u(CSCALE))}")
        A(f"  s_mov_b32 s{sC}, {hex(f2u(CSCALE))}\n  s_mov_b32 s{sHI}, 0xffff0000\n  s_mov_b32 s{sTHR}, 0x49800000\n  s_mov_b32 s{sT1}, 128\n  s_mov_b32 s{sT2}, 256")
        A(f"  v_mov_b32 v28, 0\n  v_mov_b32 v29, 0\n  v_mov_b32 v30, 0\n  v_mov_b32 v31, 0\n  v_add_u32 v20, {ZA}, v{vLIN}\n  ds_write_b128 v20, v[28:31]")
        for r in range(12): A(f"  v_mfma_f32_32x32x16_bf16 a[{16*r}:{16*r+15}], v[28:31], v[28:31], 0")
        A(f"  v_bfe_u32 v20, v1, 2, 2\n  v_lshl_add_u32 v20, v19, 2, v20")
        A(f"  v_mul_u32_u24 v{vVA}, 384, v20\n  v_and_b32 v20, 6, v20\n  v_bfe_u32 v21, v1, 1, 1\n  v_xor_b32 v20, v20, v21\n  v_lshl_add_u32 v{vVA}, v20, 4, v{vVA}")
        A(f"  v_and_b32 v20, 1, v1\n  v_lshl_add_u32 v{vVA}, v20, 3, v{vVA}\n  v_add_u32 v{vVA}, {VR}, v{vVA}")
        for x in range(1, 4): A(f"  v_xor_b32 v{vVA+x}, {32*x}, v{vVA}")
        A(f"  v_lshlrev_b32 v20, 2, v19\n  v_sub_u32 v{vX}, v18, v20\n  v_mov_b32 v{vNINF}, 0xff800000")
        A(f"  v_lshlrev_b32 v{vTCH}, 7, v1")
        A(f"  v_and_b32 v20, 2, v16\n  v_xor_b32 v20, v20, v17\n  v_lshlrev_b32 v20, 4, v20")
        for p in range(4):
            A(f"  v_mov_b32 v{PAIR+2*p+1}, v20" if p % 2 == 0 else f"  v_xor_b32 v{PAIR+2*p+1}, 64, v20")
        A(f"  v_and_b32 v20, 7, v18\n  v_lshrrev_b32 v21, 3, v18\n  v_lshlrev_b32 v{vKG}, 7, v20\n  v_lshl_add_u32 v{vKG}, v21, 10, v{vKG}")
        A(f"  v_and_b32 v20, 2, v20\n  v_xor_b32 v20, v20, v19\n  v_lshlrev_b32 v21, 2, v21\n  v_xor_b32 v20, v20, v21\n  v_lshl_add_u32 v{vKG}, v20, 4, v{vKG}")
        A(f"  v_add_u32 v{vKG}, s{sGM0}, v{vKG}\n  v_xor_b32 v{vKG+1}, 64, v{vKG}")
        A(f"  v_lshlrev_b32 v20, 6, v19\n  v_bfe_u32 v21, v1, 3, 1\n  v_lshl_add_u32 v20, v21, 4, v20\n  v_lshl_add_u32 v20, v17, 1, v20\n  s_lshl_b32 s5, s{sWAVE}, 10\n  s_add_u32 s5, s5, {PA}\n  v_add_u32 v{vPW}, s5, v20")
        for u in range(4):
            lo = 0xff << (16*u); hi = 0xff00 << (16*u)
            A(f"  s_mov_b32 s{sSEL+4*u}, {hex(lo & 0xffffffff)}\n  s_mov_b32 s{sSEL+4*u+1}, {hex(lo >> 32)}\n  s_mov_b32 s{sSEL+4*u+2}, {hex(hi & 0xffffffff)}\n  s_mov_b32 s{sSEL+4*u+3}, {hex(hi >> 32)}")
        for r in range(4): A(f"  v_mov_b32 v{ONES+r}, 0x3f803f80")
        for r in range(16): A(f"  v_mov_b32 v{L0+r}, 0\n  v_mov_b32 v{NEGM+r}, 0")
        for r in range(8): A(f"  v_mov_b32 v{NEGM1+r}, 0")
        for r in range(4): A(f"  v_mov_b32 v{MNEG+r}, 0")
        A(f"  v_lshlrev_b32 v1, 2, v16\n  v_add_u32 v{vIA}, s6, v1")
        A("  s_waitcnt lgkmcnt(0)")
        A(f"  s_lshl_b32 s5, s{sH}, 1\n  s_and_b32 s5, s5, 2\n  s_lshl_b32 s5, s5, 3\n  s_lshr_b32 s96, s96, s5\n  s_lshl_b32 s96, s96, 16")
        A(f"  v_mov_b32 v20, s96\n  v_mul_f32 v20, {hex(f2u(LOG2E))}, v20\n  v_exp_f32 v20, v20\n  s_nop 0\n  v_add_f32 v20, 1.0, v20\n  v_rcp_f32 v20, v20\n  s_nop 0\n  v_sub_f32 v21, 1.0, v20\n  v_readfirstlane_b32 s{sG1}, v20\n  s_nop 0\n  v_readfirstlane_b32 s{sGG}, v21")
        setup = [l for l in B.lines if l.strip()]
        self.A = main; A = main
        nset = 12
        per = -(-len(setup) // nset)
        sched_q = {13: (2, 5), 19: (3, 11)}
        pending = []
        for k, d in enumerate(D):
            for l in d: A(l)
            if k < nset:
                for l in setup[k*per:(k+1)*per]: A(l)
            if pending:
                for l in pending.pop(0): A(l)
            if k in sched_q:
                b, last = sched_q[k]
                for ch in pending:
                    for l in ch: A(l)
                A(f"  s_waitcnt vmcnt({k - last})")
                self.stamp(50 + b)
                reads, fr = self.qproc(b, 22 if b >= 2 else 24, 32)
                for l in reads: A(l)
                pending = fr
        for ch in pending:
            for l in ch: A(l)

    def qa_dma(self, k):
        b, r = divmod(k, 6); half, j = divmod(r, 3)
        off = b*6144 + half*3072
        return (f"s_add_u32 m0, s{sGM0}, {off}", f"s_add_u32 s{sQO}, s{sROWA}, {off}",
                f"buffer_load_dwordx4 v{vDV+j}, s[{sG}:{sG+3}], s{sQO} offen offset:{1024*j} {self.P.get('qf','')} lds")

    def qproc(self, b, areg, t):
        reads = [f"  ds_read_b128 {vq(POOL+16+4*(s%4) if False else POOL+4*s)}, v{areg+(s&1)} offset:{(b&1)*6144 + (s>>1)*128}" for s in range(6)]
        fr = []
        for s in range(6):
            L = [f"  s_waitcnt lgkmcnt({5-s})"]
            op = Qop(b, s); base = int(op[2:op.index(':')])
            for r in range(4):
                src = POOL + 4*s + r
                L += [f"  v_lshlrev_b32 v{t+2*r}, 16, v{src}", f"  v_and_b32 v{t+1+2*r}, s{sHI}, v{src}"]
            for r in range(4):
                L += [f"  v_pk_mul_f32 v[{t+2*r}:{t+1+2*r}], v[{t+2*r}:{t+1+2*r}], v[26:27]"]
            for r in range(4):
                L.append(f"  v_cvt_pk_bf16_f32 v{base+r if op[0] == 'v' else t+8+r}, v{t+2*r}, v{t+1+2*r}")
            if op[0] == 'a':
                for r in range(4): L.append(f"  v_accvgpr_write_b32 a{base+r}, v{t+8+r}")
            fr.append(L)
        return reads, fr

    def qproc_inplace(self, b):
        A = self.A
        ar = Sreg(0, 0); t = Sreg(1, 0)
        A(f"  v_mov_b32 v22, s{sC}\n  v_mov_b32 v23, s{sC}")
        for rnd in range(2):
            ss = [0, 1, 2, 3] if rnd == 0 else [4, 5]
            for k, s in enumerate(ss):
                A(f"  ds_read_b128 {vq(POOL+16+4*k)}, v{ar+(s&1)} offset:{(b&1)*6144 + (s>>1)*128}")
            for k, s in enumerate(ss):
                A(f"  s_waitcnt lgkmcnt({len(ss)-1-k})")
                op = Qop(b, s); base = int(op[2:op.index(':')])
                for r in range(4):
                    src = POOL + 16 + 4*k + r
                    A(f"  v_lshlrev_b32 v{t+2*r}, 16, v{src}\n  v_and_b32 v{t+1+2*r}, s{sHI}, v{src}")
                for r in range(4):
                    A(f"  v_pk_mul_f32 v[{t+2*r}:{t+1+2*r}], v[{t+2*r}:{t+1+2*r}], v[22:23]")
                for r in range(4):
                    A(f"  v_cvt_pk_bf16_f32 v{base+r if op[0] == 'v' else ar+2+r}, v{t+2*r}, v{t+1+2*r}")
                if op[0] == 'a':
                    for r in range(4): A(f"  v_accvgpr_write_b32 a{base+r}, v{ar+2+r}")

    def step0(self):
        A = self.A
        A(f"  s_mov_b32 s{sT}, 0")
        A("  s_waitcnt vmcnt(6)\n  s_barrier")
        A(f"  s_mov_b32 s{sR1}, 32\n  s_cmp_ge_u32 s{sR1}, s{sDB}\n  s_cbranch_scc0 S0_NM\n  s_call_b64 s[{sRET}:{sRET+1}], MASK_p2\nS0_NM:")
        A(f"  s_mov_b32 s{sR0}, 32\n  s_mov_b32 s{sR1}, 33\n  s_mov_b32 s{sR2}, 34\n  s_mov_b32 s{sR3}, 35\n  v_readlane_b32 s{sR4}, v{vSEQ}, 4")
        def tile(srdn, m0r, slot, tl):
            out = []
            for j in range(3):
                out.append([f"  s_add_u32 m0, s{m0r}, {slot*TILE}", (f"  s_add_u32 s3, s{sWP}, {tl*TILE}" if tl is not None else f"  s_nop 0"),
                            f"  buffer_load_dwordx4 v{vDV+j}, s[{srdn}:{srdn+3}], s3 offen offset:{1024*j} lds"])
            return out
        dm = tile(sV, sVM0, 1, 33) + tile(sK, sKM0, 2, 34) + tile(sK, sKM0, 3, 35)
        for k in range(2):
            for s in range(6):
                A(f"  ds_read_b128 {vq(POOL+4*s)}, v{vKA+(s&1)} offset:{k*6144 + (s>>1)*128}")
            for s in range(6):
                A(f"  s_waitcnt lgkmcnt({5-s})")
                for b in (2, 3):
                    c = self.cinit("p2", k, b) if s == 0 else vq(Sreg(k, b))
                    A(f"  v_mfma_f32_16x16x32_bf16 {vq(Sreg(k,b))}, {vq(POOL+4*s)}, {Qop(b,s)}, {c}")
                if dm and (s < 5):
                    for l in dm.pop(0): A(l)
        for d in dm:
            for l in d: A(l)
        A("  s_waitcnt vmcnt(9)\n  s_barrier")
        dm = tile(sV, sVM0, 2, 34)
        A(f"  s_mul_i32 s4, s{sR4}, {TILE}\n  s_add_u32 s4, s4, s{sWP}")
        for j in range(3):
            dm.append([f"  s_add_u32 m0, s{sKM0}, 0", "  s_nop 0", f"  buffer_load_dwordx4 v{vDV+j}, s[{sK}:{sK+3}], s4 offen offset:{1024*j} lds"])
        for k in range(6): dm.append(["  " + x for x in self.qa_dma(k)])
        for f in range(4): A("  " + self.kread(f, 1))
        L = []
        for b in (2, 3):
            self.rowmax(L, b, TMP+4, TMP+6)
            for k in range(2):
                for r in range(4): L.append(f"  v_sub_f32 v{Sreg(k,b)+r}, v{Sreg(k,b)+r}, v{TMP+4}")
            L.append(f"  v_sub_f32 v{MNEG+b}, 0, v{TMP+4}")
            for r in range(4): L.append(f"  v_sub_f32 v{NEGM+4*b+r}, 0, v{TMP+4}")
            for r in range(4): L.append(f"  v_sub_f32 v{NEGM1+4*(b-2)+r}, 0, v{TMP+4}")
            self.expcvt(L, b, 0)
        flat = [x for l in L for x in l.split("\n")]
        per = max(1, len(flat) // (len(dm) + 1))
        A("  s_nop 3")
        for k, l in enumerate(flat):
            A(l)
            if k % per == per - 1 and dm and not ("s_nop" in l or "v_mov_b32" in l or "permlane" in l or "v_exp" in l):
                for x in dm.pop(0): A(x)
        for d in dm:
            for x in d: A(x)
        A("  s_nop 1")
        for b in (2, 3):
            A(f"  v_mfma_f32_16x16x32_bf16 {vq(L0+4*b)}, {vq(ONES)}, {vq(Preg(0,b))}, {vq(L0+4*b)}")
        A(f"  s_mov_b32 s{sT}, 1")
        A(f"  s_cmp_ge_u32 s{sR1}, s{sDB}\n  s_cbranch_scc0 S1_NM\n  s_call_b64 s[{sRET}:{sRET+1}], MASK_p2\nS1_NM:")

    def gather_srd(self, ptr):
        A = self.A
        A(f"  s_mov_b32 s{sG}, s{ptr}\n  s_and_b32 s{sG+1}, s{ptr+1}, 0xffff\n  s_or_b32 s{sG+1}, s{sG+1}, 0x01800000\n  s_mov_b32 s{sG+2}, 2048\n  s_mov_b32 s{sG+3}, 0x20000")

    def prime(self, gt):
        A = self.A
        for gi in range(2):
            if gt == "K": Ti, qoff, newidx = gi, 0, gi == 0
            else: Ti, qoff, newidx = 0, gi*128, True
            so = ["0", f"s{sT1}", f"s{sT2}"][Ti]
            if newidx:
                for p in range(4): A(f"  ds_read_b32 v{PAIR+2*p}, v{vIA} offset:{qoff + 32*p}")
                A("  s_waitcnt lgkmcnt(0)")
            for p in range(4):
                A(f"  s_add_u32 m0, s{sGM0}, {gi*4096 + p*1024}\n  s_nop 0")
                A(f"  buffer_load_dwordx4 v[{PAIR+2*p}:{PAIR+2*p+1}], s[{sG}:{sG+3}], {so} idxen offen lds")

    def softmax8(self):
        A = self.A
        a, b, t0, t1 = GX, GX+1, TMP, TMP+1
        ctr = ["quad_perm:[1,0,3,2]", "quad_perm:[2,3,0,1]", "row_half_mirror"]
        A(f"  v_mov_b32 v{t0}, v{a}\n  v_mov_b32 v{t1}, v{b}\n  s_nop 0")
        for c in ctr:
            A(f"  v_max_f32_dpp v{t0}, v{t0}, v{t0} {c} row_mask:0xf bank_mask:0xf\n  v_max_f32_dpp v{t1}, v{t1}, v{t1} {c} row_mask:0xf bank_mask:0xf\n  s_nop 0")
        A(f"  v_sub_f32 v{a}, v{a}, v{t0}\n  v_sub_f32 v{b}, v{b}, v{t1}\n  v_exp_f32 v{a}, v{a}\n  v_exp_f32 v{b}, v{b}\n  s_nop 0")
        A(f"  v_mov_b32 v{t0}, v{a}\n  v_mov_b32 v{t1}, v{b}\n  s_nop 0")
        for c in ctr:
            A(f"  v_add_f32_dpp v{t0}, v{t0}, v{t0} {c} row_mask:0xf bank_mask:0xf\n  v_add_f32_dpp v{t1}, v{t1}, v{t1} {c} row_mask:0xf bank_mask:0xf\n  s_nop 0")
        A(f"  v_rcp_f32 v{t0}, v{t0}\n  v_rcp_f32 v{t1}, v{t1}\n  s_nop 0\n  v_mul_f32 v{t0}, s{sGG}, v{t0}\n  v_mul_f32 v{t1}, s{sGG}, v{t1}")
        A(f"  v_mul_f32 v{a}, v{a}, v{t0}\n  v_mul_f32 v{b}, v{b}, v{t1}\n  v_cvt_pk_bf16_f32 v{a}, v{a}, v{b}")
        A(f"  v_lshrrev_b32 v{t0}, 4, v{vLIN}          ; lane")
        A(f"  v_lshrrev_b32 v{t1}, 4, v{t0}\n  v_lshlrev_b32 v{t1}, 6, v{t1}           ; G*64")
        A(f"  v_bfe_u32 v{TMP+2}, v{t0}, 3, 1\n  v_lshl_add_u32 v{t1}, v{TMP+2}, 4, v{t1}\n  v_and_b32 v{t0}, 7, v{t0}\n  v_lshl_add_u32 v{t1}, v{t0}, 1, v{t1}")
        A(f"  s_lshl_b32 s3, s{sWAVE}, 10\n  s_lshr_b32 s4, s{sB}, 1\n  s_lshl_b32 s4, s4, 8\n  s_add_u32 s3, s3, s4\n  s_add_u32 s3, s3, {PA}\n  v_add_u32 v{t1}, s3, v{t1}")
        A(f"  ds_write_b16 v{t1}, v{a}\n  ds_write_b16_d16_hi v{t1}, v{a} offset:32")

    def vphase_setup(self):
        A = self.A
        t = TMP
        A(f"  v_lshrrev_b32 v{t}, 4, v{vLIN}          ; lane")
        A(f"  v_lshrrev_b32 v{t+1}, 4, v{t}           ; G\n  v_bfe_u32 v{t+2}, v{t}, 2, 2          ; r")
        A(f"  v_lshlrev_b32 v{vVG}, 10, v{t+1}\n  v_lshl_add_u32 v{vVG}, v{t+2}, 7, v{vVG}")
        A(f"  v_and_b32 v{t+2}, 2, v{t+2}\n  v_bfe_u32 v{t+3}, v{t}, 1, 1\n  v_xor_b32 v{t+2}, v{t+2}, v{t+3}\n  v_and_b32 v{t+3}, 1, v{t+1}\n  v_lshlrev_b32 v{t+3}, 2, v{t+3}\n  v_xor_b32 v{t+2}, v{t+2}, v{t+3}")
        A(f"  v_lshl_add_u32 v{vVG}, v{t+2}, 4, v{vVG}\n  v_and_b32 v{t+2}, 1, v{t}\n  v_lshl_add_u32 v{vVG}, v{t+2}, 3, v{vVG}\n  v_add_u32 v{vVG}, s{sGM0}, v{vVG}")
        for x in range(1, 4): A(f"  v_xor_b32 v{vVG+x}, {32*x}, v{vVG}")
        A(f"  v_and_b32 v{t+2}, 15, v{t}\n  v_sub_u32 v{t+3}, v{t+2}, v{t+1}\n  s_lshl_b32 s3, s{sWAVE}, 10\n  s_add_u32 s3, s3, {PA}")
        A(f"  v_lshlrev_b32 v{t+4}, 4, v{t+2}\n  v_add_u32 v{t+4}, s3, v{t+4}\n  v_mov_b32 v{t+5}, {ZA}")
        for c in range(4):
            A(f"  v_cmp_eq_u32 vcc, {4*c}, v{t+3}\n  s_nop 1\n  v_cndmask_b32 v{vPB+c}, v{t+5}, v{t+4}, vcc")
        A(f"  s_call_b64 s[{sRET}:{sRET+1}], VSET_0")

    def vphase_early(self):
        A = self.A
        t = TMP
        A(f"  v_lshrrev_b32 v{t}, 7, v{vLIN}\n  v_lshlrev_b32 v{t}, 2, v{t}\n  s_lshl_b32 s3, s{sWAVE}, 11\n  s_add_u32 s3, s3, {IDX}\n  v_add_u32 v{vIA}, s3, v{t}")
        self.gather_srd(sMVS)
        self.prime("V")

    def drain(self, betas, par, slot):
        A = self.A
        seq = []
        for d in range(12):
            r = POOL + 16 + (d % 4)*4
            if d >= 4:
                for b in betas:
                    seq.append(("M", f"v_mfma_f32_16x16x32_bf16 {aq(Oreg(b,d-4))}, {vq(r)}, {vq(Preg(par,b))}, {aq(Oreg(b,d-4))}", None))
            seq.append(("T", f"ds_read_b64_tr_b16 v[{r}:{r+1}], v{vVA+(d&3)} offset:{slot*TILE + (d>>2)*128}", None))
            seq.append(("T", f"ds_read_b64_tr_b16 v[{r+2}:{r+3}], v{vVA+(d&3)} offset:{slot*TILE + 6144 + (d>>2)*128}", None))
        for d in range(8, 12):
            r = POOL + 16 + (d % 4)*4
            for b in betas:
                seq.append(("M", f"v_mfma_f32_16x16x32_bf16 {aq(Oreg(b,d))}, {vq(r)}, {vq(Preg(par,b))}, {aq(Oreg(b,d))}", None))
        lines, _ = finalize(seq)
        for l in lines: A(l)

    def epilogue(self, betas, rowreg, T0):
        A = self.A
        OMR = [QV + 4*k for k in range(8)] + [Preg(0, 0), Preg(0, 1), Preg(1, 0), Preg(1, 1)]
        X = Sreg(0, 0); ST = Sreg(1, 0); WA = TMP; RA = TMP + 4
        A(f"  s_add_u32 s3, s{rowreg}, 4096\n  s_add_u32 s4, s{rowreg}, 8192")
        for qd in range(12):
            sreg, off = (f"s{rowreg}", qd*1024) if qd < 4 else (("s3", (qd-4)*1024) if qd < 8 else ("s4", (qd-8)*1024))
            A(f"  buffer_load_dwordx4 {vq(OMR[qd])}, v{vLIN}, s[{sW}:{sW+3}], {sreg} offen offset:{off} {self.P.get('olf','')}")
        A(f"  v_lshrrev_b32 v{X}, 4, v{vLIN}\n  v_and_b32 v{X+1}, 15, v{X}\n  v_lshrrev_b32 v{X+2}, 4, v{X}")
        A(f"  v_lshrrev_b32 v{X+3}, 1, v{X+2}\n  v_and_b32 v{X+4}, 7, v{X+1}\n  v_xor_b32 v{X+3}, v{X+3}, v{X+4}\n  v_lshlrev_b32 v{X+3}, 4, v{X+3}")
        A(f"  v_lshl_add_u32 v{WA}, v{X+1}, 7, v{X+3}\n  v_and_b32 v{X+3}, 1, v{X+2}\n  v_lshl_add_u32 v{WA}, v{X+3}, 3, v{WA}\n  s_add_u32 s5, s{sGM0}, 8192\n  v_add_u32 v{WA}, s5, v{WA}")
        for x in range(1, 4): A(f"  v_xor_b32 v{WA+x}, {32*x}, v{WA}")
        A(f"  v_lshrrev_b32 v{X+3}, 3, v{X}\n  v_and_b32 v{X+4}, 7, v{X}\n  v_xor_b32 v{X+5}, v{X+4}, v{X+3}\n  v_lshlrev_b32 v{X+5}, 4, v{X+5}\n  v_lshl_add_u32 v{RA}, v{X+3}, 7, v{X+5}\n  v_add_u32 v{RA}, s5, v{RA}")
        A(f"  v_mul_u32_u24 v{RA+1}, 384, v{X+3}\n  v_lshl_add_u32 v{RA+1}, v{X+4}, 4, v{RA+1}")
        for bi, b in enumerate(betas):
            A(f"  v_rcp_f32 v{RA+2+bi}, v{L0+4*b}")
        A("  s_nop 0")
        for bi, b in enumerate(betas):
            A(f"  v_mul_f32 v{RA+2+bi}, s{sG1}, v{RA+2+bi}")
        units = [(bi, T) for bi in range(2) for T in range(3)]
        nst = 0
        def flush(u):
            bi, T = units[u]; buf = (u & 1)*2048
            A(f"  ds_read_b128 {vq(ST)}, v{RA} offset:{buf}\n  ds_read_b128 {vq(ST+4)}, v{RA} offset:{buf+1024}")
            A(f"  s_add_u32 s6, s{rowreg}, {bi*6144 + T*128}\n  s_add_u32 s7, s6, 3072")
        def store(u):
            fl = self.P.get('ostf', '')
            if "noos" in self.ab:
                A("  s_waitcnt lgkmcnt(0)"); return
            A(f"  buffer_store_dwordx4 {vq(ST)}, v{RA+1}, s[{sO}:{sO+3}], s6 offen {fl}")
            A(f"  buffer_store_dwordx4 {vq(ST+4)}, v{RA+1}, s[{sO}:{sO+3}], s7 offen {fl}")
        for u, (bi, T) in enumerate(units):
            b = betas[bi]; f = RA + 2 + bi; buf = (u & 1)*2048
            A(f"  s_waitcnt vmcnt({(10 - 2*u) + (0 if 'noos' in self.ab else max(0, 2*(u-1)))})")
            for x in range(4):
                d = 4*T + x
                for h in range(2):
                    j = 2*d + h
                    om = OMR[6*bi + j // 4] + j % 4; a = Oreg(b, d) + 2*h
                    A(f"  v_accvgpr_read_b32 v{X}, a{a}\n  v_accvgpr_read_b32 v{X+1}, a{a+1}\n  v_lshlrev_b32 v{X+2}, 16, v{om}\n  v_and_b32 v{X+3}, s{sHI}, v{om}")
                    A(f"  v_fma_f32 v{X}, v{X}, v{f}, v{X+2}\n  v_fma_f32 v{X+1}, v{X+1}, v{f}, v{X+3}\n  v_cvt_pk_bf16_f32 v{X+4+2*(x&1)+h}, v{X}, v{X+1}")
                A(f"  ds_write_b64 v{WA+x}, v[{X+4+2*(x&1)}:{X+5+2*(x&1)}] offset:{buf}")
                if x == 1 and u >= 1:
                    A("  s_waitcnt lgkmcnt(2)")
                    flush(u - 1)
                if x == 3 and u >= 1:
                    A("  s_waitcnt lgkmcnt(2)")
                    store(u - 1)
        A("  s_waitcnt lgkmcnt(0)")
        flush(5)
        A("  s_waitcnt lgkmcnt(0)")
        store(5)

    def build(self):
        A = self.A
        self.routines()
        names = []
        na = self.body("p2", None, 0); nb = self.body("p2", None, 1)
        for kind in ("p1", "p2"):
            for gt in ("K", "V"):
                for H in (0, 1): names.append(self.body(kind, gt, H))
        tr = {nm: vm_trace(self.bodies[nm]["seq"]) for nm in self.bodies}
        op = lambda t, k: [("op", t)]*k
        prime_tr = op(("G", 6), 4) + op(("G", 7), 4)
        pre = op(("R", "pre0"), 6) + op(("R", "pre1"), 9) + op(("Q", "q"), 6)
        preds = {
            na: [pre], nb: [tr[na] + prime_tr],
            "P1K0": [tr["P1K1"], tr[na] + prime_tr + tr[nb]],
            "P1K1": [tr["P1K0"]],
            "P1V0": [tr["P1V1"]],
            "P1V1": [tr["P1V0"]],
            "P2K0": [tr["P2K1"], tr["P1K1"]],
            "P2K1": [tr["P2K0"]],
            "P2V0": [tr["P2V1"], tr["P1V1"]],
            "P2V1": [tr["P2V0"]],
        }
        self.prologue()
        self.stamp(1)
        self.step0()
        self.stamp(2)
        for l in self.emit_body(na, preds[na]): A(l)
        self.stamp(52)
        ops = [t for k, t in tr[na] if k == "op"]
        lastq = max(i for i, t in enumerate(ops) if t and t[0] == "Q")
        A(f"  s_waitcnt vmcnt({len(ops) - 1 - lastq}) lgkmcnt(0)\n  v_add_u32 v{Sreg(0,0)}, s{sGM0}, v{vKA}\n  v_xor_b32 v{Sreg(0,0)+1}, 64, v{Sreg(0,0)}")
        self.stamp(53)
        for b in (0, 1):
            self.qproc_inplace(b)
        self.gather_srd(sMK)
        A(f"  s_mov_b32 s{sMVS}, s{sMV}\n  s_and_b32 s{sMVS+1}, s{sMV+1}, 0xffff\n  s_mov_b32 s{sMVS+2}, {HEAD}\n  s_mov_b32 s{sMVS+3}, 0x20000")
        A(f"  s_mul_i32 s{sTOF2}, s{sI}, 98304\n  s_mul_i32 s5, s{sWAVE}, 24576\n  s_add_u32 s{sTOF2}, s{sTOF2}, s5\n  s_mov_b32 s{sTOFF}, 0")
        self.prime("K")
        A(f"  s_call_b64 s[{sRET}:{sRET+1}], CPQ_0")
        self.stamp(49)
        for l in self.emit_body(nb, preds[nb]): A(l)
        A(f"  s_call_b64 s[{sRET}:{sRET+1}], MASK_p1")
        A(f"  s_mov_b32 s{sB}, 0\n  s_mov_b32 s{sPH}, 1")
        self.stamp(3)
        A("  s_branch P1K0")
        for nm in names:
            B = self.bodies[nm]
            A(f".p2align 6\n{nm}:")
            self.stamp_dyn(16)
            for l in self.emit_body(nm, preds[nm]): A(l)
            self.stamp_dyn(32)
            kind, gt, H = B["kind"], B["gt"], B["H"]
            K = kind.upper()
            if gt == "K" and self.P.get("mvt", 2) == 2:
                A(f"  s_add_u32 s3, s{sB}, s{sI}\n  s_and_b32 s3, s3, 1\n  s_cmp_lg_u32 s3, 0\n  s_cbranch_scc1 {nm}_NT")
                A(f"  s_cmp_lt_u32 s{sB}, 1\n  s_cbranch_scc1 {nm}_NT\n  s_cmp_ge_u32 s{sTOFF}, 3\n  s_cbranch_scc1 {nm}_NT")
                A(f"  s_mov_b32 m0, {DUMMY}\n  s_nop 0\n  buffer_load_dword v{vTCH}, s[{sMVS}:{sMVS+3}], s{sTOF2} offen {self.P.get('tf','')} lds\n  s_add_u32 s{sTOF2}, s{sTOF2}, 8192\n  s_add_u32 s{sTOFF}, s{sTOFF}, 1")
                A(f"{nm}_NT:")
            if self.P.get("mvt", 2) == 1:
                tb = self.P.get("mvt_b", [7, 8, 10]); mk = self.P.get("mvt_mask", 3)
                A(f"  s_and_b32 s3, s{sI}, {mk}\n  s_add_u32 s3, s3, s{sB}")
                A(f"  s_cmp_eq_u32 s3, {tb[0]}\n  s_cbranch_scc1 {nm}_DT\n  s_cmp_eq_u32 s3, {tb[1]}\n  s_cbranch_scc1 {nm}_DT\n  s_cmp_eq_u32 s3, {tb[2]}\n  s_cbranch_scc0 {nm}_NT")
                A(f"{nm}_DT:\n  s_mov_b32 m0, {DUMMY}\n  v_mul_u32_u24 v{TMP}, 3, v{vTCH}\n  buffer_load_dword v{TMP}, s[{sMVS}:{sMVS+3}], s{sTOF2} offen {self.P.get('tf','')} lds\n  s_add_u32 s{sTOF2}, s{sTOF2}, 128")
                A(f"{nm}_NT:")
            if H == 0:
                if gt == "V" and kind == "p2":
                    A(f"  s_cmp_eq_u32 s{sB}, s{sEPA}\n  s_cbranch_scc0 {nm}_NE\n  s_call_b64 s[{sEPR}:{sEPR+1}], EPI_A\n{nm}_NE:")
                A(f"  s_add_u32 s{sB}, s{sB}, 1\n  s_branch {K}{gt}1")
                continue
            if gt == "K":
                A(f"  s_cmp_eq_u32 s{sB}, 7\n  s_cbranch_scc0 {nm}_NVE\n  s_call_b64 s[{sRET2}:{sRET2+1}], VEARLY\n{nm}_NVE:")
                for gm in range(4):
                    A(f"  s_cmp_eq_u32 s{sB}, {2*gm+1}\n  s_cbranch_scc0 {nm}_NK{gm}\n  s_call_b64 s[{sRET}:{sRET+1}], KEND_{gm}\n{nm}_NK{gm}:")
            else:
                for m in range(1, 4):
                    A(f"  s_cmp_eq_u32 s{sB}, {7 + 2*m}\n  s_cbranch_scc0 {nm}_NV{m}\n  s_call_b64 s[{sRET}:{sRET+1}], VSET_{m}\n{nm}_NV{m}:")
            if kind == "p1":
                A(f"  s_cmp_eq_u32 s{sB}, s{sB1LAST}\n  s_cbranch_scc0 {nm}_NP")
                self.stamp(4)
                self.drain([0, 1], 1, 3)
                A(f"  s_call_b64 s[{sRET}:{sRET+1}], MASK_p2\n  s_mov_b32 s{sPH}, 2")
                A(f"{nm}_NP:")
            if gt == "V":
                A(f"  s_cmp_eq_u32 s{sB}, s{sEPA}\n  s_cbranch_scc0 {nm}_NE\n  s_call_b64 s[{sEPR}:{sEPR+1}], EPI_A\n{nm}_NE:")
                A(f"  s_cmp_eq_u32 s{sB}, 15\n  s_cbranch_scc1 FINISH")
                A(f"  s_add_u32 s{sB}, s{sB}, 1")
                if kind == "p1": A(f"  s_cmp_eq_u32 s{sPH}, 2\n  s_cbranch_scc1 P2V0")
                A(f"  s_branch {K}V0")
            else:
                A(f"  s_add_u32 s{sB}, s{sB}, 1\n  s_cmp_eq_u32 s{sB}, 8\n  s_cbranch_scc1 SWITCH")
                if kind == "p1": A(f"  s_cmp_eq_u32 s{sPH}, 2\n  s_cbranch_scc1 P2K0")
                A(f"  s_branch {K}K0")
        A("SWITCH:")
        self.stamp(7)
        self.vphase_setup()
        A("  s_waitcnt vmcnt(0) lgkmcnt(0)")
        A(f"  s_cmp_eq_u32 s{sPH}, 2\n  s_cbranch_scc1 P2V0\n  s_branch P1V0")
        A("EPI_A:\n  s_nop 7")
        self.stamp(5)
        self.epilogue([0, 1], sROWA, QV)
        self.stamp(6)
        A(f"  s_setpc_b64 s[{sEPR}:{sEPR+1}]")
        A("VEARLY:")
        self.vphase_early()
        A(f"  s_setpc_b64 s[{sRET2}:{sRET2+1}]")
        A("FINISH:")
        self.stamp(8)
        self.drain([2, 3], 1, 3)
        A("  s_nop 7")
        self.stamp(9)
        self.epilogue([2, 3], sROWB, QV)
        if self.instr:
            A("  s_waitcnt vmcnt(0)")
            self.stamp(10)
            A("  s_memrealtime s[98:99]\n  s_load_dwordx2 s[4:5], s[0:1], 72\n  s_waitcnt lgkmcnt(0)")
            A(f"  s_lshl_b32 s100, s{sWAVE}, 8\n  s_add_u32 s100, s100, {STAMPA}\n  v_mov_b32 v2, s100\n  v_mov_b32 v3, s98\n  ds_write_b32 v2, v3 offset:48\n  s_getreg_b32 s3, hwreg(HW_REG_XCC_ID)\n  v_mov_b32 v3, s3\n  ds_write_b32 v2, v3 offset:52")
            A(f"  v_lshrrev_b32 v4, 2, v{vLIN}\n  v_add_u32 v5, s100, v4\n  s_waitcnt lgkmcnt(0)\n  ds_read_b32 v6, v5\n  s_waitcnt lgkmcnt(0)")
            A("  s_add_u32 s4, s4, 0x8000000\n  s_addc_u32 s5, s5, 0")
            A(f"  s_lshl_b32 s3, s2, 2\n  s_add_u32 s3, s3, s{sWAVE}\n  s_lshl_b32 s3, s3, 8\n  v_add_u32 v2, s3, v4")
            if self.P.get("dbg", 0):
                A("  s_load_dwordx2 s[6:7], s[0:1], 64\n  s_waitcnt lgkmcnt(0)")
                A(f"  s_lshl_b32 s100, s{sWAVE}, 8\n  s_add_u32 s100, s100, {STAMPA}\n  v_mov_b32 v2, s100\n  ds_read_b32 v8, v2 offset:44\n  ds_read_b32 v9, v2 offset:48\n  s_waitcnt lgkmcnt(0)")
                A("  v_not_b32 v8, v8\n  v_mov_b32 v3, 0\n  s_mov_b64 exec, 1\n  global_atomic_umax v3, v8, s[6:7]\n  global_atomic_umax v3, v9, s[6:7] offset:4\n  s_mov_b64 exec, -1")
                A(f"  s_cmp_eq_u32 s2, {self.P.get('dbgwg', 0)}\n  s_cbranch_scc0 DBG_SKIP\n  s_cmp_eq_u32 s{sWAVE}, 0\n  s_cbranch_scc0 DBG_SKIP")
                A(f"  v_lshrrev_b32 v10, 2, v{vLIN}\n  v_lshrrev_b32 v10, 2, v10\n  v_add_u32 v11, 1, v10\n  v_lshlrev_b32 v11, 2, v11\n  v_add_u32 v11, s100, v11\n  ds_read_b32 v12, v11\n  ds_read_b32 v14, v2\n  s_waitcnt lgkmcnt(0)\n  v_sub_u32 v12, v12, v14")
                A("  v_lshlrev_b32 v10, 2, v10\n  s_mov_b64 exec, 0x3ff\n  global_store_dword v10, v12, s[6:7] offset:8\n  s_mov_b64 exec, -1\nDBG_SKIP:")
            else:
                A("  global_store_dword v2, v6, s[4:5]")
        A("AT_END:\n  s_endpgm")
        for blk in self.ool:
            for l in blk: A(l)
        import tileorder
        pm = self.P.get("perm", 2)
        if pm == 0: order = {i: [32, 33, 34, 35] + list(range(4*i + 4)) + [x for x in range(4*i + 4, 64 - 4*i) if not 32 <= x < 36] for i in range(8)}
        elif pm == 4: order, _ = tileorder.solve4(mode=self.P.get("convoy", "rot"))
        else: order, _ = tileorder.solve3(margin=self.P.get("margin", 2.0), quota=tuple(self.P.get("quota", (12, 10, 6))), pick=self.P.get("pick", "new"))
        A(".p2align 6\n.type TILETAB,@object\nTILETAB:")
        for i in range(8):
            row = order[i] + [255]*(64 - len(order[i]))
            A("  .byte " + ", ".join(str(x) for x in row))
        A(".size TILETAB, 512")
        return A

def desc(name, vgpr, accum, sgpr=102):
    return f""".section .rodata,"a"
.p2align 6
.amdhsa_kernel {name}
  .amdhsa_next_free_vgpr {vgpr}
  .amdhsa_next_free_sgpr {sgpr}
  .amdhsa_accum_offset {accum}
  .amdhsa_group_segment_fixed_size 0
  .amdhsa_kernarg_size 80
  .amdhsa_user_sgpr_count 2
  .amdhsa_user_sgpr_kernarg_segment_ptr 1
  .amdhsa_system_sgpr_workgroup_id_x 1
.end_amdhsa_kernel
"""
HDR = """; Memory-augmented causal attention (Memorizing Transformer block), hand-scheduled for gfx950.
; 16x16x32 bf16 MFMA, kNN memory attention (LDS-DMA row gather) interleaved in the same instruction stream.
; @launch grid=(256,1,1) block=(256,1,1) lds=163840
.amdgcn_target "amdgcn-amd-amdhsa--gfx950"
.text
"""
if __name__ == "__main__":
    instr = "instr" in sys.argv
    params = {"touch": 0, "coop": 0, "ostf": "sc1", "omf": "sc1", "iters": 600000, "qf": "nt"}; tag = ""; ab = ""
    for a in sys.argv[1:]:
        if a.startswith("P="): params.update(json.loads(a[2:]))
        if a.startswith("tag="): tag = a[4:]
        if a.startswith("ab="): ab = a[3:]
    g = Gen(instr, params, ab)
    A = g.build()
    full = HDR + A.text() + desc(KNAME, 512, 256)
    fn = f"fused{'_i' if instr else ''}{tag}.s"
    open(fn, "w").write(full)
    print(fn, "bytes", len(full))
```

```python
def times(i):
    T = []; t = 0.0
    N = 64 - 4*i
    for s in range(N):
        T.append(t)
        p1 = s < 4*i + 4
        t += 2.0 if p1 else 1.0
        if s == 4*i + 3: t += 0.8
        if s >= 1:
            if p1: b = (s - 2)//2 if (s - 2) % 2 == 1 else None
            else:
                u = s - (4*i + 4); b = 2*i + 1 + u//4 if u % 4 == 3 else None
            if b is not None:
                if b < 8 and b % 2 == 1: t += 0.5
                if b == 7: t += 2.0
                if b == max(2*i, 11): t += 3.5
    return T
def solve(margin=2.0, buf=4, verbose=False):
    TT = [times(i) for i in range(8)]
    INF = 1e9
    touch = {x: INF for x in range(64)}
    for i in range(8):
        for s in range(4*i + 4):
            ti = TT[i][max(s - 4, 0)]
            touch[s] = min(touch[s], ti)
    order = {i: list(range(4*i + 4)) for i in range(8)}
    remain = {i: set(range(4*i + 4, 64 - 4*i)) for i in range(8)}
    leads = {i: 0 for i in range(8)}; stalls = {i: 0 for i in range(8)}
    ev = sorted((TT[i][max(s - 4, 0)], i, s) for i in range(8) for s in range(4*i + 4, 64 - 4*i))
    started = lambda j, ti: TT[j][max(4*j + 4 - 4, 0)] <= ti
    BUF = buf
    for (ti, i, s) in ev:
        free = [x for x in remain[i] if touch[x] + margin <= ti]
        cand = [x for x in remain[i] if touch[x] == INF]
        act = [j for j in range(8) if remain[j] and started(j, ti)]
        bufmin = min(len([x for x in remain[j] if touch[x] <= ti])
                     if [x for x in remain[j] if touch[x] == INF] else 99 for j in act)
        able = [j for j in act if [x for x in remain[j] if touch[x] == INF]]
        turn = min(able, key=lambda j: (leads[j], -j)) if able else None
        lead = cand and (not free or (bufmin <= BUF and turn == i))
        if lead:
            def score(x): return sum(1 for j in range(8) if j != i and x in remain[j])
            x = max(cand, key=lambda x: (score(x), -x))
            leads[i] += 1
        elif free:
            x = min(free, key=lambda x: touch[x])
        else:
            x = min(remain[i], key=lambda x: touch[x]); stalls[i] += 1
        touch[x] = min(touch[x], ti)
        remain[i].discard(x); order[i].append(x)
    if verbose:
        for i in range(8): print(i, "leads", leads[i], "stalls", stalls[i], order[i][4*i+4:])
    return order, leads
if __name__ == "__main__":
    for buf in (2,3,4):
        print("buf",buf); solve(buf=buf, verbose=True)


def solve2(margin=2.0, quota=(12, 10, 6, 4), pick="old", verbose=False):
    TT = [times(i) for i in range(8)]
    INF = 1e9
    touch = {x: INF for x in range(64)}
    for i in range(8):
        for s in range(4*i + 4):
            touch[s] = min(touch[s], TT[i][max(s - 4, 0)])
    lead = {}; hi = 63
    for i, q in enumerate(quota):
        lead[i] = list(range(hi, hi - q, -1)); hi -= q
    order = {i: list(range(4*i + 4)) for i in range(8)}
    remain = {i: set(range(4*i + 4, 64 - 4*i)) for i in range(8)}
    leads = {i: 0 for i in range(8)}
    ev = sorted((TT[i][max(s - 4, 0)], i, s) for i in range(8) for s in range(4*i + 4, 64 - 4*i))
    for (ti, i, s) in ev:
        mine = [x for x in lead.get(i, []) if x in remain[i] and touch[x] == INF]
        free = [x for x in remain[i] if touch[x] + margin <= ti]
        if mine:
            x = mine[0]; leads[i] += 1
        elif free:
            x = min(free, key=lambda x: touch[x]) if pick == "old" else max(free, key=lambda x: touch[x])
        else:
            x = min(remain[i], key=lambda x: (touch[x], x))
            if touch[x] > ti: leads[i] += 1
        touch[x] = min(touch[x], ti)
        remain[i].discard(x); order[i].append(x)
    if verbose:
        for i in range(8): print(i, "leads", leads[i], order[i][4*i+4:])
    return order, leads
if __name__ == "__main__":
    print("solve2"); solve2(verbose=True); print(); solve2(quota=(12,10,6,4), pick="new", verbose=True)


def times3(i):
    T = []; t = 0.0; N = 64 - 4*i
    for s in range(N):
        T.append(t)
        p1 = 4 <= s < 4*i + 8
        t += 2.0 if p1 else 1.0
        if s == 2: t += 1.2
        if s == 4*i + 7: t += 0.8
        b = None
        if p1 and (s - 4) % 2 == 1: b = (s - 4)//2
        if s >= 4*i + 8 and (s - 4*i - 8) % 4 == 3: b = 2*i + 2 + (s - 4*i - 8)//4
        if b is not None:
            if b < 8 and b % 2 == 1: t += 0.5
            if b == 7: t += 2.0
            if b == max(2*i + 1, 11): t += 3.5
    return T
def solve3(margin=2.0, quota=(12, 10, 6), pick="new", verbose=False):
    TT = [times3(i) for i in range(8)]
    INF = 1e9
    touch = {x: INF for x in range(64)}
    for x in range(32, 36): touch[x] = 0
    for i in range(8):
        for x in range(4*i + 4): touch[x] = min(touch[x], TT[i][x])
    lead = {}; hi = 63
    for i, q in enumerate(quota):
        lead[i] = [x for x in range(hi, hi - q, -1) if x >= 36]; hi -= q
    order = {i: [32, 33, 34, 35] + list(range(4*i + 4)) for i in range(8)}
    remain = {i: set(x for x in range(4*i + 4, 64 - 4*i) if not 32 <= x < 36) for i in range(8)}
    leads = {i: 0 for i in range(8)}
    ev = sorted((TT[i][s - 4], i, s) for i in range(8) for s in range(4*i + 8, 64 - 4*i))
    for (ti, i, s) in ev:
        mine = [x for x in lead.get(i, []) if x in remain[i] and touch[x] == INF]
        free = [x for x in remain[i] if touch[x] + margin <= ti]
        if mine: x = mine[0]; leads[i] += 1
        elif free: x = min(free, key=lambda x: touch[x]) if pick == "old" else max(free, key=lambda x: touch[x])
        else:
            x = min(remain[i], key=lambda x: (touch[x], x))
            if touch[x] > ti: leads[i] += 1
        touch[x] = min(touch[x], ti)
        remain[i].discard(x); order[i].append(x)
    if verbose:
        for i in range(8): print(i, "leads", leads[i], order[i][4*i+8:])
    for i in range(8): assert sorted(order[i]) == list(range(64 - 4*i)), i
    return order, leads
if __name__ == "__main__":
    print("solve3"); solve3(verbose=True)


def solve4(mode="rot", verbose=False):
    order = {}
    for i in range(8):
        o = [32, 33, 34, 35] + list(range(4*i + 4))
        for tau in range(4*i + 4, 32):
            n = (tau - 4)//4 + 1
            lead = (tau % n) == i if mode == "rot" else (i == 0 if mode == "zero" else (i + tau) % 2 == 0)
            hi = 67 - tau
            o += [hi, tau] if lead else [tau, hi]
        order[i] = o
        assert sorted(o) == list(range(64 - 4*i)), i
    if verbose:
        for i in range(8): print(i, order[i][4*i+8:])
    return order, None
if __name__ == "__main__":
    print("solve4"); solve4(verbose=True)


def solve5(margin=2.0, buf=3, verbose=False):
    TT = [times3(i) for i in range(8)]
    INF = 1e9
    touch = {x: INF for x in range(64)}
    for x in range(32, 36): touch[x] = 0
    for i in range(8):
        for x in range(4*i + 4): touch[x] = min(touch[x], TT[i][x])
    order = {i: [32, 33, 34, 35] + list(range(4*i + 4)) for i in range(8)}
    remain = {i: set(x for x in range(4*i + 4, 64 - 4*i) if not 32 <= x < 36) for i in range(8)}
    leads = {i: 0 for i in range(8)}
    ev = sorted((TT[i][s - 4], i, s) for i in range(8) for s in range(4*i + 8, 64 - 4*i))
    started = lambda j, ti: TT[j][4*j + 4] <= ti
    for (ti, i, s) in ev:
        free = [x for x in remain[i] if touch[x] + margin <= ti]
        cand = [x for x in remain[i] if touch[x] == INF]
        act = [j for j in range(8) if remain[j] and started(j, ti)]
        able = [j for j in act if [x for x in remain[j] if touch[x] == INF]]
        bufmin = min([len([x for x in remain[j] if touch[x] <= ti]) for j in able] + [99])
        turn = min(able, key=lambda j: (leads[j], -j)) if able else None
        if cand and (not free or (bufmin <= buf and turn == i)):
            def score(x): return sum(1 for j in range(8) if j != i and x in remain[j])
            x = max(cand)
            leads[i] += 1
        elif free: x = max(free, key=lambda x: touch[x])
        else: x = min(remain[i], key=lambda x: (touch[x], x))
        touch[x] = min(touch[x], ti)
        remain[i].discard(x); order[i].append(x)
    if verbose:
        for i in range(8): print(i, "leads", leads[i], order[i][4*i+8:])
    for i in range(8): assert sorted(order[i]) == list(range(64 - 4*i)), i
    return order, leads
if __name__ == "__main__":
    print("solve5"); solve5(verbose=True); solve5(buf=1, verbose=True)
```

```python
import sys, json
from asmlib import Asm, fix_hazards
from sched3 import Item, optimize, emit, vm_trace, finalize

HEAD = 786432
LOG2E = 1.4426950408889634
CSCALE = (192 ** -0.5) * LOG2E
def f2u(x):
    import struct
    return struct.unpack("<I", struct.pack("<f", x))[0]
KNAME = "standalone__memory_aug_memorizing_tr__prompt_kernel"

TILE = 12288
KR = 0
VR = 49152
GR = 98304
IDX = 147456
PA = 155648
ZA = 159744
LDS_BYTES = 163840
STAMPA = 161024
DUMMY = 160768
QAREA = [73728, 86016, 24576, 36864]

vDUM = 0; vIA = 1; vKA = 2; vVA = 4; vDV = 8; vX = 11; vNINF = 12; vLIN = 13; vT0 = 14; vTCH = 15
S0 = 16; P0 = 48; NEGM = 80; L0 = 96; ONES = 112; MNEG = 116; QV = 120; POOL = 152; TMP = 184; NEGM1 = 192
PAIR = 200
GF = 208
GQ = 216
GD = 240
GX = 248
vKG = 250
vPW = 252
ACC = 216
GB = 232
vVG = 240
vPB = 244
OUTT = 248
vSTAMP = 0

def vq(r): return f"v[{r}:{r+3}]"
def aq(r): return f"a[{r}:{r+3}]"
def Sreg(k, b): return S0 + k*16 + b*4
def Preg(par, b): return P0 + par*16 + b*4
def Oreg(b, d): return (b*12 + d)*4
def Qop(b, s):
    if b >= 2: return aq(192 + ((b-2)*6 + s)*4)
    if b == 0 and s < 4: return aq(240 + s*4)
    k = (s - 4) if b == 0 else (2 + s)
    return vq(QV + k*4)
def pool(z): return POOL + (z % 8)*4

sK, sV, sG, sO, sW = 8, 12, 16, 20, 24
sWAVE, sI, sH, sN = 28, 29, 30, 31
sT, sB, sKOFF, sSPEC = 32, 33, 34, 35
sDA, sDB, sB1LAST, sEPA = 36, 37, 38, 39
sD, sTMP = 40, 41
sMASK = 42
sTHR = 50; sKM0 = 51; sVM0 = 52; sGM0 = 53; sC = 54; sHI = 55; sG1 = 56; sGG = 57
sROWA, sROWB = 58, 59
sT1, sT2 = 60, 61
sOM0, sOM1 = 62, 63
sCMP = 64
sFLAG = 66
sMK = 68
sMV = 70
sRET = 72
sRET2 = 4
sTS = 76
sSEL = 80
sVT = 80; sVI = 83; sVP = 86; sVO = 90
sTOFF = 96
sTOF2 = 97
sMVS = 68
sEPR = 94
sST = 98
sR0, sR1, sR2, sR3, sR4 = 76, 77, 78, 79, 74
sWP = 75
sOMF = 33+2
sQO = 35
sPH = 34
vSEQ = 0

class Gen:
    def __init__(self, instr=False, params=None, ablate=""):
        self.A = Asm(); self.ool = []; self.instr = instr; self.P = params or {}; self.ab = ablate
        self.bodies = {}
    def stamp(self, k):
        if not self.instr: return
        self.A(f"  s_memtime s[{sST}:{sST+1}]\n  s_lshl_b32 s100, s{sWAVE}, 8\n  s_add_u32 s100, s100, {STAMPA + 4*k}\n  s_waitcnt lgkmcnt(0)\n  v_mov_b32 v{TMP+6}, s{sST}\n  v_mov_b32 v{TMP+7}, s100\n  ds_write_b32 v{TMP+7}, v{TMP+6}")
    def stamp_dyn(self, base):
        if not self.instr: return
        self.A(f"  s_memtime s[{sST}:{sST+1}]\n  s_lshl_b32 s100, s{sWAVE}, 6\n  s_add_u32 s100, s100, s{sB}\n  s_lshl_b32 s100, s100, 2\n  s_add_u32 s100, s100, {STAMPA + 4*base}\n  s_waitcnt lgkmcnt(0)\n  v_mov_b32 v{TMP+6}, s{sST}\n  v_mov_b32 v{TMP+7}, s100\n  ds_write_b32 v{TMP+7}, v{TMP+6}")

    def kread(self, f, slot):
        k, s = divmod(f, 6)
        return f"ds_read_b128 {vq(pool(f))}, v{vKA+(s&1)} offset:{slot*TILE + k*6144 + (s>>1)*128}"
    def vread(self, d, rho, slot):
        r = pool(12 + d) + 2*rho
        return f"ds_read_b64_tr_b16 v[{r}:{r+1}], v{vVA+(d&3)} offset:{slot*TILE + rho*6144 + (d>>2)*128}"
    def cinit(self, kind, k, b):
        mb = (0, 1) if kind == "p1" else (2, 3)
        if k == 1 and b in mb: return vq(NEGM1 + 4*mb.index(b))
        return vq(NEGM + 4*b)

    def step_parts(self, kind, tm4):
        P = self.P.get(kind, {})
        par = tm4 & 1
        qb = [0, 1, 2, 3] if kind == "p1" else [2, 3]
        nq = len(qb); NQ = 12*nq
        mf = []
        for f in range(12):
            k, s = divmod(f, 6)
            for b in qb:
                c = self.cinit(kind, k, b) if s == 0 else vq(Sreg(k, b))
                mf.append(f"v_mfma_f32_16x16x32_bf16 {vq(Sreg(k,b))}, {vq(pool(f))}, {Qop(b,s)}, {c}")
        pv = []
        for d in range(12):
            for b in qb:
                pv.append(f"v_mfma_f32_16x16x32_bf16 {aq(Oreg(b,d))}, {vq(pool(12+d))}, {vq(Preg(par^1,b))}, {aq(Oreg(b,d))}")
        rs = [f"v_mfma_f32_16x16x32_bf16 {vq(L0+4*b)}, {vq(ONES)}, {vq(Preg(par,b))}, {vq(L0+4*b)}" for b in qb]
        RSD = P.get("RSD", 9 if nq == 4 else 9)
        rs_pos = NQ + RSD*nq
        mf = mf + pv[:RSD*nq] + rs + pv[RSD*nq:]
        return dict(kind=kind, tm4=tm4, par=par, qb=qb, nq=nq, NQ=NQ, mf=mf, RSD=RSD, rs_pos=rs_pos, n=len(mf), P=P)

    def step_streams(self, sp, base, F, name, last_in_body):
        kind, tm4, par, qb, nq, NQ, RSD, rs_pos, n, P = (sp[k] for k in ("kind","tm4","par","qb","nq","NQ","RSD","rs_pos","n","P"))
        nrs = len(qb)
        def G(a): return F(base + a)
        def pv(d): return NQ + d*nq + (nrs if d >= RSD else 0)
        LEAD = P.get("LEAD", 7)
        BG = P.get("BG", NQ - 2)
        KW = P.get("KW", 5)
        pair = P.get("pair", nq == 2)
        kslot = tm4; knext = (tm4 + 1) % 4; vslot = (tm4 + 3) % 4
        end = G(n - 1)
        ks = []
        for f in range(4, 12):
            use = f*nq
            if pair and f % 2 == 1: use = (f-1)*nq
            lo = G((f-8)*nq + nq - 1) if f >= 8 else G(0) - (1 if base > 0 else 0)
            lo = max(lo, G(0))
            hi = min(G(use) - LEAD, G(BG) - KW)
            ks.append(Item(self.kread(f, kslot), "D", lo, max(hi, lo)))
        vs = []
        for d in range(12):
            use = pv(d)
            if pair and d % 2 == 1: use = pv(d-1)
            prev = 4 + d
            free = (prev*nq + nq - 1) if prev < 12 else pv(prev - 12) + nq - 1
            lo = G(free); hi = max(G(use) - LEAD, lo)
            vs.append(Item(self.vread(d, 0, vslot), "T", lo, hi)); vs.append(Item(self.vread(d, 1, vslot), "T", lo, hi))
        kn = []
        for f in range(4):
            lo = max(G(pv(f + 4) + nq - 1), G(BG) + 1)
            hi = end if nq == 4 else min(end, end - LEAD + 2*(f - f % 2) + 2)
            kn.append(Item(self.kread(f, knext), "D", lo, max(lo, hi)))
        sm = []; ti = 0
        for k in range(2):
            pend = None
            for bi, b in enumerate(qb):
                ready = G((6*k + 5)*nq + bi) + 4
                hi = G(rs_pos) - 2
                for h in range(2):
                    s = Sreg(k, b) + 2*h
                    t0 = TMP + (ti % 4)*2; ti += 1
                    sm.append(Item(f"v_exp_f32 v{t0}, v{s}", "E", ready, hi))
                    if pend: sm.append(pend)
                    sm.append(Item(f"v_exp_f32 v{t0+1}, v{s+1}", "E", ready, hi))
                    pend = Item(f"v_cvt_pk_bf16_f32 v{Preg(par,b)+2*k+h}, v{t0}, v{t0+1}", "V", ready, hi)
            pend.sep = 1; sm.append(pend)
        ck = []
        cg = G(rs_pos + nrs - 1) + 4
        lr = [L0 + 4*b for b in qb]
        chi = max(cg + 1, end - 2)
        if nq == 4:
            ck.append(Item(f"v_max3_f32 v{vT0}, v{lr[0]}, v{lr[1]}, v{lr[2]}", "V", cg, chi))
            ck.append(Item(f"v_max_f32 v{vT0}, v{vT0}, v{lr[3]}", "V", cg, chi))
        else:
            ck.append(Item(f"v_max_f32 v{vT0}, v{lr[0]}, v{lr[1]}", "V", cg, chi))
        ck.append(Item(f"v_cmp_nge_f32 s[{sCMP}:{sCMP+1}], s{sTHR}, v{vT0}", "V", cg, chi))
        b0 = G(BG) - 1
        sKO, sVO_ = (62, 63) if par == 0 else (6, 7)
        sc = [Item(f"s_mov_b32 s{sR0}, s{sR1}", "S", G(0), b0), Item(f"s_mov_b32 s{sR1}, s{sR2}", "S", G(0), b0),
              Item(f"s_mov_b32 s{sR2}, s{sR3}", "S", G(0), b0), Item(f"s_mov_b32 s{sR3}, s{sR4}", "S", G(0), b0),
              Item(f"s_add_u32 s{sD}, s{sT}, 4", "S", G(0), b0),
              Item(f"v_readlane_b32 s{sR4}, v{vSEQ}, s{sD}", "V", G(0), b0 - 4, sep=1),
              Item(f"s_mul_i32 s{sVO_}, s{sR2}, {TILE}", "S", G(0), b0, sep=1), Item(f"s_add_u32 s{sVO_}, s{sVO_}, s{sWP}", "S", G(0), b0),
              Item(f"s_mul_i32 s{sKO}, s{sR4}, {TILE}", "S", G(0), b0, sep=2), Item(f"s_add_u32 s{sKO}, s{sKO}, s{sWP}", "S", G(0), b0),
              Item(f"s_add_u32 s{sT}, s{sT}, 1", "S", G(0), end - 2)]
        initA = (name == "P1K0s0")
        if kind == "p1":
            sc.append(Item([f"s_cmp_ge_u32 s{sR1}, s{sDA}", f"s_cselect_b64 s[{sFLAG}:{sFLAG+1}], -1, 0"], "S", G(0), end - 1))
            if initA: sc.append(Item([f"s_cmp_eq_u32 s{sT}, 5", f"s_cselect_b64 s[{sFLAG}:{sFLAG+1}], -1, s[{sFLAG}:{sFLAG+1}]"], "S", G(0), end - 1))
        else:
            sc.append(Item(f"s_max_u32 s{sD}, s{sR0}, s{sR1}", "S", G(0), end - 1))
            sc.append(Item([f"s_cmp_ge_u32 s{sD}, s{sDB}", f"s_cselect_b64 s[{sFLAG}:{sFLAG+1}], -1, 0"], "S", G(0), end - 1))
        R = []
        g0 = G(BG) + 1
        for j in range(3):
            R.append((f"s_add_u32 m0, s{sKM0}, {kslot*TILE}", f"buffer_load_dwordx4 v{vDV+j}, s[{sK}:{sK+3}], s{sKO} offen offset:{1024*j} {self.P.get('rf','')} lds", ("R", name)))
        vdst = (tm4 + 2) % 4
        for j in range(3):
            R.append((f"s_add_u32 m0, s{sVM0}, {vdst*TILE}", f"buffer_load_dwordx4 v{vDV+j}, s[{sV}:{sV+3}], s{sVO_} offen offset:{1024*j} {self.P.get('rf','')} lds", ("R", name)))
        fixed = {G(BG): [f"NEEDV R:{name}", "NEED " + " ".join(f"v{pool(11)+r}" for r in range(4)), "s_barrier"]}
        stub = f"{name}_SLOW"
        tail = [f"s_or_b64 vcc, s[{sCMP}:{sCMP+1}], s[{sFLAG}:{sFLAG+1}]", f"s_cbranch_vccnz {stub}", f"{stub}B:"]
        self.ool.append([f"{stub}:",
                         f"  s_cmp_eq_u64 s[{sCMP}:{sCMP+1}], 0", f"  s_cbranch_scc1 {stub}_M",
                         f"  s_call_b64 s[{sRET}:{sRET+1}], RARE_{kind}_{par}",
                         f"{stub}_M:"] +
                        ([f"  s_cmp_eq_u32 s{sT}, 5", f"  s_cbranch_scc0 {stub}_N", f"  s_call_b64 s[{sRET}:{sRET+1}], INIT_A", f"{stub}_N:"] if initA else []) +
                        [f"  s_call_b64 s[{sRET}:{sRET+1}], MASK_{kind}",
                         f"  s_branch {stub}B"])
        waits = []
        for f in range(12):
            if not (pair and f % 2 == 1) and (base + f*nq) > 0: waits.append(G(f*nq) - 1)
        for d in range(12):
            if not (pair and d % 2 == 1): waits.append(G(pv(d)) - 1)
        extra = {}
        if pair:
            for f in range(0, 12, 2): extra[G(f*nq)] = [f"v{pool(f+1)+r}" for r in range(4)]
            for d in range(0, 12, 2): extra[G(pv(d))] = [f"v{pool(12+d+1)+r}" for r in range(4)]
        return dict(streams=[ks, vs, kn, sm, ck, sc], R=R, Rwin=(g0, end), fixed=fixed, tail=(end, tail), waits=waits, extra=extra, BG=G(BG))

    def body(self, kind, gt, H):
        name = f"{kind.upper()}{gt or 'N'}{H}"
        tms = ([0, 1] if H == 0 else [2, 3]) if kind == "p1" else [0, 1, 2, 3]
        if gt is None: tms = [1, 2] if H == 0 else [3]
        sps = [self.step_parts(kind, t) for t in tms]
        att = []; bases = []
        for sp in sps: bases.append(len(att)); att += sp["mf"]
        nA = len(att)
        PG = self.P.get("g", {})
        gm = []
        if gt:
            for j in range(24):
                g, x = divmod(j, 4)
                if gt == "K":
                    cp, T = divmod(g, 3); cc, sg = divmod(x, 2)
                    c = "0" if (T == 0 and sg == 0) else vq(GD + 4*cc)
                    gm.append(f"v_mfma_f32_16x16x32_bf16 {vq(GD+4*cc)}, {vq(GQ+4*(2*T+sg))}, {vq(GF+4*(j&1))}, {c}")
                else:
                    gg = 6*H + g; jb, cp = divmod(gg, 4)
                    c = "0" if cp == 0 else vq(ACC + 4*x)
                    gm.append(f"v_mfma_f32_16x16x32_bf16 {vq(ACC+4*x)}, {vq(GF+4*(j&1))}, {vq(GB+4*(g&1))}, {c}")
            a0 = PG.get("a0", 14); a1 = nA - PG.get("aend", 14)
            ins = [a0 + int(round(j*(a1 - a0)/23.0)) for j in range(24)]
            pos = PG.get("pos_" + kind)
            if pos:
                per = 24 // len(sps); nst = nA // len(sps)
                ins = [si*nst + pos[k] for si in range(len(sps)) for k in range(per)]
                ins = sorted(min(max(x, a0), a1) for x in ins)
                for k in range(1, 24):
                    if ins[k] <= ins[k-1]: ins[k] = ins[k-1] + 1
        else:
            ins = []
        mf = []; Fmap = {}; gpos = []
        jj = 0
        for a in range(nA):
            while jj < len(ins) and ins[jj] == a:
                gpos.append(len(mf)); mf.append(gm[jj]); jj += 1
            Fmap[a] = len(mf); mf.append(att[a])
        n = len(mf)
        F = lambda a: Fmap[a]
        streams = []; fixed = {}; busy = [0]*n; extra = {}; vmlist = []; tails = []
        for si, sp in enumerate(sps):
            r = self.step_streams(sp, bases[si], F, f"{name}s{si}", si == len(sps)-1)
            streams += r["streams"]
            for g, v in r["fixed"].items(): fixed.setdefault(g, []).extend(v)
            for g in r["waits"]: busy[g] += 1
            extra.update(r["extra"])
            lo, hi = r["Rwin"]
            if self.P.get("rspill", 1) and si + 1 < len(sps):
                spn = sps[si + 1]
                hi = F(bases[si + 1] + spn["P"].get("BG", spn["NQ"] - 2)) - 2 - self.P.get("rspill_margin", 0)
            nR = len(r["R"])
            for k, (m0, dma, tag) in enumerate(r["R"]):
                tgt = lo + (k + 0.5)*(hi - lo)/nR
                vmlist.append((tgt, lo, hi, m0, dma, tag, None))
            tails.append(r["tail"])
            if gt is None and H == 0 and si == 0:
                for k in range(6):
                    m0, so, dma = self.qa_dma(6 + k)
                    vmlist.append((hi - 0.9 + 0.1*k, lo, hi, [m0, so], dma, ("Q", name), None))
        LG = PG.get("LEAD", 7)
        if gt:
            gr = []
            GW = []
            for g in range(6):
                w = gpos[4*g] - LG - 3
                GW.append(w)
                fixed.setdefault(w, []).append(f"NEEDV G:{g}")
            for j in range(24):
                g, x = divmod(j, 4); slot = g % 3
                lo = (gpos[j-2] if j >= 2 else 0)
                if x < 2: lo = max(lo, GW[g])
                hi = max(gpos[j] - LG, lo + (1 if gt == "V" else 0))
                if gt == "K":
                    cc, sg = divmod(x, 2)
                    gr.append(Item(f"ds_read_b128 {vq(GF+4*(j&1))}, v{vKG+sg} offset:{slot*4096 + cc*2048}", "D", lo + (1 if x < 2 and lo == GW[g] else 0), hi))
                else:
                    r0 = GF + 4*(j&1)
                    l2 = lo + (1 if x < 2 and lo == GW[g] else 0)
                    gr.append(Item(f"ds_read_b64_tr_b16 v[{r0}:{r0+1}], v{vVG+x} offset:{slot*4096}", "T", l2, max(hi, l2)))
                    gr.append(Item(f"ds_read_b64_tr_b16 v[{r0+2}:{r0+3}], v{vVG+x} offset:{slot*4096+512}", "T", l2, max(hi, l2)))
                busy[gpos[j] - 1] += 1
            streams.append(gr)
            ix = []
            prevB = -1
            win = None
            if kind == "p1" and self.P.get("touch", 1):
                g0 = self.P.get("win_g0", 2)
                w0 = gpos[4*g0 - 1] + 1 + self.P.get("win_gs", 13)
                win = (w0, w0 + self.P.get("win_w", 64))
                vmlist.append((w0 + 0.1, w0, w0 + 1, f"s_mov_b32 m0, {DUMMY}", f"buffer_load_dword v{vTCH}, s[{sTS}:{sTS+3}], s{sTOFF} offen lds", ("X", name), None))
                vmlist.append((w0 + 0.2, w0, w0 + 2, None, f"buffer_load_dword v{vTCH}, s[{sMVS}:{sMVS+3}], s{sTOF2} offen lds", ("X", name), None))
                vmlist.append((w0 + 0.3, w0, win[1], None, None, None, f"s_add_u32 s{sTOFF}, s{sTOFF}, 49152"))
                vmlist.append((w0 + 0.4, w0, win[1], None, None, None, [f"s_add_u32 s{sTOF2}, s{sTOF2}, 32768", f"s_cmp_gt_u32 s{sB}, 5", f"s_cselect_b32 s{sTOF2}, 0x40000000, s{sTOF2}"]))
                nv = []
                for e in vmlist:
                    tgt, lo, hi, m0, dma, tag, sal = e
                    if tag and tag[0] == "R":
                        if lo <= win[0]: hi = min(hi, win[0] - 1);
                        else: lo = max(lo, win[1] + 1)
                        e = (tgt, lo, hi, m0, dma, tag, sal)
                    nv.append(e)
                vmlist = nv
                byw = {}
                for e in vmlist:
                    if e[5] and e[5][0] == "R": byw.setdefault(e[5][1], []).append(e)
                nv = []
                for e in vmlist:
                    if e[5] and e[5][0] == "R":
                        grp = byw[e[5][1]]; k = grp.index(e)
                        e = (e[1] + (k + 0.5)*(e[2] - e[1])/len(grp),) + e[1:]
                    elif e[6] and isinstance(e[6], str) and "s34, s34" in e[6].replace(f"s{sKOFF}", "s34"):
                        lo_, hi_ = e[1], e[2]
                        if lo_ <= win[0]: e = (win[0] - 0.5, lo_, hi_) + e[3:]
                    nv.append(e)
                vmlist = nv
            for g in range(6):
                gi = g + 2
                A_ = (gpos[4*g - 1] + 1) if g > 0 else 1
                if win and A_ > win[0] - self.P.get("win_gs", 13) + 1: A_ = max(A_, win[1] + 1 + (prevB + 1 - win[1] - 1 if prevB > win[1] else 0))
                if gt == "K":
                    cpi, Ti = divmod(gi, 3)
                    newidx = (Ti == 0); qoff = cpi*128
                else:
                    ggi = 6*H + gi
                    ji, cpi = divmod(ggi, 4); newidx = True; qoff = cpi*128
                so = ["0", f"s{sT1}", f"s{sT2}"][Ti] if gt == "K" else f"s{sVT+ji}"
                if newidx:
                    ilo = prevB + 1
                    if gt == "V" and cpi == 0:
                        ix.append(Item(f"v_add_u32 v{vIA}, s{sVI+ji}, v{vIA}", "V", ilo, ilo + 2)); ilo += 1
                    A_ = max(A_, ilo + PG.get("ILEAD", 6))
                    for p in range(4):
                        ix.append(Item(f"ds_read_b32 v{PAIR+2*p}, v{vIA} offset:{qoff + 32*p}", "I", ilo, A_ - PG.get("ILEAD", 6) + 1))
                B_ = min(A_ + PG.get("GSPAN", 20), n - 1)
                if win and A_ <= win[0]: B_ = min(B_, win[0] - 1)
                for p in range(4):
                    tgt = A_ + 1 + p*(B_ - A_ - 1)/4.0
                    vmlist.append((tgt, A_, B_, f"s_add_u32 m0, s{sGM0}, {(gi % 3)*4096 + p*1024}",
                                   f"buffer_load_dwordx4 v[{PAIR+2*p}:{PAIR+2*p+1}], s[{sG}:{sG+3}], {so} idxen offen {self.P.get('gf','')} lds", ("G", gi), None))
                prevB = B_
            adv = 256 if gt == "K" else 0
            if adv: ix.append(Item(f"v_add_u32 v{vIA}, {adv}, v{vIA}", "V", ix[-1].hi, n - 1, sep=1))
            streams.append(ix)
            if gt == "K":
                se = []
                for cp in range(2):
                    g = 3*cp + 2; u = 2*H + cp
                    for cc in range(2):
                        j = 4*g + 2*cc + 1
                        lo = gpos[j] + 4
                        hi = (gpos[4*(g+1) + 2*cc] - 1) if g < 5 else n - 1
                        se.append(Item(f"v_cndmask_b32 v{GX+cc}, v{GX+cc}, v{GD+4*cc+2*cc}, s[{sSEL+4*u}:{sSEL+4*u+1}]", "V", lo, hi))
                        se.append(Item(f"v_cndmask_b32 v{GX+cc}, v{GX+cc}, v{GD+4*cc+2*cc+1}, s[{sSEL+4*u+2}:{sSEL+4*u+3}]", "V", lo, hi))
                streams.append(se)
            else:
                bs = []
                for g in range(6):
                    gg = 6*H + g; jb, cp = divmod(gg, 4)
                    lo = gpos[4*(g-2) + 3] if g >= 2 else 0
                    hi = max(gpos[4*g] - LG, lo)
                    bs.append(Item(f"ds_read_b128 {vq(GB+4*(g&1))}, v{vPB+cp}", "D", lo, hi))
                    bs.append(Item(f"v_add_u32 v{vPB+cp}, s{sVP+jb+1}, v{vPB+cp}", "V", lo, min(hi + 12, n - 1)))
                streams.append(bs)
                st = []
                for g in range(6):
                    gg = 6*H + g; jb, cp = divmod(gg, 4)
                    if cp != 3: continue
                    for x in range(4):
                        lo = gpos[4*g + x] + 4
                        hi = (gpos[4*(g+1) + x] - 1) if g < 5 else n - 3
                        st.append(Item(f"v_cvt_pk_bf16_f32 v{OUTT+2*x}, v{ACC+4*x}, v{ACC+4*x+1}", "V", lo, hi))
                        st.append(Item(f"v_cvt_pk_bf16_f32 v{OUTT+2*x+1}, v{ACC+4*x+2}, v{ACC+4*x+3}", "V", lo, hi))
                        if x == 1 or x == 3:
                            k = x >> 1
                            st.append(Item(f"buffer_store_dwordx4 {vq(OUTT+4*k)}, v{vLIN}, s[{sW}:{sW+3}], s{sVO+jb} offen offset:{k*1024} {self.P.get('omf','')}", "G",
                                           lo, (hi + 8 if g < 5 else n - 1), sep=1, tag=("S", jb)))
                streams.append(st)
        vmlist.sort(key=lambda x: x[0])
        vm = []
        for tgt, lo, hi, m0, dma, tag, sal in vmlist:
            if sal: vm.append(Item(sal, "S", lo, n - 1)); continue
            if m0:
                vm.append(Item(m0, "S", max(lo - 1, 0), hi - 1, sep=0))
                vm.append(Item(dma, "M", lo, hi, sep=1, tag=tag))
            else:
                vm.append(Item(dma, "M", lo, hi, tag=tag))
        streams.append(vm)
        for g, v in fixed.items():
            busy[g] += len([x for x in v if not x.endswith(":") and not x.startswith("NEED ")])
        for e, tl in tails: busy[e] += 0
        items = optimize(n, streams, busy1=busy, name=name, seed=self.P.get("seed", 1), iters=self.P.get("iters", 150000),
                         mspace=self.P.get("mspace", 4), ldsw=self.P.get("ldsw", 1.0))
        for e, tl in tails: fixed.setdefault(e, [])
        seq = emit(mf, items, fixed)
        seq2 = []; mi = -1; tl = {e: t for e, t in tails}; pend = None
        for cls, line, tag in seq:
            if cls == "M" and line.startswith("v_mfma"):
                if pend: seq2 += [("F", l, None) for l in pend]; pend = None
                mi += 1
                if mi in tl: pend = tl[mi]
            seq2.append((cls, line, tag))
        if pend: seq2 += [("F", l, None) for l in pend]
        self.bodies[name] = dict(seq=seq2, extra=extra, kind=kind, gt=gt, H=H, nsteps=len(sps), name=name)
        return name

    def resolve_vm(self, name, preds):
        B = self.bodies[name]
        tr = vm_trace(B["seq"])
        nst = B["nsteps"]
        res = []
        for pos, (k, v) in enumerate(tr):
            if k != "mark": continue
            typ, arg = v.split(":")
            best = None
            for ptr in preds:
                full = ptr + tr[:pos]
                ops = [t for kk, t in full if kk == "op"]
                npre = len([1 for kk, t in ptr if kk == "op"])
                if typ == "G":
                    g = int(arg)
                    idxs = [i for i, t in enumerate(ops) if t and t[0] == "G" and ((i >= npre and t[1] == g and g >= 2) or (i < npre and g < 2 and t[1] == g + 6))]
                    if g < 2 and not idxs: N = 0; best = N if best is None else min(best, N); continue
                    last = max(idxs)
                else:
                    si = int(arg[-1])
                    rn = [(i, t[1]) for i, t in enumerate(ops) if t and t[0] == "R"]
                    order = []
                    for i, nm in rn:
                        key = (nm, i < npre)
                        if not order or order[-1][0] != key: order.append([key, i])
                        else: order[-1][1] = i
                    prior = [o for o in order if not (o[0][1] is False and int(o[0][0][-1]) >= si)]
                    if len(prior) < 2: N = 0; best = N if best is None else min(best, N); continue
                    last = prior[-2][1]
                N = len(ops) - 1 - last
                best = N if best is None else min(best, N)
            res.append(min(best, 63))
        return res

    def emit_body(self, name, preds):
        B = self.bodies[name]
        vmN = self.resolve_vm(name, preds)
        init = [[f"v{pool(f)+r}" for r in range(4)] for f in range(4)]
        lines, q = finalize(B["seq"], initial=init, extra=B["extra"], vmN=vmN)
        lines = fix_hazards(lines)
        ab = self.ab.split(",")
        if "nobar" in ab: lines = [l for l in lines if l.strip() != "s_barrier"]
        if "novm" in ab: lines = [l for l in lines if "vmcnt" not in l]
        if "nog" in ab: lines = [l for l in lines if "idxen" not in l]
        if "nor" in ab: lines = [l for l in lines if not (" lds" in l and "idxen" not in l)]
        if "nost" in ab: lines = [l for l in lines if "buffer_store" not in l]
        if "nolgkm" in ab: lines = [l for l in lines if "lgkmcnt" not in l]
        if "halfbar" in ab:
            out = []; k = 0
            for l in lines:
                if l.strip() == "s_barrier":
                    k += 1
                    if k % 2 == 1: continue
                out.append(l)
            lines = out
        if "nom0" in ab: lines = [l for l in lines if "m0," not in l]
        if "noI" in ab: lines = [l for l in lines if "ds_read_b32" not in l]
        if "noexp" in ab: lines = [l for l in lines if not l.strip().startswith("v_exp")]
        if "noval" in ab: lines = [l for l in lines if not (l.strip().startswith("v_") and not l.strip().startswith("v_mfma"))]
        if "nosal" in ab: lines = [l for l in lines if not (l.strip().startswith("s_add") or l.strip().startswith("s_cmp_ge") or l.strip().startswith("s_cselect")) or "s32" in l or "s66" in l or "s35" in l]
        if "nods" in ab: lines = [l for l in lines if not l.strip().startswith("ds_read")]
        if "nogds" in ab: lines = [l for l in lines if not (l.strip().startswith("ds_read") and any(f"v{r}" in l.split(",")[0] or f"v[{r}:" in l.split(",")[0] for r in list(range(PAIR, 256))))]
        if self.ab: lines = [l for l in lines if not l.strip().startswith("s_or_b64 vcc")]
        if self.ab: lines = [l.replace("s_cbranch_vccnz", "s_cbranch_scc1 ").replace("scc1  ", "scc1 ") if False else l for l in lines]
        if self.ab:
            out = []
            for l in lines:
                if l.strip().startswith("s_cbranch_vccnz"):
                    out.append(f"  s_mov_b64 vcc, s[{sFLAG}:{sFLAG+1}]"); out.append(l)
                else: out.append(l)
            lines = out
        print(f"[{name}] vmN={vmN}")
        return lines

    def rowmax(self, L, b, dst, tmp):
        s0, s1 = Sreg(0, b), Sreg(1, b)
        L.append(f"  v_max3_f32 v{dst}, v{s0}, v{s0+1}, v{s0+2}")
        L.append(f"  v_max3_f32 v{dst}, v{dst}, v{s0+3}, v{s1}")
        L.append(f"  v_max3_f32 v{dst}, v{dst}, v{s1+1}, v{s1+2}")
        L.append(f"  v_max_f32 v{dst}, v{dst}, v{s1+3}")
        L.append(f"  v_mov_b32 v{tmp}, v{dst}\n  s_nop 1\n  v_permlane16_swap_b32 v{dst}, v{tmp}\n  s_nop 1\n  v_max_f32 v{dst}, v{dst}, v{tmp}")
        L.append(f"  v_mov_b32 v{tmp}, v{dst}\n  s_nop 1\n  v_permlane32_swap_b32 v{dst}, v{tmp}\n  s_nop 1\n  v_max_f32 v{dst}, v{dst}, v{tmp}")
    def expcvt(self, L, b, par):
        for k in range(2):
            for h in range(2):
                s = Sreg(k, b) + 2*h
                L.append(f"  v_exp_f32 v{TMP}, v{s}\n  v_exp_f32 v{TMP+1}, v{s+1}\n  s_nop 0")
                L.append(f"  v_cvt_pk_bf16_f32 v{Preg(par,b)+2*k+h}, v{TMP}, v{TMP+1}")
    def routines(self):
        for kind in ("p1", "p2"):
            mb = [0, 1] if kind == "p1" else [2, 3]
            diag = sDA if kind == "p1" else sDB
            L = [f"MASK_{kind}:"]
            L.append(f"  s_sub_i32 s{sD}, s{sR1}, s{diag}\n  s_sub_i32 s{sD}, s{sD}, s{sWAVE}\n  s_lshl_b32 s{sD}, s{sD}, 5")
            L.append(f"  v_subrev_u32 v{TMP+7}, s{sD}, v{vX}")
            for kp in range(2):
                for bi, b in enumerate(mb):
                    for r in range(4):
                        L.append(f"  v_cmp_le_i32 s[{sMASK+2*r}:{sMASK+2*r+1}], {16*(kp-bi) + r}, v{TMP+7}")
                    dst = (NEGM + 4*b) if kp == 0 else (NEGM1 + 4*bi)
                    for r in range(4):
                        L.append(f"  v_cndmask_b32 v{dst+r}, v{vNINF}, v{MNEG+b}, s[{sMASK+2*r}:{sMASK+2*r+1}]")
            L.append(f"  s_nop 0\n  s_setpc_b64 s[{sRET}:{sRET+1}]")
            self.ool.append(L)
            qb = [0, 1, 2, 3] if kind == "p1" else [2, 3]
            for par in range(2):
                L = [f"RARE_{kind}_{par}:", "  s_nop 7\n  s_nop 7"]
                dl, al, t6, t7 = TMP+4, TMP+5, TMP+6, TMP+7
                for b in qb:
                    self.rowmax(L, b, dl, t6)
                    L.append(f"  v_ceil_f32 v{dl}, v{dl}")
                    L.append(f"  v_frexp_exp_i32_f32 v{t6}, v{L0+4*b}\n  v_add_u32 v{t6}, -12, v{t6}\n  v_cvt_f32_i32 v{t6}, v{t6}")
                    L.append(f"  v_max3_f32 v{dl}, v{dl}, v{t6}, 0")
                    L.append(f"  v_cvt_i32_f32 v{t6}, v{dl}\n  v_sub_u32 v{t6}, 0, v{t6}\n  v_ldexp_f32 v{al}, 1.0, v{t6}")
                    for k in range(2):
                        for r in range(4): L.append(f"  v_sub_f32 v{Sreg(k,b)+r}, v{Sreg(k,b)+r}, v{dl}")
                    for r in range(4): L.append(f"  v_sub_f32 v{NEGM+4*b+r}, v{NEGM+4*b+r}, v{dl}")
                    if b in mb:
                        for r in range(4): L.append(f"  v_sub_f32 v{NEGM1+4*mb.index(b)+r}, v{NEGM1+4*mb.index(b)+r}, v{dl}")
                    L.append(f"  v_sub_f32 v{MNEG+b}, v{MNEG+b}, v{dl}")
                    for d in range(12):
                        for r in range(4):
                            a = Oreg(b, d) + r
                            L.append(f"  v_accvgpr_read_b32 v{t6}, a{a}\n  s_nop 0\n  v_mul_f32 v{t6}, v{t6}, v{al}\n  s_nop 0\n  v_accvgpr_write_b32 a{a}, v{t6}")
                    self.expcvt(L, b, par)
                    L.append("  s_nop 1")
                    L.append(f"  v_mfma_f32_16x16x32_bf16 {vq(TMP)}, {vq(ONES)}, {vq(Preg(par,b))}, 0")
                    L.append("  s_nop 7\n  s_nop 1")
                    L.append(f"  v_mov_b32 v{t7}, 0x203\n  v_cmp_class_f32 vcc, v{L0+4*b}, v{t7}\n  v_mul_f32 v{t6}, v{L0+4*b}, v{al}\n  s_nop 1")
                    L.append(f"  v_cndmask_b32 v{t6}, v{t6}, v{TMP}, vcc")
                    for r in range(4): L.append(f"  v_mov_b32 v{L0+4*b+r}, v{t6}")
                L.append(f"  s_nop 3\n  s_setpc_b64 s[{sRET}:{sRET+1}]")
                self.ool.append(L)
        L = ["INIT_A:", "  s_nop 7\n  s_nop 7"]
        for b in (0, 1):
            dl, t6 = TMP+4, TMP+6
            self.rowmax(L, b, dl, t6)
            L.append(f"  v_ceil_f32 v{dl}, v{dl}")
            for k in range(2):
                for r in range(4): L.append(f"  v_sub_f32 v{Sreg(k,b)+r}, v{Sreg(k,b)+r}, v{dl}")
            L.append(f"  v_sub_f32 v{MNEG+b}, v{MNEG+b}, v{dl}")
            self.expcvt(L, b, 0)
            L.append("  s_nop 1")
            L.append(f"  v_mfma_f32_16x16x32_bf16 {vq(L0+4*b)}, {vq(ONES)}, {vq(Preg(0,b))}, 0")
        L.append(f"  s_nop 7\n  s_setpc_b64 s[{sRET}:{sRET+1}]")
        self.ool.append(L)
        def blk(k):
            k = min(k, 11)
            if self.P.get("vfull", 0) == 1: return (k // 4, k % 4)
            if self.P.get("vfull", 0) == 2: return [(0,0),(0,1),(0,2),(0,3),(1,0),(1,1),(2,0),(2,1),(1,2),(1,3),(2,2),(2,3)][k]
            h = k // 6; r = k % 6
            return (r >> 1, 2*h + (r & 1))
        for m in range(4):
            L = [f"VSET_{m}:"]
            for j in range(4): L.append(f"  s_mov_b32 s{sVT+j}, {blk(3*m+j)[0]*128}")
            for j in range(1, 4):
                dg = blk(3*m+j)[1] - blk(3*m+j-1)[1]
                L.append(f"  s_mov_b32 s{sVI+j}, {dg*512}\n  s_mov_b32 s{sVP+j}, {dg*256}")
            for j in range(3):
                T, gm = blk(3*m+j)
                base = sROWA if gm < 2 else sROWB
                L.append(f"  s_add_u32 s{sVO+j}, s{base}, {(gm & 1)*6144 + T*2048}")
            L.append(f"  s_setpc_b64 s[{sRET}:{sRET+1}]")
            self.ool.append(L)
        def cpq(gm):
            L = []
            for s in range(6):
                op = Qop(gm, s); base = int(op[2:op.index(':')])
                for r in range(4):
                    if op[0] == 'a': L.append(f"  v_accvgpr_read_b32 v{GQ+4*s+r}, a{base+r}")
                    else: L.append(f"  v_mov_b32 v{GQ+4*s+r}, v{base+r}")
            return L
        self.ool.append(["CPQ_0:"] + cpq(0) + [f"  s_nop 1\n  s_setpc_b64 s[{sRET}:{sRET+1}]"])
        for gm in range(4):
            fill = cpq(gm + 1) if gm < 3 else []
            def F(k=1):
                out = []
                for _ in range(k): out.append(fill.pop(0) if fill else "  s_nop 0")
                return out
            a, b, t0, t1 = GX, GX+1, TMP, TMP+1
            ctr = ["quad_perm:[1,0,3,2]", "quad_perm:[2,3,0,1]", "row_half_mirror"]
            L = [f"KEND_{gm}:"]
            L += F(2)
            L += [f"  v_mov_b32 v{t0}, v{a}", f"  v_mov_b32 v{t1}, v{b}"] + F(1)
            for c in ctr:
                L += [f"  v_max_f32_dpp v{t0}, v{t0}, v{t0} {c} row_mask:0xf bank_mask:0xf", f"  v_max_f32_dpp v{t1}, v{t1}, v{t1} {c} row_mask:0xf bank_mask:0xf"] + F(1)
            L += [f"  v_sub_f32 v{a}, v{a}, v{t0}", f"  v_sub_f32 v{b}, v{b}, v{t1}", f"  v_exp_f32 v{a}, v{a}", f"  v_exp_f32 v{b}, v{b}"] + F(1)
            L += [f"  v_mov_b32 v{t0}, v{a}", f"  v_mov_b32 v{t1}, v{b}"] + F(1)
            for c in ctr:
                L += [f"  v_add_f32_dpp v{t0}, v{t0}, v{t0} {c} row_mask:0xf bank_mask:0xf", f"  v_add_f32_dpp v{t1}, v{t1}, v{t1} {c} row_mask:0xf bank_mask:0xf"] + F(1)
            L += [f"  v_rcp_f32 v{t0}, v{t0}", f"  v_rcp_f32 v{t1}, v{t1}"] + F(1)
            L += [f"  v_mul_f32 v{t0}, s{sGG}, v{t0}", f"  v_mul_f32 v{t1}, s{sGG}, v{t1}", f"  v_mul_f32 v{a}, v{a}, v{t0}", f"  v_mul_f32 v{b}, v{b}, v{t1}",
                  f"  v_cvt_pk_bf16_f32 v{a}, v{a}, v{b}"] + F(1)
            L += [f"  ds_write_b16 v{vPW}, v{a} offset:{gm*256}", f"  ds_write_b16_d16_hi v{vPW}, v{a} offset:{gm*256+32}"]
            L += fill
            L += [f"  s_nop 1\n  s_setpc_b64 s[{sRET}:{sRET+1}]"]
            self.ool.append(L)

    def prologue(self):
        A = self.A
        A(f".globl {KNAME}\n.p2align 8\n.type {KNAME},@function\n{KNAME}:")
        A("  s_cmp_ge_u32 s2, 256\n  s_cbranch_scc1 AT_END")
        if self.instr: A("  s_memrealtime s[100:101]\n  s_memtime s[98:99]\n  s_waitcnt lgkmcnt(0)\n  v_mov_b32 v254, s98\n  v_mov_b32 v253, s100")
        A("  s_load_dwordx4 s[4:7], s[0:1], 0         ; q, k")
        A("  s_load_dwordx2 s[42:43], s[0:1], 16      ; v")
        A(f"  s_load_dwordx4 s[{sMK}:{sMK+3}], s[0:1], 24")
        A("  s_load_dwordx4 s[44:47], s[0:1], 40")
        A("  s_load_dwordx2 s[48:49], s[0:1], 56      ; out")
        A("  s_load_dwordx2 s[72:73], s[0:1], 72      ; ws")
        A(f"  v_and_b32 v1, 63, v0\n  v_lshrrev_b32 v0, 6, v0\n  s_nop 0\n  v_readfirstlane_b32 s{sWAVE}, v0")
        if self.instr:
            A(f"  s_nop 3\n  s_lshl_b32 s100, s{sWAVE}, 8\n  s_add_u32 s100, s100, {STAMPA}\n  v_mov_b32 v252, s100\n  ds_write_b32 v252, v254\n  ds_write_b32 v252, v253 offset:44")
        A(f"  s_and_b32 s3, s2, 7\n  s_lshr_b32 s96, s2, 3\n  s_and_b32 s{sI}, s96, 7\n  s_lshr_b32 s96, s96, 3\n  s_lshl_b32 s3, s3, 2\n  s_add_u32 s{sH}, s3, s96")
        A(f"  s_lshl_b32 s3, s{sI}, 2\n  s_sub_u32 s{sN}, 64, s3\n  s_mov_b32 s{sDA}, s3\n  s_sub_u32 s{sDB}, s{sN}, 4")
        A(f"  s_lshl_b32 s{sB1LAST}, s{sI}, 1\n  s_add_u32 s{sB1LAST}, s{sB1LAST}, 1\n  s_add_u32 s3, s{sI}, s{sH}\n  s_mul_i32 s96, s3, 43\n  s_lshr_b32 s96, s96, 7\n  s_mul_i32 s96, s96, 3\n  s_sub_u32 s3, s3, s96\n  s_add_u32 s3, s3, 12\n  s_add_u32 s96, s{sB1LAST}, 1\n  s_max_u32 s3, s3, s96\n  s_min_u32 s{sEPA}, s3, 15" + (f"\n  s_mov_b32 s{sEPA}, 15" if self.P.get('vfull', 0) == 1 else (f"\n  s_add_u32 s3, s{sI}, s{sH}\n  s_and_b32 s3, s3, 1\n  s_add_u32 s3, s3, 13\n  s_max_u32 s{sEPA}, s3, s{sB1LAST}" if self.P.get('vfull', 0) == 2 else "")))
        A(f"  s_mul_i32 s97, s{sH}, {HEAD}")
        A("  s_waitcnt lgkmcnt(0)")
        def srd(d, b, size=HEAD, sub=0):
            A(f"  s_add_u32 s{d}, s{b}, s97\n  s_addc_u32 s{d+1}, s{b+1}, 0")
            if sub: A(f"  s_sub_u32 s{d}, s{d}, {sub}\n  s_subb_u32 s{d+1}, s{d+1}, 0")
            A(f"  s_and_b32 s{d+1}, s{d+1}, 0xffff\n  s_mov_b32 s{d+2}, {size+sub}\n  s_mov_b32 s{d+3}, 0x20000")
        srd(sG, 4); srd(sK, 6); srd(sV, 42); srd(sO, 48); srd(sW, 72)
        for p in (sMK, sMV):
            A(f"  s_add_u32 s{p}, s{p}, s97\n  s_addc_u32 s{p+1}, s{p+1}, 0")
        A(f"  s_lshl_b32 s3, s{sH}, 16\n  s_add_u32 s{sTS}, s44, s3\n  s_addc_u32 s{sTS+1}, s45, 0\n  s_and_b32 s{sTS+1}, s{sTS+1}, 0xffff\n  s_mov_b32 s{sTS+2}, 65536\n  s_mov_b32 s{sTS+3}, 0x20000")
        A(f"  s_lshl_b32 s3, s{sH}, 1\n  s_and_b32 s96, s3, 0xfffffffc\n  s_add_u32 s46, s46, s96\n  s_addc_u32 s47, s47, 0\n  s_load_dword s96, s[46:47], 0")
        A("  v_lshrrev_b32 v16, 3, v1\n  v_and_b32 v17, 7, v1\n  v_and_b32 v18, 15, v1\n  v_lshrrev_b32 v19, 4, v1")
        for j in range(3):
            A(f"  v_add_u32 v20, {8*j}, v16\n  v_mul_u32_u24 v20, 0xAAAB, v20\n  v_lshrrev_b32 v20, 17, v20\n  v_and_b32 v20, 6, v20")
            A(f"  v_xor_b32 v20, v20, v17\n  v_lshlrev_b32 v20, 4, v20\n  v_lshl_add_u32 v{vDV+j}, v16, 7, v20")
        A(f"  v_lshlrev_b32 v{vLIN}, 4, v1")
        A(f"  s_lshl_b32 s3, s{sI}, 7\n  s_lshl_b32 s4, s{sWAVE}, 5\n  s_add_u32 s{sROWA}, s3, s4\n  s_sub_u32 s5, 1920, s3\n  s_add_u32 s{sROWB}, s5, s4")
        A(f"  s_lshl_b32 s3, s{sWAVE}, 11\n  s_add_u32 s6, s3, {IDX}\n  s_mov_b32 m0, s6\n  s_lshl_b32 s4, s{sROWA}, 5")
        A(f"  buffer_load_dwordx4 v{vLIN}, s[{sTS}:{sTS+3}], s4 offen {self.P.get('qf','')} lds")
        A(f"  s_add_u32 m0, s6, 1024\n  s_lshl_b32 s4, s{sROWB}, 5")
        A(f"  buffer_load_dwordx4 v{vLIN}, s[{sTS}:{sTS+3}], s4 offen {self.P.get('qf','')} lds")
        A(f"  s_mul_i32 s{sROWA}, s{sROWA}, 384\n  s_mul_i32 s{sROWB}, s{sROWB}, 384")
        if self.P.get("codepf", 1):
            A(f"  s_getpc_b64 s[44:45]\nL_CP:\n  s_sub_u32 s44, s44, L_CP-{KNAME}\n  s_subb_u32 s45, s45, 0\n  s_and_b32 s45, s45, 0xffff\n  s_mov_b32 s46, TILETAB-{KNAME}\n  s_mov_b32 s47, 0x20000")
            A(f"  s_lshr_b32 s3, s2, 3\n  s_lshl_b32 s3, s3, 12\n  s_lshl_b32 s5, s{sWAVE}, 10\n  s_add_u32 s3, s3, s5\n  v_and_b32 v20, 7, v1\n  v_lshlrev_b32 v20, 7, v20\n  s_mov_b32 m0, {DUMMY}\n  s_nop 0\n  buffer_load_dword v20, s[44:47], s3 offen lds")
        A(f"  s_getpc_b64 s[98:99]\nL_TT:\n  s_add_u32 s98, s98, TILETAB-L_TT\n  s_addc_u32 s99, s99, 0\n  s_lshl_b32 s3, s{sI}, 6\n  v_add_u32 v20, s3, v1\n  global_load_ubyte v{vSEQ}, v20, s[98:99]")
        A(f"  s_mov_b32 s7, {QAREA[0]}")
        for w in range(1, 4):
            A(f"  s_cmp_eq_u32 s{sWAVE}, {w}\n  s_cselect_b32 s7, {QAREA[w]}, s7")
        A(f"  s_mul_i32 s4, s{sWAVE}, 3072\n  s_add_u32 s{sKM0}, s4, {KR}\n  s_add_u32 s{sVM0}, s4, {VR}")
        if self.P.get("coop", 1):
            A(f"  s_and_b32 s5, s{sWAVE}, 1\n  s_cmp_eq_u32 s5, 1\n  s_cselect_b32 s{sTS}, s{sV}, s{sK}\n  s_cselect_b32 s{sTS+1}, s{sV+1}, s{sK+1}\n  s_mov_b32 s{sTS+2}, {HEAD}")
            A(f"  s_cmp_ge_u32 s{sWAVE}, 2\n  s_cselect_b32 s5, 64, 48\n  s_mul_i32 s3, s{sI}, s5\n  s_lshl_b32 s3, s3, 7")
            A(f"  s_cmp_ge_u32 s{sWAVE}, 2\n  s_cselect_b32 s98, 0, {32*TILE}\n  s_add_u32 s3, s3, s98")
            A(f"  v_lshlrev_b32 v{vTCH}, 7, v1\n  v_cmp_gt_u32 vcc, s5, v1\n  v_mov_b32 v20, 0x40000000\n  s_nop 0\n  v_cndmask_b32 v20, v20, v{vTCH}, vcc")
            A(f"  s_mov_b32 m0, {DUMMY}\n  s_nop 0\n  buffer_load_dword v20, s[{sTS}:{sTS+3}], s3 offen lds")
        self.stamp(48)
        D = []
        def tile(srdn, m0r, slot, off):
            for j in range(3):
                pre = [f"  s_add_u32 m0, s{m0r}, {slot*TILE}", f"  s_add_u32 s3, s4, {off}"] if j == 0 else []
                D.append(pre + [f"  buffer_load_dwordx4 v{vDV+j}, s[{srdn}:{srdn+3}], s3 offen offset:{1024*j} lds"])
        def qdma(b):
            base = sROWB if b >= 2 else sROWA
            lds = "s7" if b >= 2 else f"s{sGM0}"
            for half in range(2):
                for j in range(3):
                    pre = [f"  s_add_u32 m0, {lds}, {(b&1)*6144 + half*3072}", f"  s_add_u32 s3, s{base}, {(b&1)*6144 + half*3072}"] if j == 0 else []
                    D.append(pre + [f"  buffer_load_dwordx4 v{vDV+j}, s[{sG}:{sG+3}], s3 offen offset:{1024*j} {self.P.get('qf','')} lds"])
        A(f"  s_mul_i32 s{sGM0}, s{sWAVE}, 12288\n  s_add_u32 s{sGM0}, s{sGM0}, {GR}")
        qdma(2); qdma(3); tile(sK, sKM0, 0, 32*TILE); tile(sV, sVM0, 0, 32*TILE); tile(sK, sKM0, 1, 33*TILE)
        main = self.A
        B = Asm(); self.A = B; A = B
        A(f"  s_mov_b32 s{sWP}, s4")
        A(f"  v_and_b32 v20, 6, v18\n  v_xor_b32 v20, v20, v19\n  v_lshlrev_b32 v20, 4, v20\n  v_mul_u32_u24 v{vKA}, 384, v18\n  v_add_u32 v{vKA}, v{vKA}, v20\n  v_xor_b32 v{vKA+1}, 64, v{vKA}")
        A(f"  v_add_u32 v22, s7, v{vKA}\n  v_xor_b32 v23, 64, v22\n  v_add_u32 v24, s{sGM0}, v{vKA}\n  v_xor_b32 v25, 64, v24")
        for r in range(8): A(f"  v_mov_b32 v{Preg(1,0)+r}, 0")
        A(f"  v_mov_b32 v26, {hex(f2u(CSCALE))}\n  v_mov_b32 v27, {hex(f2u(CSCALE))}")
        A(f"  s_mov_b32 s{sC}, {hex(f2u(CSCALE))}\n  s_mov_b32 s{sHI}, 0xffff0000\n  s_mov_b32 s{sTHR}, 0x49800000\n  s_mov_b32 s{sT1}, 128\n  s_mov_b32 s{sT2}, 256")
        A(f"  v_mov_b32 v28, 0\n  v_mov_b32 v29, 0\n  v_mov_b32 v30, 0\n  v_mov_b32 v31, 0\n  v_add_u32 v20, {ZA}, v{vLIN}\n  ds_write_b128 v20, v[28:31]")
        for r in range(12): A(f"  v_mfma_f32_32x32x16_bf16 a[{16*r}:{16*r+15}], v[28:31], v[28:31], 0")
        A(f"  v_bfe_u32 v20, v1, 2, 2\n  v_lshl_add_u32 v20, v19, 2, v20")
        A(f"  v_mul_u32_u24 v{vVA}, 384, v20\n  v_and_b32 v20, 6, v20\n  v_bfe_u32 v21, v1, 1, 1\n  v_xor_b32 v20, v20, v21\n  v_lshl_add_u32 v{vVA}, v20, 4, v{vVA}")
        A(f"  v_and_b32 v20, 1, v1\n  v_lshl_add_u32 v{vVA}, v20, 3, v{vVA}\n  v_add_u32 v{vVA}, {VR}, v{vVA}")
        for x in range(1, 4): A(f"  v_xor_b32 v{vVA+x}, {32*x}, v{vVA}")
        A(f"  v_lshlrev_b32 v20, 2, v19\n  v_sub_u32 v{vX}, v18, v20\n  v_mov_b32 v{vNINF}, 0xff800000")
        A(f"  v_lshlrev_b32 v{vTCH}, 7, v1")
        A(f"  v_and_b32 v20, 2, v16\n  v_xor_b32 v20, v20, v17\n  v_lshlrev_b32 v20, 4, v20")
        for p in range(4):
            A(f"  v_mov_b32 v{PAIR+2*p+1}, v20" if p % 2 == 0 else f"  v_xor_b32 v{PAIR+2*p+1}, 64, v20")
        A(f"  v_and_b32 v20, 7, v18\n  v_lshrrev_b32 v21, 3, v18\n  v_lshlrev_b32 v{vKG}, 7, v20\n  v_lshl_add_u32 v{vKG}, v21, 10, v{vKG}")
        A(f"  v_and_b32 v20, 2, v20\n  v_xor_b32 v20, v20, v19\n  v_lshlrev_b32 v21, 2, v21\n  v_xor_b32 v20, v20, v21\n  v_lshl_add_u32 v{vKG}, v20, 4, v{vKG}")
        A(f"  v_add_u32 v{vKG}, s{sGM0}, v{vKG}\n  v_xor_b32 v{vKG+1}, 64, v{vKG}")
        A(f"  v_lshlrev_b32 v20, 6, v19\n  v_bfe_u32 v21, v1, 3, 1\n  v_lshl_add_u32 v20, v21, 4, v20\n  v_lshl_add_u32 v20, v17, 1, v20\n  s_lshl_b32 s5, s{sWAVE}, 10\n  s_add_u32 s5, s5, {PA}\n  v_add_u32 v{vPW}, s5, v20")
        for u in range(4):
            lo = 0xff << (16*u); hi = 0xff00 << (16*u)
            A(f"  s_mov_b32 s{sSEL+4*u}, {hex(lo & 0xffffffff)}\n  s_mov_b32 s{sSEL+4*u+1}, {hex(lo >> 32)}\n  s_mov_b32 s{sSEL+4*u+2}, {hex(hi & 0xffffffff)}\n  s_mov_b32 s{sSEL+4*u+3}, {hex(hi >> 32)}")
        for r in range(4): A(f"  v_mov_b32 v{ONES+r}, 0x3f803f80")
        for r in range(16): A(f"  v_mov_b32 v{L0+r}, 0\n  v_mov_b32 v{NEGM+r}, 0")
        for r in range(8): A(f"  v_mov_b32 v{NEGM1+r}, 0")
        for r in range(4): A(f"  v_mov_b32 v{MNEG+r}, 0")
        A(f"  v_lshlrev_b32 v1, 2, v16\n  v_add_u32 v{vIA}, s6, v1")
        A("  s_waitcnt lgkmcnt(0)")
        A(f"  s_lshl_b32 s5, s{sH}, 1\n  s_and_b32 s5, s5, 2\n  s_lshl_b32 s5, s5, 3\n  s_lshr_b32 s96, s96, s5\n  s_lshl_b32 s96, s96, 16")
        A(f"  v_mov_b32 v20, s96\n  v_mul_f32 v20, {hex(f2u(LOG2E))}, v20\n  v_exp_f32 v20, v20\n  s_nop 0\n  v_add_f32 v20, 1.0, v20\n  v_rcp_f32 v20, v20\n  s_nop 0\n  v_sub_f32 v21, 1.0, v20\n  v_readfirstlane_b32 s{sG1}, v20\n  s_nop 0\n  v_readfirstlane_b32 s{sGG}, v21")
        setup = [l for l in B.lines if l.strip()]
        self.A = main; A = main
        nset = 12
        per = -(-len(setup) // nset)
        sched_q = {13: (2, 5), 19: (3, 11)}
        pending = []
        for k, d in enumerate(D):
            for l in d: A(l)
            if k < nset:
                for l in setup[k*per:(k+1)*per]: A(l)
            if pending:
                for l in pending.pop(0): A(l)
            if k in sched_q:
                b, last = sched_q[k]
                for ch in pending:
                    for l in ch: A(l)
                A(f"  s_waitcnt vmcnt({k - last})")
                self.stamp(50 + b)
                reads, fr = self.qproc(b, 22 if b >= 2 else 24, 32)
                for l in reads: A(l)
                pending = fr
        for ch in pending:
            for l in ch: A(l)

    def qa_dma(self, k):
        b, r = divmod(k, 6); half, j = divmod(r, 3)
        off = b*6144 + half*3072
        return (f"s_add_u32 m0, s{sGM0}, {off}", f"s_add_u32 s{sQO}, s{sROWA}, {off}",
                f"buffer_load_dwordx4 v{vDV+j}, s[{sG}:{sG+3}], s{sQO} offen offset:{1024*j} {self.P.get('qf','')} lds")

    def qproc(self, b, areg, t):
        reads = [f"  ds_read_b128 {vq(POOL+16+4*(s%4) if False else POOL+4*s)}, v{areg+(s&1)} offset:{(b&1)*6144 + (s>>1)*128}" for s in range(6)]
        fr = []
        for s in range(6):
            L = [f"  s_waitcnt lgkmcnt({5-s})"]
            op = Qop(b, s); base = int(op[2:op.index(':')])
            for r in range(4):
                src = POOL + 4*s + r
                L += [f"  v_lshlrev_b32 v{t+2*r}, 16, v{src}", f"  v_and_b32 v{t+1+2*r}, s{sHI}, v{src}"]
            for r in range(4):
                L += [f"  v_pk_mul_f32 v[{t+2*r}:{t+1+2*r}], v[{t+2*r}:{t+1+2*r}], v[26:27]"]
            for r in range(4):
                L.append(f"  v_cvt_pk_bf16_f32 v{base+r if op[0] == 'v' else t+8+r}, v{t+2*r}, v{t+1+2*r}")
            if op[0] == 'a':
                for r in range(4): L.append(f"  v_accvgpr_write_b32 a{base+r}, v{t+8+r}")
            fr.append(L)
        return reads, fr

    def qproc_inplace(self, b):
        A = self.A
        ar = Sreg(0, 0); t = Sreg(1, 0)
        A(f"  v_mov_b32 v22, s{sC}\n  v_mov_b32 v23, s{sC}")
        for rnd in range(2):
            ss = [0, 1, 2, 3] if rnd == 0 else [4, 5]
            for k, s in enumerate(ss):
                A(f"  ds_read_b128 {vq(POOL+16+4*k)}, v{ar+(s&1)} offset:{(b&1)*6144 + (s>>1)*128}")
            for k, s in enumerate(ss):
                A(f"  s_waitcnt lgkmcnt({len(ss)-1-k})")
                op = Qop(b, s); base = int(op[2:op.index(':')])
                for r in range(4):
                    src = POOL + 16 + 4*k + r
                    A(f"  v_lshlrev_b32 v{t+2*r}, 16, v{src}\n  v_and_b32 v{t+1+2*r}, s{sHI}, v{src}")
                for r in range(4):
                    A(f"  v_pk_mul_f32 v[{t+2*r}:{t+1+2*r}], v[{t+2*r}:{t+1+2*r}], v[22:23]")
                for r in range(4):
                    A(f"  v_cvt_pk_bf16_f32 v{base+r if op[0] == 'v' else ar+2+r}, v{t+2*r}, v{t+1+2*r}")
                if op[0] == 'a':
                    for r in range(4): A(f"  v_accvgpr_write_b32 a{base+r}, v{ar+2+r}")

    def step0(self):
        A = self.A
        A(f"  s_mov_b32 s{sT}, 0")
        A("  s_waitcnt vmcnt(6)\n  s_barrier")
        A(f"  s_mov_b32 s{sR1}, 32\n  s_cmp_ge_u32 s{sR1}, s{sDB}\n  s_cbranch_scc0 S0_NM\n  s_call_b64 s[{sRET}:{sRET+1}], MASK_p2\nS0_NM:")
        A(f"  s_mov_b32 s{sR0}, 32\n  s_mov_b32 s{sR1}, 33\n  s_mov_b32 s{sR2}, 34\n  s_mov_b32 s{sR3}, 35\n  v_readlane_b32 s{sR4}, v{vSEQ}, 4")
        def tile(srdn, m0r, slot, tl):
            out = []
            for j in range(3):
                out.append([f"  s_add_u32 m0, s{m0r}, {slot*TILE}", (f"  s_add_u32 s3, s{sWP}, {tl*TILE}" if tl is not None else f"  s_nop 0"),
                            f"  buffer_load_dwordx4 v{vDV+j}, s[{srdn}:{srdn+3}], s3 offen offset:{1024*j} lds"])
            return out
        dm = tile(sV, sVM0, 1, 33) + tile(sK, sKM0, 2, 34) + tile(sK, sKM0, 3, 35)
        for k in range(2):
            for s in range(6):
                A(f"  ds_read_b128 {vq(POOL+4*s)}, v{vKA+(s&1)} offset:{k*6144 + (s>>1)*128}")
            for s in range(6):
                A(f"  s_waitcnt lgkmcnt({5-s})")
                for b in (2, 3):
                    c = self.cinit("p2", k, b) if s == 0 else vq(Sreg(k, b))
                    A(f"  v_mfma_f32_16x16x32_bf16 {vq(Sreg(k,b))}, {vq(POOL+4*s)}, {Qop(b,s)}, {c}")
                if dm and (s < 5):
                    for l in dm.pop(0): A(l)
        for d in dm:
            for l in d: A(l)
        A("  s_waitcnt vmcnt(9)\n  s_barrier")
        dm = tile(sV, sVM0, 2, 34)
        A(f"  s_mul_i32 s4, s{sR4}, {TILE}\n  s_add_u32 s4, s4, s{sWP}")
        for j in range(3):
            dm.append([f"  s_add_u32 m0, s{sKM0}, 0", "  s_nop 0", f"  buffer_load_dwordx4 v{vDV+j}, s[{sK}:{sK+3}], s4 offen offset:{1024*j} lds"])
        for k in range(6): dm.append(["  " + x for x in self.qa_dma(k)])
        for f in range(4): A("  " + self.kread(f, 1))
        L = []
        for b in (2, 3):
            self.rowmax(L, b, TMP+4, TMP+6)
            for k in range(2):
                for r in range(4): L.append(f"  v_sub_f32 v{Sreg(k,b)+r}, v{Sreg(k,b)+r}, v{TMP+4}")
            L.append(f"  v_sub_f32 v{MNEG+b}, 0, v{TMP+4}")
            for r in range(4): L.append(f"  v_sub_f32 v{NEGM+4*b+r}, 0, v{TMP+4}")
            for r in range(4): L.append(f"  v_sub_f32 v{NEGM1+4*(b-2)+r}, 0, v{TMP+4}")
            self.expcvt(L, b, 0)
        flat = [x for l in L for x in l.split("\n")]
        per = max(1, len(flat) // (len(dm) + 1))
        A("  s_nop 3")
        for k, l in enumerate(flat):
            A(l)
            if k % per == per - 1 and dm and not ("s_nop" in l or "v_mov_b32" in l or "permlane" in l or "v_exp" in l):
                for x in dm.pop(0): A(x)
        for d in dm:
            for x in d: A(x)
        A("  s_nop 1")
        for b in (2, 3):
            A(f"  v_mfma_f32_16x16x32_bf16 {vq(L0+4*b)}, {vq(ONES)}, {vq(Preg(0,b))}, {vq(L0+4*b)}")
        A(f"  s_mov_b32 s{sT}, 1")
        A(f"  s_cmp_ge_u32 s{sR1}, s{sDB}\n  s_cbranch_scc0 S1_NM\n  s_call_b64 s[{sRET}:{sRET+1}], MASK_p2\nS1_NM:")

    def gather_srd(self, ptr):
        A = self.A
        A(f"  s_mov_b32 s{sG}, s{ptr}\n  s_and_b32 s{sG+1}, s{ptr+1}, 0xffff\n  s_or_b32 s{sG+1}, s{sG+1}, 0x01800000\n  s_mov_b32 s{sG+2}, 2048\n  s_mov_b32 s{sG+3}, 0x20000")

    def prime(self, gt):
        A = self.A
        for gi in range(2):
            if gt == "K": Ti, qoff, newidx = gi, 0, gi == 0
            else: Ti, qoff, newidx = 0, gi*128, True
            so = ["0", f"s{sT1}", f"s{sT2}"][Ti]
            if newidx:
                for p in range(4): A(f"  ds_read_b32 v{PAIR+2*p}, v{vIA} offset:{qoff + 32*p}")
                A("  s_waitcnt lgkmcnt(0)")
            for p in range(4):
                A(f"  s_add_u32 m0, s{sGM0}, {gi*4096 + p*1024}\n  s_nop 0")
                A(f"  buffer_load_dwordx4 v[{PAIR+2*p}:{PAIR+2*p+1}], s[{sG}:{sG+3}], {so} idxen offen lds")

    def softmax8(self):
        A = self.A
        a, b, t0, t1 = GX, GX+1, TMP, TMP+1
        ctr = ["quad_perm:[1,0,3,2]", "quad_perm:[2,3,0,1]", "row_half_mirror"]
        A(f"  v_mov_b32 v{t0}, v{a}\n  v_mov_b32 v{t1}, v{b}\n  s_nop 0")
        for c in ctr:
            A(f"  v_max_f32_dpp v{t0}, v{t0}, v{t0} {c} row_mask:0xf bank_mask:0xf\n  v_max_f32_dpp v{t1}, v{t1}, v{t1} {c} row_mask:0xf bank_mask:0xf\n  s_nop 0")
        A(f"  v_sub_f32 v{a}, v{a}, v{t0}\n  v_sub_f32 v{b}, v{b}, v{t1}\n  v_exp_f32 v{a}, v{a}\n  v_exp_f32 v{b}, v{b}\n  s_nop 0")
        A(f"  v_mov_b32 v{t0}, v{a}\n  v_mov_b32 v{t1}, v{b}\n  s_nop 0")
        for c in ctr:
            A(f"  v_add_f32_dpp v{t0}, v{t0}, v{t0} {c} row_mask:0xf bank_mask:0xf\n  v_add_f32_dpp v{t1}, v{t1}, v{t1} {c} row_mask:0xf bank_mask:0xf\n  s_nop 0")
        A(f"  v_rcp_f32 v{t0}, v{t0}\n  v_rcp_f32 v{t1}, v{t1}\n  s_nop 0\n  v_mul_f32 v{t0}, s{sGG}, v{t0}\n  v_mul_f32 v{t1}, s{sGG}, v{t1}")
        A(f"  v_mul_f32 v{a}, v{a}, v{t0}\n  v_mul_f32 v{b}, v{b}, v{t1}\n  v_cvt_pk_bf16_f32 v{a}, v{a}, v{b}")
        A(f"  v_lshrrev_b32 v{t0}, 4, v{vLIN}          ; lane")
        A(f"  v_lshrrev_b32 v{t1}, 4, v{t0}\n  v_lshlrev_b32 v{t1}, 6, v{t1}           ; G*64")
        A(f"  v_bfe_u32 v{TMP+2}, v{t0}, 3, 1\n  v_lshl_add_u32 v{t1}, v{TMP+2}, 4, v{t1}\n  v_and_b32 v{t0}, 7, v{t0}\n  v_lshl_add_u32 v{t1}, v{t0}, 1, v{t1}")
        A(f"  s_lshl_b32 s3, s{sWAVE}, 10\n  s_lshr_b32 s4, s{sB}, 1\n  s_lshl_b32 s4, s4, 8\n  s_add_u32 s3, s3, s4\n  s_add_u32 s3, s3, {PA}\n  v_add_u32 v{t1}, s3, v{t1}")
        A(f"  ds_write_b16 v{t1}, v{a}\n  ds_write_b16_d16_hi v{t1}, v{a} offset:32")

    def vphase_setup(self):
        A = self.A
        t = TMP
        A(f"  v_lshrrev_b32 v{t}, 4, v{vLIN}          ; lane")
        A(f"  v_lshrrev_b32 v{t+1}, 4, v{t}           ; G\n  v_bfe_u32 v{t+2}, v{t}, 2, 2          ; r")
        A(f"  v_lshlrev_b32 v{vVG}, 10, v{t+1}\n  v_lshl_add_u32 v{vVG}, v{t+2}, 7, v{vVG}")
        A(f"  v_and_b32 v{t+2}, 2, v{t+2}\n  v_bfe_u32 v{t+3}, v{t}, 1, 1\n  v_xor_b32 v{t+2}, v{t+2}, v{t+3}\n  v_and_b32 v{t+3}, 1, v{t+1}\n  v_lshlrev_b32 v{t+3}, 2, v{t+3}\n  v_xor_b32 v{t+2}, v{t+2}, v{t+3}")
        A(f"  v_lshl_add_u32 v{vVG}, v{t+2}, 4, v{vVG}\n  v_and_b32 v{t+2}, 1, v{t}\n  v_lshl_add_u32 v{vVG}, v{t+2}, 3, v{vVG}\n  v_add_u32 v{vVG}, s{sGM0}, v{vVG}")
        for x in range(1, 4): A(f"  v_xor_b32 v{vVG+x}, {32*x}, v{vVG}")
        A(f"  v_and_b32 v{t+2}, 15, v{t}\n  v_sub_u32 v{t+3}, v{t+2}, v{t+1}\n  s_lshl_b32 s3, s{sWAVE}, 10\n  s_add_u32 s3, s3, {PA}")
        A(f"  v_lshlrev_b32 v{t+4}, 4, v{t+2}\n  v_add_u32 v{t+4}, s3, v{t+4}\n  v_mov_b32 v{t+5}, {ZA}")
        for c in range(4):
            A(f"  v_cmp_eq_u32 vcc, {4*c}, v{t+3}\n  s_nop 1\n  v_cndmask_b32 v{vPB+c}, v{t+5}, v{t+4}, vcc")
        A(f"  s_call_b64 s[{sRET}:{sRET+1}], VSET_0")

    def vphase_early(self):
        A = self.A
        t = TMP
        A(f"  v_lshrrev_b32 v{t}, 7, v{vLIN}\n  v_lshlrev_b32 v{t}, 2, v{t}\n  s_lshl_b32 s3, s{sWAVE}, 11\n  s_add_u32 s3, s3, {IDX}\n  v_add_u32 v{vIA}, s3, v{t}")
        self.gather_srd(sMVS)
        self.prime("V")

    def drain(self, betas, par, slot):
        A = self.A
        seq = []
        for d in range(12):
            r = POOL + 16 + (d % 4)*4
            if d >= 4:
                for b in betas:
                    seq.append(("M", f"v_mfma_f32_16x16x32_bf16 {aq(Oreg(b,d-4))}, {vq(r)}, {vq(Preg(par,b))}, {aq(Oreg(b,d-4))}", None))
            seq.append(("T", f"ds_read_b64_tr_b16 v[{r}:{r+1}], v{vVA+(d&3)} offset:{slot*TILE + (d>>2)*128}", None))
            seq.append(("T", f"ds_read_b64_tr_b16 v[{r+2}:{r+3}], v{vVA+(d&3)} offset:{slot*TILE + 6144 + (d>>2)*128}", None))
        for d in range(8, 12):
            r = POOL + 16 + (d % 4)*4
            for b in betas:
                seq.append(("M", f"v_mfma_f32_16x16x32_bf16 {aq(Oreg(b,d))}, {vq(r)}, {vq(Preg(par,b))}, {aq(Oreg(b,d))}", None))
        lines, _ = finalize(seq)
        for l in lines: A(l)

    def epi_checks(self, nm):
        A = self.A
        if self.P.get("vfull", 0) == 1: return
        A(f"  s_cmp_eq_u32 s{sB}, s{sEPA}\n  s_cbranch_scc0 {nm}_NE\n  s_call_b64 s[{sEPR}:{sEPR+1}], EPI_A\n{nm}_NE:")
        if self.P.get("vfull", 0) or not self.P.get("ompf", 1): return
        A(f"  s_cmp_eq_u32 s{sPH}, 2\n  s_cbranch_scc0 {nm}_NF")
        A(f"  s_add_u32 s3, s{sB}, 1\n  s_cmp_eq_u32 s3, s{sEPA}\n  s_cbranch_scc0 {nm}_NG\n  s_call_b64 s[{sRET}:{sRET+1}], OML_A\n{nm}_NG:")
        A(f"  s_cmp_eq_u32 s{sB}, 14\n  s_cbranch_scc0 {nm}_NF\n  s_call_b64 s[{sRET}:{sRET+1}], OML_B\n{nm}_NF:")

    OMR = [QV + 4*k for k in range(8)] + [Preg(0, 0), Preg(0, 1), Preg(1, 0), Preg(1, 1)]
    def omload(self, rowreg, quads):
        A = self.A
        A(f"  s_add_u32 s3, s{rowreg}, 4096\n  s_add_u32 s6, s{rowreg}, 8192")
        for qd in quads:
            sreg, off = (f"s{rowreg}", qd*1024) if qd < 4 else (("s3", (qd-4)*1024) if qd < 8 else ("s6", (qd-8)*1024))
            A(f"  buffer_load_dwordx4 {vq(self.OMR[qd])}, v{vLIN}, s[{sW}:{sW+3}], {sreg} offen offset:{off} {self.P.get('olf','')}")

    def epilogue(self, betas, rowreg, units, nload_after):
        A = self.A
        OMR = self.OMR
        X = Sreg(0, 0); ST = Sreg(1, 0); WA = TMP; RA = TMP + 4
        A(f"  v_lshrrev_b32 v{X}, 4, v{vLIN}\n  v_and_b32 v{X+1}, 15, v{X}\n  v_lshrrev_b32 v{X+2}, 4, v{X}")
        A(f"  v_lshrrev_b32 v{X+3}, 1, v{X+2}\n  v_and_b32 v{X+4}, 7, v{X+1}\n  v_xor_b32 v{X+3}, v{X+3}, v{X+4}\n  v_lshlrev_b32 v{X+3}, 4, v{X+3}")
        A(f"  v_lshl_add_u32 v{WA}, v{X+1}, 7, v{X+3}\n  v_and_b32 v{X+3}, 1, v{X+2}\n  v_lshl_add_u32 v{WA}, v{X+3}, 3, v{WA}\n  s_add_u32 s5, s{sGM0}, 8192\n  v_add_u32 v{WA}, s5, v{WA}")
        for x in range(1, 4): A(f"  v_xor_b32 v{WA+x}, {32*x}, v{WA}")
        A(f"  v_lshrrev_b32 v{X+3}, 3, v{X}\n  v_and_b32 v{X+4}, 7, v{X}\n  v_xor_b32 v{X+5}, v{X+4}, v{X+3}\n  v_lshlrev_b32 v{X+5}, 4, v{X+5}\n  v_lshl_add_u32 v{RA}, v{X+3}, 7, v{X+5}\n  v_add_u32 v{RA}, s5, v{RA}")
        A(f"  v_mul_u32_u24 v{RA+1}, 384, v{X+3}\n  v_lshl_add_u32 v{RA+1}, v{X+4}, 4, v{RA+1}")
        for bi, b in enumerate(betas):
            A(f"  v_rcp_f32 v{RA+2+bi}, v{L0+4*b}")
        A("  s_nop 0")
        for bi, b in enumerate(betas):
            A(f"  v_mul_f32 v{RA+2+bi}, s{sG1}, v{RA+2+bi}")
        nst = 0
        def flush(u):
            bi, T = units[u]; buf = (u & 1)*2048
            A(f"  ds_read_b128 {vq(ST)}, v{RA} offset:{buf}\n  ds_read_b128 {vq(ST+4)}, v{RA} offset:{buf+1024}")
            A(f"  s_add_u32 s6, s{rowreg}, {bi*6144 + T*128}\n  s_add_u32 s7, s6, 3072")
        def store(u):
            fl = self.P.get('ostf', '')
            if "noos" in self.ab:
                A("  s_waitcnt lgkmcnt(0)"); return
            A(f"  buffer_store_dwordx4 {vq(ST)}, v{RA+1}, s[{sO}:{sO+3}], s6 offen {fl}")
            A(f"  buffer_store_dwordx4 {vq(ST+4)}, v{RA+1}, s[{sO}:{sO+3}], s7 offen {fl}")
        for u, (bi, T) in enumerate(units):
            b = betas[bi]; f = RA + 2 + bi; buf = (u & 1)*2048
            A(f"  s_waitcnt vmcnt({nload_after[u] + (0 if 'noos' in self.ab else max(0, 2*(u-1)))})")
            for x in range(4):
                d = 4*T + x
                for h in range(2):
                    j = 2*d + h
                    om = OMR[6*bi + j // 4] + j % 4; a = Oreg(b, d) + 2*h
                    A(f"  v_accvgpr_read_b32 v{X}, a{a}\n  v_accvgpr_read_b32 v{X+1}, a{a+1}\n  v_lshlrev_b32 v{X+2}, 16, v{om}\n  v_and_b32 v{X+3}, s{sHI}, v{om}")
                    A(f"  v_fma_f32 v{X}, v{X}, v{f}, v{X+2}\n  v_fma_f32 v{X+1}, v{X+1}, v{f}, v{X+3}\n  v_cvt_pk_bf16_f32 v{X+4+2*(x&1)+h}, v{X}, v{X+1}")
                A(f"  ds_write_b64 v{WA+x}, v[{X+4+2*(x&1)}:{X+5+2*(x&1)}] offset:{buf}")
                if x == 1 and u >= 1:
                    A("  s_waitcnt lgkmcnt(2)")
                    flush(u - 1)
                if x == 3 and u >= 1:
                    A("  s_waitcnt lgkmcnt(2)")
                    store(u - 1)
        A("  s_waitcnt lgkmcnt(0)")
        flush(5)
        A("  s_waitcnt lgkmcnt(0)")
        store(5)

    def emit_epi_a(self):
        A = self.A
        A("EPI_A:\n  s_nop 7")
        self.stamp(5)
        A(f"  s_bitcmp1_b32 s{sOMF}, 0\n  s_cbranch_scc1 EPI_A1\n  s_call_b64 s[{sRET}:{sRET+1}], OML_A\nEPI_A1:")
        self.epilogue([0, 1], sROWA, [(bi, T) for bi in range(2) for T in range(3)], [10, 8, 6, 4, 2, 0])
        self.stamp(6)
        A(f"  s_setpc_b64 s[{sEPR}:{sEPR+1}]")
        A("OML_A:")
        self.omload(sROWA, range(12))
        A(f"  s_or_b32 s{sOMF}, s{sOMF}, 1\n  s_setpc_b64 s[{sRET}:{sRET+1}]")
        A("OML_B:")
        self.omload(sROWB, [0, 1, 2, 3, 6, 7, 8, 9])
        A(f"  s_or_b32 s{sOMF}, s{sOMF}, 2\n  s_setpc_b64 s[{sRET}:{sRET+1}]")

    def final_loads(self):
        A = self.A
        regs = [S0 + 4*k for k in range(8)] + [P0 + 4*k for k in range(4)] + [Preg(1, 0), Preg(1, 1)] + [NEGM + 4*k for k in range(4)] + [QV + 4*k for k in range(6)]
        self.FU = [(b, T) for T in range(3) for b in range(4)]
        self.FOM = {}
        A(f"  s_add_u32 s3, s{sROWA}, 4096\n  s_add_u32 s4, s{sROWA}, 8192\n  s_add_u32 s5, s{sROWB}, 4096\n  s_add_u32 s6, s{sROWB}, 8192")
        for u, (b, T) in enumerate(self.FU):
            for k in range(2):
                qd = (b & 1)*6 + 2*T + k
                base = [f"s{sROWA}", "s3", "s4"] if b < 2 else [f"s{sROWB}", "s5", "s6"]
                r = regs[2*u + k]; self.FOM[(b, 2*T + k)] = r
                A(f"  buffer_load_dwordx4 {vq(r)}, v{vLIN}, s[{sW}:{sW+3}], {base[qd // 4]} offen offset:{(qd % 4)*1024} {self.P.get('olf','')}")

    def final_epilogue(self):
        A = self.A
        X = 200; ST = 208; WA = 216; RA = 220; FR = 224
        A(f"  v_lshrrev_b32 v{X}, 4, v{vLIN}\n  v_and_b32 v{X+1}, 15, v{X}\n  v_lshrrev_b32 v{X+2}, 4, v{X}")
        A(f"  v_lshrrev_b32 v{X+3}, 1, v{X+2}\n  v_and_b32 v{X+4}, 7, v{X+1}\n  v_xor_b32 v{X+3}, v{X+3}, v{X+4}\n  v_lshlrev_b32 v{X+3}, 4, v{X+3}")
        A(f"  v_lshl_add_u32 v{WA}, v{X+1}, 7, v{X+3}\n  v_and_b32 v{X+3}, 1, v{X+2}\n  v_lshl_add_u32 v{WA}, v{X+3}, 3, v{WA}\n  v_add_u32 v{WA}, s{sGM0}, v{WA}")
        for x in range(1, 4): A(f"  v_xor_b32 v{WA+x}, {32*x}, v{WA}")
        A(f"  v_lshrrev_b32 v{X+3}, 3, v{X}\n  v_and_b32 v{X+4}, 7, v{X}\n  v_xor_b32 v{X+5}, v{X+4}, v{X+3}\n  v_lshlrev_b32 v{X+5}, 4, v{X+5}\n  v_lshl_add_u32 v{RA}, v{X+3}, 7, v{X+5}\n  v_add_u32 v{RA}, s{sGM0}, v{RA}")
        A(f"  v_mul_u32_u24 v{RA+1}, 384, v{X+3}\n  v_lshl_add_u32 v{RA+1}, v{X+4}, 4, v{RA+1}")
        for b in range(4): A(f"  v_rcp_f32 v{FR+b}, v{L0+4*b}")
        A("  s_nop 0")
        for b in range(4): A(f"  v_mul_f32 v{FR+b}, s{sG1}, v{FR+b}")
        units = self.FU; n = len(units)
        fl = self.P.get('ostf', '')
        def flush(u):
            b, T = units[u]; buf = (u % 3)*2048
            A(f"  ds_read_b128 {vq(ST)}, v{RA} offset:{buf}\n  ds_read_b128 {vq(ST+4)}, v{RA} offset:{buf+1024}")
            A(f"  s_add_u32 s6, s{sROWA if b < 2 else sROWB}, {(b&1)*6144 + T*128}\n  s_add_u32 s7, s6, 3072")
        def store(u):
            A(f"  buffer_store_dwordx4 {vq(ST)}, v{RA+1}, s[{sO}:{sO+3}], s6 offen {fl}")
            A(f"  buffer_store_dwordx4 {vq(ST+4)}, v{RA+1}, s[{sO}:{sO+3}], s7 offen {fl}")
        for u, (b, T) in enumerate(units):
            f = FR + b; buf = (u % 3)*2048
            A(f"  s_waitcnt vmcnt({(2*n - 2 - 2*u) + max(0, 2*(u-1))})")
            for x in range(4):
                d = 4*T + x
                for h in range(2):
                    j = 2*d + h
                    om = self.FOM[(b, j // 4)] + j % 4; a = Oreg(b, d) + 2*h
                    A(f"  v_accvgpr_read_b32 v{X}, a{a}\n  v_accvgpr_read_b32 v{X+1}, a{a+1}\n  v_lshlrev_b32 v{X+2}, 16, v{om}\n  v_and_b32 v{X+3}, s{sHI}, v{om}")
                    A(f"  v_fma_f32 v{X}, v{X}, v{f}, v{X+2}\n  v_fma_f32 v{X+1}, v{X+1}, v{f}, v{X+3}\n  v_cvt_pk_bf16_f32 v{X+4+2*(x&1)+h}, v{X}, v{X+1}")
                A(f"  ds_write_b64 v{WA+x}, v[{X+4+2*(x&1)}:{X+5+2*(x&1)}] offset:{buf}")
                if x == 1 and u >= 1:
                    A("  s_waitcnt lgkmcnt(2)"); flush(u - 1)
                if x == 3 and u >= 1:
                    A("  s_waitcnt lgkmcnt(2)"); store(u - 1)
        A("  s_waitcnt lgkmcnt(0)"); flush(n - 1)
        A("  s_waitcnt lgkmcnt(0)"); store(n - 1)

    def build(self):
        A = self.A
        self.routines()
        names = []
        na = self.body("p2", None, 0); nb = self.body("p2", None, 1)
        for kind in ("p1", "p2"):
            for gt in ("K", "V"):
                for H in (0, 1): names.append(self.body(kind, gt, H))
        tr = {nm: vm_trace(self.bodies[nm]["seq"]) for nm in self.bodies}
        op = lambda t, k: [("op", t)]*k
        prime_tr = op(("G", 6), 4) + op(("G", 7), 4)
        pre = op(("R", "pre0"), 6) + op(("R", "pre1"), 9) + op(("Q", "q"), 6)
        preds = {
            na: [pre], nb: [tr[na] + prime_tr],
            "P1K0": [tr["P1K1"], tr[na] + prime_tr + tr[nb]],
            "P1K1": [tr["P1K0"]],
            "P1V0": [tr["P1V1"]],
            "P1V1": [tr["P1V0"]],
            "P2K0": [tr["P2K1"], tr["P1K1"]],
            "P2K1": [tr["P2K0"]],
            "P2V0": [tr["P2V1"], tr["P1V1"]],
            "P2V1": [tr["P2V0"]],
        }
        self.prologue()
        self.stamp(1)
        self.step0()
        self.stamp(2)
        for l in self.emit_body(na, preds[na]): A(l)
        self.stamp(52)
        ops = [t for k, t in tr[na] if k == "op"]
        lastq = max(i for i, t in enumerate(ops) if t and t[0] == "Q")
        A(f"  s_waitcnt vmcnt({len(ops) - 1 - lastq}) lgkmcnt(0)\n  v_add_u32 v{Sreg(0,0)}, s{sGM0}, v{vKA}\n  v_xor_b32 v{Sreg(0,0)+1}, 64, v{Sreg(0,0)}")
        self.stamp(53)
        for b in (0, 1):
            self.qproc_inplace(b)
        self.gather_srd(sMK)
        A(f"  s_mov_b32 s{sMVS}, s{sMV}\n  s_and_b32 s{sMVS+1}, s{sMV+1}, 0xffff\n  s_mov_b32 s{sMVS+2}, {HEAD}\n  s_mov_b32 s{sMVS+3}, 0x20000")
        A(f"  s_mul_i32 s{sTOF2}, s{sI}, 98304\n  s_mul_i32 s5, s{sWAVE}, 24576\n  s_add_u32 s{sTOF2}, s{sTOF2}, s5\n  s_mov_b32 s{sTOFF}, 0")
        self.prime("K")
        A(f"  s_call_b64 s[{sRET}:{sRET+1}], CPQ_0")
        self.stamp(49)
        for l in self.emit_body(nb, preds[nb]): A(l)
        A(f"  s_call_b64 s[{sRET}:{sRET+1}], MASK_p1")
        A(f"  s_mov_b32 s{sB}, 0\n  s_mov_b32 s{sPH}, 1\n  s_mov_b32 s{sOMF}, 0")
        self.stamp(3)
        A("  s_branch P1K0")
        for nm in names:
            B = self.bodies[nm]
            A(f".p2align 6\n{nm}:")
            self.stamp_dyn(16)
            for l in self.emit_body(nm, preds[nm]): A(l)
            self.stamp_dyn(32)
            kind, gt, H = B["kind"], B["gt"], B["H"]
            K = kind.upper()
            if gt == "K" and self.P.get("mvt", 2) == 2:
                A(f"  s_add_u32 s3, s{sB}, s{sI}\n  s_and_b32 s3, s3, 1\n  s_cmp_lg_u32 s3, 0\n  s_cbranch_scc1 {nm}_NT")
                A(f"  s_cmp_lt_u32 s{sB}, 1\n  s_cbranch_scc1 {nm}_NT\n  s_cmp_ge_u32 s{sTOFF}, 3\n  s_cbranch_scc1 {nm}_NT")
                A(f"  s_mov_b32 m0, {DUMMY}\n  s_nop 0\n  buffer_load_dword v{vTCH}, s[{sMVS}:{sMVS+3}], s{sTOF2} offen {self.P.get('tf','')} lds\n  s_add_u32 s{sTOF2}, s{sTOF2}, 8192\n  s_add_u32 s{sTOFF}, s{sTOFF}, 1")
                A(f"{nm}_NT:")
            if self.P.get("mvt", 2) == 1:
                tb = self.P.get("mvt_b", [7, 8, 10]); mk = self.P.get("mvt_mask", 3)
                A(f"  s_and_b32 s3, s{sI}, {mk}\n  s_add_u32 s3, s3, s{sB}")
                A(f"  s_cmp_eq_u32 s3, {tb[0]}\n  s_cbranch_scc1 {nm}_DT\n  s_cmp_eq_u32 s3, {tb[1]}\n  s_cbranch_scc1 {nm}_DT\n  s_cmp_eq_u32 s3, {tb[2]}\n  s_cbranch_scc0 {nm}_NT")
                A(f"{nm}_DT:\n  s_mov_b32 m0, {DUMMY}\n  v_mul_u32_u24 v{TMP}, 3, v{vTCH}\n  buffer_load_dword v{TMP}, s[{sMVS}:{sMVS+3}], s{sTOF2} offen {self.P.get('tf','')} lds\n  s_add_u32 s{sTOF2}, s{sTOF2}, 128")
                A(f"{nm}_NT:")
            if H == 0:
                if gt == "V" and kind == "p2":
                    self.epi_checks(nm)
                A(f"  s_add_u32 s{sB}, s{sB}, 1\n  s_branch {K}{gt}1")
                continue
            if gt == "K":
                A(f"  s_cmp_eq_u32 s{sB}, 7\n  s_cbranch_scc0 {nm}_NVE\n  s_call_b64 s[{sRET2}:{sRET2+1}], VEARLY\n{nm}_NVE:")
                for gm in range(4):
                    A(f"  s_cmp_eq_u32 s{sB}, {2*gm+1}\n  s_cbranch_scc0 {nm}_NK{gm}\n  s_call_b64 s[{sRET}:{sRET+1}], KEND_{gm}\n{nm}_NK{gm}:")
            else:
                for m in range(1, 4):
                    A(f"  s_cmp_eq_u32 s{sB}, {7 + 2*m}\n  s_cbranch_scc0 {nm}_NV{m}\n  s_call_b64 s[{sRET}:{sRET+1}], VSET_{m}\n{nm}_NV{m}:")
            if kind == "p1":
                A(f"  s_cmp_eq_u32 s{sB}, s{sB1LAST}\n  s_cbranch_scc0 {nm}_NP")
                self.stamp(4)
                self.drain([0, 1], 1, 3)
                A(f"  s_call_b64 s[{sRET}:{sRET+1}], MASK_p2\n  s_mov_b32 s{sPH}, 2")
                A(f"{nm}_NP:")
            if gt == "V":
                self.epi_checks(nm)
                A(f"  s_cmp_eq_u32 s{sB}, 15\n  s_cbranch_scc1 FINISH")
                A(f"  s_add_u32 s{sB}, s{sB}, 1")
                if kind == "p1": A(f"  s_cmp_eq_u32 s{sPH}, 2\n  s_cbranch_scc1 P2V0")
                A(f"  s_branch {K}V0")
            else:
                A(f"  s_add_u32 s{sB}, s{sB}, 1\n  s_cmp_eq_u32 s{sB}, 8\n  s_cbranch_scc1 SWITCH")
                if kind == "p1": A(f"  s_cmp_eq_u32 s{sPH}, 2\n  s_cbranch_scc1 P2K0")
                A(f"  s_branch {K}K0")
        A("SWITCH:")
        self.stamp(7)
        self.vphase_setup()
        A("  s_waitcnt vmcnt(0) lgkmcnt(0)")
        A(f"  s_cmp_eq_u32 s{sPH}, 2\n  s_cbranch_scc1 P2V0\n  s_branch P1V0")
        if self.P.get("vfull", 0) != 1: self.emit_epi_a()
        self.emit_rest_marker = True
        A("VEARLY:")
        self.vphase_early()
        A(f"  s_setpc_b64 s[{sRET2}:{sRET2+1}]")
        A("FINISH:")
        self.stamp(8)
        if self.P.get("vfull", 0) == 1:
            self.final_loads()
            self.drain([2, 3], 1, 3)
            A("  s_nop 7")
            self.stamp(9)
            self.final_epilogue()
        else:
            A(f"  s_bitcmp1_b32 s{sOMF}, 1\n  s_cbranch_scc1 FIN1\n  s_call_b64 s[{sRET}:{sRET+1}], OML_B\nFIN1:")
            self.omload(sROWB, [4, 5, 10, 11])
            self.drain([2, 3], 1, 3)
            A("  s_nop 7")
            self.stamp(9)
            self.epilogue([2, 3], sROWB, [(0, 0), (0, 1), (1, 0), (1, 1), (0, 2), (1, 2)], [10, 8, 6, 4, 2, 0])
        if self.instr:
            A("  s_waitcnt vmcnt(0)")
            self.stamp(10)
            A("  s_memrealtime s[98:99]\n  s_load_dwordx2 s[4:5], s[0:1], 72\n  s_waitcnt lgkmcnt(0)")
            A(f"  s_lshl_b32 s100, s{sWAVE}, 8\n  s_add_u32 s100, s100, {STAMPA}\n  v_mov_b32 v2, s100\n  v_mov_b32 v3, s98\n  ds_write_b32 v2, v3 offset:48\n  s_getreg_b32 s3, hwreg(HW_REG_XCC_ID)\n  v_mov_b32 v3, s3\n  ds_write_b32 v2, v3 offset:52")
            A(f"  v_lshrrev_b32 v4, 2, v{vLIN}\n  v_add_u32 v5, s100, v4\n  s_waitcnt lgkmcnt(0)\n  ds_read_b32 v6, v5\n  s_waitcnt lgkmcnt(0)")
            A("  s_add_u32 s4, s4, 0x8000000\n  s_addc_u32 s5, s5, 0")
            A(f"  s_lshl_b32 s3, s2, 2\n  s_add_u32 s3, s3, s{sWAVE}\n  s_lshl_b32 s3, s3, 8\n  v_add_u32 v2, s3, v4")
            if self.P.get("dbg", 0):
                A("  s_load_dwordx2 s[6:7], s[0:1], 64\n  s_waitcnt lgkmcnt(0)")
                A(f"  s_lshl_b32 s100, s{sWAVE}, 8\n  s_add_u32 s100, s100, {STAMPA}\n  v_mov_b32 v2, s100\n  ds_read_b32 v8, v2 offset:44\n  ds_read_b32 v9, v2 offset:48\n  s_waitcnt lgkmcnt(0)")
                A("  v_not_b32 v8, v8\n  v_mov_b32 v3, 0\n  s_mov_b64 exec, 1\n  global_atomic_umax v3, v8, s[6:7]\n  global_atomic_umax v3, v9, s[6:7] offset:4\n  s_mov_b64 exec, -1")
                A(f"  s_cmp_eq_u32 s2, {self.P.get('dbgwg', 0)}\n  s_cbranch_scc0 DBG_SKIP\n  s_cmp_eq_u32 s{sWAVE}, 0\n  s_cbranch_scc0 DBG_SKIP")
                A(f"  v_lshrrev_b32 v10, 2, v{vLIN}\n  v_lshrrev_b32 v10, 2, v10\n  v_add_u32 v11, 1, v10\n  v_lshlrev_b32 v11, 2, v11\n  v_add_u32 v11, s100, v11\n  ds_read_b32 v12, v11\n  ds_read_b32 v14, v2\n  s_waitcnt lgkmcnt(0)\n  v_sub_u32 v12, v12, v14")
                A("  v_lshlrev_b32 v10, 2, v10\n  s_mov_b64 exec, 0x3ff\n  global_store_dword v10, v12, s[6:7] offset:8\n  s_mov_b64 exec, -1\nDBG_SKIP:")
            else:
                A("  global_store_dword v2, v6, s[4:5]")
        A("AT_END:\n  s_endpgm")
        for blk in self.ool:
            for l in blk: A(l)
        import tileorder
        pm = self.P.get("perm", 2)
        if pm == 0: order = {i: [32, 33, 34, 35] + list(range(4*i + 4)) + [x for x in range(4*i + 4, 64 - 4*i) if not 32 <= x < 36] for i in range(8)}
        elif pm == 5: order, _ = tileorder.solve5(margin=self.P.get("margin", 2.0), buf=self.P.get("buf", 3))
        elif pm == 4: order, _ = tileorder.solve4(mode=self.P.get("convoy", "rot"))
        else: order, _ = tileorder.solve3(margin=self.P.get("margin", 2.0), quota=tuple(self.P.get("quota", (12, 10, 6))), pick=self.P.get("pick", "new"))
        A(".p2align 6\n.type TILETAB,@object\nTILETAB:")
        for i in range(8):
            row = order[i] + [255]*(64 - len(order[i]))
            A("  .byte " + ", ".join(str(x) for x in row))
        A(".size TILETAB, 512")
        return A

def desc(name, vgpr, accum, sgpr=102):
    return f""".section .rodata,"a"
.p2align 6
.amdhsa_kernel {name}
  .amdhsa_next_free_vgpr {vgpr}
  .amdhsa_next_free_sgpr {sgpr}
  .amdhsa_accum_offset {accum}
  .amdhsa_group_segment_fixed_size 0
  .amdhsa_kernarg_size 80
  .amdhsa_user_sgpr_count 2
  .amdhsa_user_sgpr_kernarg_segment_ptr 1
  .amdhsa_system_sgpr_workgroup_id_x 1
.end_amdhsa_kernel
"""
HDR = """; Memory-augmented causal attention (Memorizing Transformer block), hand-scheduled for gfx950.
; 16x16x32 bf16 MFMA, kNN memory attention (LDS-DMA row gather) interleaved in the same instruction stream.
; @launch grid=(256,1,1) block=(256,1,1) lds=163840
.amdgcn_target "amdgcn-amd-amdhsa--gfx950"
.text
"""
if __name__ == "__main__":
    instr = "instr" in sys.argv
    params = {"touch": 0, "coop": 0, "ostf": "sc1", "omf": "sc1", "iters": 600000, "qf": "nt", "vfull": 1, "perm": 5, "buf": 1}; tag = ""; ab = ""
    for a in sys.argv[1:]:
        if a.startswith("P="): params.update(json.loads(a[2:]))
        if a.startswith("tag="): tag = a[4:]
        if a.startswith("ab="): ab = a[3:]
    g = Gen(instr, params, ab)
    A = g.build()
    full = HDR + A.text() + desc(KNAME, 512, 256)
    fn = f"fused{'_i' if instr else ''}{tag}.s"
    open(fn, "w").write(full)
    print(fn, "bytes", len(full))
```

```python
def times(i):
    T = []; t = 0.0
    N = 64 - 4*i
    for s in range(N):
        T.append(t)
        p1 = s < 4*i + 4
        t += 2.0 if p1 else 1.0
        if s == 4*i + 3: t += 0.8
        if s >= 1:
            if p1: b = (s - 2)//2 if (s - 2) % 2 == 1 else None
            else:
                u = s - (4*i + 4); b = 2*i + 1 + u//4 if u % 4 == 3 else None
            if b is not None:
                if b < 8 and b % 2 == 1: t += 0.5
                if b == 7: t += 2.0
                if b == max(2*i, 11): t += 3.5
    return T
def solve(margin=2.0, buf=4, verbose=False):
    TT = [times(i) for i in range(8)]
    INF = 1e9
    touch = {x: INF for x in range(64)}
    for i in range(8):
        for s in range(4*i + 4):
            ti = TT[i][max(s - 4, 0)]
            touch[s] = min(touch[s], ti)
    order = {i: list(range(4*i + 4)) for i in range(8)}
    remain = {i: set(range(4*i + 4, 64 - 4*i)) for i in range(8)}
    leads = {i: 0 for i in range(8)}; stalls = {i: 0 for i in range(8)}
    ev = sorted((TT[i][max(s - 4, 0)], i, s) for i in range(8) for s in range(4*i + 4, 64 - 4*i))
    started = lambda j, ti: TT[j][max(4*j + 4 - 4, 0)] <= ti
    BUF = buf
    for (ti, i, s) in ev:
        free = [x for x in remain[i] if touch[x] + margin <= ti]
        cand = [x for x in remain[i] if touch[x] == INF]
        act = [j for j in range(8) if remain[j] and started(j, ti)]
        bufmin = min(len([x for x in remain[j] if touch[x] <= ti])
                     if [x for x in remain[j] if touch[x] == INF] else 99 for j in act)
        able = [j for j in act if [x for x in remain[j] if touch[x] == INF]]
        turn = min(able, key=lambda j: (leads[j], -j)) if able else None
        lead = cand and (not free or (bufmin <= BUF and turn == i))
        if lead:
            def score(x): return sum(1 for j in range(8) if j != i and x in remain[j])
            x = max(cand, key=lambda x: (score(x), -x))
            leads[i] += 1
        elif free:
            x = min(free, key=lambda x: touch[x])
        else:
            x = min(remain[i], key=lambda x: touch[x]); stalls[i] += 1
        touch[x] = min(touch[x], ti)
        remain[i].discard(x); order[i].append(x)
    if verbose:
        for i in range(8): print(i, "leads", leads[i], "stalls", stalls[i], order[i][4*i+4:])
    return order, leads
if __name__ == "__main__":
    for buf in (2,3,4):
        print("buf",buf); solve(buf=buf, verbose=True)


def solve2(margin=2.0, quota=(12, 10, 6, 4), pick="old", verbose=False):
    TT = [times(i) for i in range(8)]
    INF = 1e9
    touch = {x: INF for x in range(64)}
    for i in range(8):
        for s in range(4*i + 4):
            touch[s] = min(touch[s], TT[i][max(s - 4, 0)])
    lead = {}; hi = 63
    for i, q in enumerate(quota):
        lead[i] = list(range(hi, hi - q, -1)); hi -= q
    order = {i: list(range(4*i + 4)) for i in range(8)}
    remain = {i: set(range(4*i + 4, 64 - 4*i)) for i in range(8)}
    leads = {i: 0 for i in range(8)}
    ev = sorted((TT[i][max(s - 4, 0)], i, s) for i in range(8) for s in range(4*i + 4, 64 - 4*i))
    for (ti, i, s) in ev:
        mine = [x for x in lead.get(i, []) if x in remain[i] and touch[x] == INF]
        free = [x for x in remain[i] if touch[x] + margin <= ti]
        if mine:
            x = mine[0]; leads[i] += 1
        elif free:
            x = min(free, key=lambda x: touch[x]) if pick == "old" else max(free, key=lambda x: touch[x])
        else:
            x = min(remain[i], key=lambda x: (touch[x], x))
            if touch[x] > ti: leads[i] += 1
        touch[x] = min(touch[x], ti)
        remain[i].discard(x); order[i].append(x)
    if verbose:
        for i in range(8): print(i, "leads", leads[i], order[i][4*i+4:])
    return order, leads
if __name__ == "__main__":
    print("solve2"); solve2(verbose=True); print(); solve2(quota=(12,10,6,4), pick="new", verbose=True)


def times3(i):
    T = []; t = 0.0; N = 64 - 4*i
    for s in range(N):
        T.append(t)
        p1 = 4 <= s < 4*i + 8
        t += 2.0 if p1 else 1.0
        if s == 2: t += 1.2
        if s == 4*i + 7: t += 0.8
        b = None
        if p1 and (s - 4) % 2 == 1: b = (s - 4)//2
        if s >= 4*i + 8 and (s - 4*i - 8) % 4 == 3: b = 2*i + 2 + (s - 4*i - 8)//4
        if b is not None:
            if b < 8 and b % 2 == 1: t += 0.5
            if b == 7: t += 2.0
            if b == max(2*i + 1, 11): t += 3.5
    return T
def solve3(margin=2.0, quota=(12, 10, 6), pick="new", verbose=False):
    TT = [times3(i) for i in range(8)]
    INF = 1e9
    touch = {x: INF for x in range(64)}
    for x in range(32, 36): touch[x] = 0
    for i in range(8):
        for x in range(4*i + 4): touch[x] = min(touch[x], TT[i][x])
    lead = {}; hi = 63
    for i, q in enumerate(quota):
        lead[i] = [x for x in range(hi, hi - q, -1) if x >= 36]; hi -= q
    order = {i: [32, 33, 34, 35] + list(range(4*i + 4)) for i in range(8)}
    remain = {i: set(x for x in range(4*i + 4, 64 - 4*i) if not 32 <= x < 36) for i in range(8)}
    leads = {i: 0 for i in range(8)}
    ev = sorted((TT[i][s - 4], i, s) for i in range(8) for s in range(4*i + 8, 64 - 4*i))
    for (ti, i, s) in ev:
        mine = [x for x in lead.get(i, []) if x in remain[i] and touch[x] == INF]
        free = [x for x in remain[i] if touch[x] + margin <= ti]
        if mine: x = mine[0]; leads[i] += 1
        elif free: x = min(free, key=lambda x: touch[x]) if pick == "old" else max(free, key=lambda x: touch[x])
        else:
            x = min(remain[i], key=lambda x: (touch[x], x))
            if touch[x] > ti: leads[i] += 1
        touch[x] = min(touch[x], ti)
        remain[i].discard(x); order[i].append(x)
    if verbose:
        for i in range(8): print(i, "leads", leads[i], order[i][4*i+8:])
    for i in range(8): assert sorted(order[i]) == list(range(64 - 4*i)), i
    return order, leads
if __name__ == "__main__":
    print("solve3"); solve3(verbose=True)


def solve4(mode="rot", verbose=False):
    order = {}
    for i in range(8):
        o = [32, 33, 34, 35] + list(range(4*i + 4))
        for tau in range(4*i + 4, 32):
            n = (tau - 4)//4 + 1
            lead = (tau % n) == i if mode == "rot" else (i == 0 if mode == "zero" else (i + tau) % 2 == 0)
            hi = 67 - tau
            o += [hi, tau] if lead else [tau, hi]
        order[i] = o
        assert sorted(o) == list(range(64 - 4*i)), i
    if verbose:
        for i in range(8): print(i, order[i][4*i+8:])
    return order, None
if __name__ == "__main__":
    print("solve4"); solve4(verbose=True)


def solve5(margin=2.0, buf=3, verbose=False):
    TT = [times3(i) for i in range(8)]
    INF = 1e9
    touch = {x: INF for x in range(64)}
    for x in range(32, 36): touch[x] = 0
    for i in range(8):
        for x in range(4*i + 4): touch[x] = min(touch[x], TT[i][x])
    order = {i: [32, 33, 34, 35] + list(range(4*i + 4)) for i in range(8)}
    remain = {i: set(x for x in range(4*i + 4, 64 - 4*i) if not 32 <= x < 36) for i in range(8)}
    leads = {i: 0 for i in range(8)}
    ev = sorted((TT[i][s - 4], i, s) for i in range(8) for s in range(4*i + 8, 64 - 4*i))
    started = lambda j, ti: TT[j][4*j + 4] <= ti
    for (ti, i, s) in ev:
        free = [x for x in remain[i] if touch[x] + margin <= ti]
        cand = [x for x in remain[i] if touch[x] == INF]
        act = [j for j in range(8) if remain[j] and started(j, ti)]
        able = [j for j in act if [x for x in remain[j] if touch[x] == INF]]
        bufmin = min([len([x for x in remain[j] if touch[x] <= ti]) for j in able] + [99])
        turn = min(able, key=lambda j: (leads[j], -j)) if able else None
        if cand and (not free or (bufmin <= buf and turn == i)):
            def score(x): return sum(1 for j in range(8) if j != i and x in remain[j])
            x = max(cand)
            leads[i] += 1
        elif free: x = max(free, key=lambda x: touch[x])
        else: x = min(remain[i], key=lambda x: (touch[x], x))
        touch[x] = min(touch[x], ti)
        remain[i].discard(x); order[i].append(x)
    if verbose:
        for i in range(8): print(i, "leads", leads[i], order[i][4*i+8:])
    for i in range(8): assert sorted(order[i]) == list(range(64 - 4*i)), i
    return order, leads
if __name__ == "__main__":
    print("solve5"); solve5(verbose=True); solve5(buf=1, verbose=True)


def solve6(margin=2.0, buf=3, buf1=2, common=0, verbose=False):
    TT = [times3(i) for i in range(8)]
    INF = 1e9
    touch = {x: INF for x in range(64)}
    for x in range(32, 36): touch[x] = 0
    order = {i: [32, 33, 34, 35] for i in range(8)}
    rem1 = {i: set(range(4*i + 4)) for i in range(8)}
    rem2 = {i: set(x for x in range(4*i + 4, 64 - 4*i) if not 32 <= x < 36) for i in range(8)}
    leads = {i: 0 for i in range(8)}
    ev = sorted((TT[i][s - 4], i, s) for i in range(8) for s in range(4, 64 - 4*i))
    for (ti, i, s) in ev:
        p1 = s < 4*i + 8
        rem = rem1 if p1 else rem2
        if p1 and s == 4 and i == 0:
            x = 0
        elif p1 and s - 4 < common:
            x = s - 4
        else:
            pool = set(rem[i])
            if p1 and s == 4: pool = {x for x in pool if x < 4*i}
            free = [x for x in pool if touch[x] + margin <= ti]
            cand = [x for x in pool if touch[x] == INF]
            act = [j for j in range(8) if (rem1[j] or rem2[j])]
            def want(j):
                inp1 = len(rem1[j]) > 0
                return rem1[j] if inp1 else rem2[j]
            able = [j for j in act if [y for y in want(j) if touch[y] == INF]]
            bufs = {j: len([y for y in want(j) if touch[y] <= ti]) for j in able}
            bufmin = min(list(bufs.values()) + [99])
            same = [j for j in able if (len(rem1[j]) > 0) == p1]
            turn = min(same, key=lambda j: (leads[j], -j)) if same else None
            if cand and (not free or (bufmin <= (buf1 if p1 else buf) and turn == i)):
                if p1:
                    x = max(cand, key=lambda x: (sum(1 for j in range(8) if x in rem1[j] or x in rem2[j]), -((x - i) % 8), -x))
                else: x = max(cand)
                leads[i] += 1
            elif free: x = max(free, key=lambda x: touch[x]) if not p1 else min(free, key=lambda x: touch[x])
            else:
                x = min(pool, key=lambda x: (touch[x], x))
        touch[x] = min(touch[x], ti)
        rem[i].discard(x); order[i].append(x)
    if verbose:
        for i in range(8): print(i, "leads", leads[i], order[i][4:])
    for i in range(8):
        assert sorted(order[i]) == list(range(64 - 4*i)), i
        assert all(x < 4*i + 4 for x in order[i][4:4*i + 8])
    return order, leads
if __name__ == "__main__":
    print("solve6"); solve6(verbose=True)
```

```python
import sys, json
from asmlib import Asm, fix_hazards
from sched3 import Item, optimize, emit, vm_trace, finalize

HEAD = 786432
LOG2E = 1.4426950408889634
CSCALE = (192 ** -0.5) * LOG2E
def f2u(x):
    import struct
    return struct.unpack("<I", struct.pack("<f", x))[0]
KNAME = "standalone__memory_aug_memorizing_tr__prompt_kernel"

TILE = 12288
KR = 0
VR = 49152
GR = 98304
IDX = 147456
PA = 155648
ZA = 159744
LDS_BYTES = 163840
STAMPA = 161024
DUMMY = 160768
QAREA = [73728, 86016, 24576, 36864]

vDUM = 0; vIA = 1; vKA = 2; vVA = 4; vDV = 8; vX = 11; vNINF = 12; vLIN = 13; vT0 = 14; vTCH = 15
S0 = 16; P0 = 48; NEGM = 80; L0 = 96; ONES = 112; MNEG = 116; QV = 120; POOL = 152; TMP = 184; NEGM1 = 192
PAIR = 200
GF = 208
GQ = 216
GD = 240
GX = 248
vKG = 250
vPW = 252
ACC = 216
GB = 232
vVG = 240
vPB = 244
OUTT = 248
vSTAMP = 0

def vq(r): return f"v[{r}:{r+3}]"
def aq(r): return f"a[{r}:{r+3}]"
def Sreg(k, b): return S0 + k*16 + b*4
def Preg(par, b): return P0 + par*16 + b*4
def Oreg(b, d): return (b*12 + d)*4
def Qop(b, s):
    if b >= 2: return aq(192 + ((b-2)*6 + s)*4)
    if b == 0 and s < 4: return aq(240 + s*4)
    k = (s - 4) if b == 0 else (2 + s)
    return vq(QV + k*4)
def pool(z): return POOL + (z % 8)*4

sK, sV, sG, sO, sW = 8, 12, 16, 20, 24
sWAVE, sI, sH, sN = 28, 29, 30, 31
sT, sB, sKOFF, sSPEC = 32, 33, 34, 35
sDA, sDB, sB1LAST, sEPA = 36, 37, 38, 39
sD, sTMP = 40, 41
sMASK = 42
sTHR = 50; sKM0 = 51; sVM0 = 52; sGM0 = 53; sC = 54; sHI = 55; sG1 = 56; sGG = 57
sROWA, sROWB = 58, 59
sT1, sT2 = 60, 61
sOM0, sOM1 = 62, 63
sCMP = 64
sFLAG = 66
sMK = 68
sMV = 70
sRET = 72
sRET2 = 4
sTS = 76
sSEL = 80
sVT = 80; sVI = 83; sVP = 86; sVO = 90
sTOFF = 96
sTOF2 = 97
sMVS = 68
sEPR = 94
sST = 98
sR0, sR1, sR2, sR3, sR4 = 76, 77, 78, 79, 74
sWP = 75
sOMF = 33+2
sQO = 35
sPH = 34
vSEQ = 0

class Gen:
    def __init__(self, instr=False, params=None, ablate=""):
        self.A = Asm(); self.ool = []; self.instr = instr; self.P = params or {}; self.ab = ablate
        self.bodies = {}
    def stamp(self, k):
        if not self.instr: return
        self.A(f"  s_memtime s[{sST}:{sST+1}]\n  s_lshl_b32 s100, s{sWAVE}, 8\n  s_add_u32 s100, s100, {STAMPA + 4*k}\n  s_waitcnt lgkmcnt(0)\n  v_mov_b32 v{TMP+6}, s{sST}\n  v_mov_b32 v{TMP+7}, s100\n  ds_write_b32 v{TMP+7}, v{TMP+6}")
    def stamp_dyn(self, base):
        if not self.instr: return
        self.A(f"  s_memtime s[{sST}:{sST+1}]\n  s_lshl_b32 s100, s{sWAVE}, 6\n  s_add_u32 s100, s100, s{sB}\n  s_lshl_b32 s100, s100, 2\n  s_add_u32 s100, s100, {STAMPA + 4*base}\n  s_waitcnt lgkmcnt(0)\n  v_mov_b32 v{TMP+6}, s{sST}\n  v_mov_b32 v{TMP+7}, s100\n  ds_write_b32 v{TMP+7}, v{TMP+6}")

    def kread(self, f, slot):
        k, s = divmod(f, 6)
        return f"ds_read_b128 {vq(pool(f))}, v{vKA+(s&1)} offset:{slot*TILE + k*6144 + (s>>1)*128}"
    def vread(self, d, rho, slot):
        r = pool(12 + d) + 2*rho
        return f"ds_read_b64_tr_b16 v[{r}:{r+1}], v{vVA+(d&3)} offset:{slot*TILE + rho*6144 + (d>>2)*128}"
    def cinit(self, kind, k, b):
        mb = (0, 1) if kind == "p1" else (2, 3)
        if k == 1 and b in mb: return vq(NEGM1 + 4*mb.index(b))
        return vq(NEGM + 4*b)

    def step_parts(self, kind, tm4):
        P = self.P.get(kind, {})
        par = tm4 & 1
        qb = [0, 1, 2, 3] if kind == "p1" else [2, 3]
        nq = len(qb); NQ = 12*nq
        mf = []
        for f in range(12):
            k, s = divmod(f, 6)
            for b in qb:
                c = self.cinit(kind, k, b) if s == 0 else vq(Sreg(k, b))
                mf.append(f"v_mfma_f32_16x16x32_bf16 {vq(Sreg(k,b))}, {vq(pool(f))}, {Qop(b,s)}, {c}")
        pv = []
        for d in range(12):
            for b in qb:
                pv.append(f"v_mfma_f32_16x16x32_bf16 {aq(Oreg(b,d))}, {vq(pool(12+d))}, {vq(Preg(par^1,b))}, {aq(Oreg(b,d))}")
        rs = [f"v_mfma_f32_16x16x32_bf16 {vq(L0+4*b)}, {vq(ONES)}, {vq(Preg(par,b))}, {vq(L0+4*b)}" for b in qb]
        RSD = P.get("RSD", 9 if nq == 4 else 9)
        rs_pos = NQ + RSD*nq
        mf = mf + pv[:RSD*nq] + rs + pv[RSD*nq:]
        return dict(kind=kind, tm4=tm4, par=par, qb=qb, nq=nq, NQ=NQ, mf=mf, RSD=RSD, rs_pos=rs_pos, n=len(mf), P=P)

    def step_streams(self, sp, base, F, name, last_in_body):
        kind, tm4, par, qb, nq, NQ, RSD, rs_pos, n, P = (sp[k] for k in ("kind","tm4","par","qb","nq","NQ","RSD","rs_pos","n","P"))
        nrs = len(qb)
        def G(a): return F(base + a)
        def pv(d): return NQ + d*nq + (nrs if d >= RSD else 0)
        LEAD = P.get("LEAD", 7)
        BG = P.get("BG", NQ - 2)
        KW = P.get("KW", 5)
        pair = P.get("pair", nq == 2)
        kslot = tm4; knext = (tm4 + 1) % 4; vslot = (tm4 + 3) % 4
        end = G(n - 1)
        ks = []
        for f in range(4, 12):
            use = f*nq
            if pair and f % 2 == 1: use = (f-1)*nq
            lo = G((f-8)*nq + nq - 1) if f >= 8 else G(0) - (1 if base > 0 else 0)
            lo = max(lo, G(0))
            hi = min(G(use) - LEAD, G(BG) - KW)
            ks.append(Item(self.kread(f, kslot), "D", lo, max(hi, lo)))
        vs = []
        for d in range(12):
            use = pv(d)
            if pair and d % 2 == 1: use = pv(d-1)
            prev = 4 + d
            free = (prev*nq + nq - 1) if prev < 12 else pv(prev - 12) + nq - 1
            lo = G(free); hi = max(G(use) - LEAD, lo)
            vs.append(Item(self.vread(d, 0, vslot), "T", lo, hi)); vs.append(Item(self.vread(d, 1, vslot), "T", lo, hi))
        kn = []
        for f in range(4):
            lo = max(G(pv(f + 4) + nq - 1), G(BG) + 1)
            hi = end if nq == 4 else min(end, end - LEAD + 2*(f - f % 2) + 2)
            kn.append(Item(self.kread(f, knext), "D", lo, max(lo, hi)))
        sm = []; ti = 0
        for k in range(2):
            pend = None
            for bi, b in enumerate(qb):
                ready = G((6*k + 5)*nq + bi) + 4
                hi = G(rs_pos) - 2
                for h in range(2):
                    s = Sreg(k, b) + 2*h
                    t0 = TMP + (ti % 4)*2; ti += 1
                    sm.append(Item(f"v_exp_f32 v{t0}, v{s}", "E", ready, hi))
                    if pend: sm.append(pend)
                    sm.append(Item(f"v_exp_f32 v{t0+1}, v{s+1}", "E", ready, hi))
                    pend = Item(f"v_cvt_pk_bf16_f32 v{Preg(par,b)+2*k+h}, v{t0}, v{t0+1}", "V", ready, hi)
            pend.sep = 1; sm.append(pend)
        ck = []
        cg = G(rs_pos + nrs - 1) + 4
        lr = [L0 + 4*b for b in qb]
        chi = max(cg + 1, end - 2)
        if nq == 4:
            ck.append(Item(f"v_max3_f32 v{vT0}, v{lr[0]}, v{lr[1]}, v{lr[2]}", "V", cg, chi))
            ck.append(Item(f"v_max_f32 v{vT0}, v{vT0}, v{lr[3]}", "V", cg, chi))
        else:
            ck.append(Item(f"v_max_f32 v{vT0}, v{lr[0]}, v{lr[1]}", "V", cg, chi))
        ck.append(Item(f"v_cmp_nge_f32 s[{sCMP}:{sCMP+1}], s{sTHR}, v{vT0}", "V", cg, chi))
        b0 = G(BG) - 1
        sKO, sVO_ = (62, 63) if par == 0 else (6, 7)
        sc = [Item(f"s_mov_b32 s{sR0}, s{sR1}", "S", G(0), b0), Item(f"s_mov_b32 s{sR1}, s{sR2}", "S", G(0), b0),
              Item(f"s_mov_b32 s{sR2}, s{sR3}", "S", G(0), b0), Item(f"s_mov_b32 s{sR3}, s{sR4}", "S", G(0), b0),
              Item(f"s_add_u32 s{sD}, s{sT}, 4", "S", G(0), b0),
              Item(f"v_readlane_b32 s{sR4}, v{vSEQ}, s{sD}", "V", G(0), b0 - 4, sep=1),
              Item(f"s_mul_i32 s{sVO_}, s{sR2}, {TILE}", "S", G(0), b0, sep=1), Item(f"s_add_u32 s{sVO_}, s{sVO_}, s{sWP}", "S", G(0), b0),
              Item(f"s_mul_i32 s{sKO}, s{sR4}, {TILE}", "S", G(0), b0, sep=2), Item(f"s_add_u32 s{sKO}, s{sKO}, s{sWP}", "S", G(0), b0),
              Item(f"s_add_u32 s{sT}, s{sT}, 1", "S", G(0), end - 2)]
        initA = (name == "P1K0s0")
        if kind == "p1":
            sc.append(Item(f"s_max_u32 s{sD}, s{sR0}, s{sR1}", "S", G(0), end - 1))
            sc.append(Item([f"s_cmp_ge_u32 s{sD}, s{sDA}", f"s_cselect_b64 s[{sFLAG}:{sFLAG+1}], -1, 0"], "S", G(0), end - 1))
            if initA: sc.append(Item([f"s_cmp_eq_u32 s{sT}, 5", f"s_cselect_b64 s[{sFLAG}:{sFLAG+1}], -1, s[{sFLAG}:{sFLAG+1}]"], "S", G(0), end - 1))
        else:
            sc.append(Item(f"s_max_u32 s{sD}, s{sR0}, s{sR1}", "S", G(0), end - 1))
            sc.append(Item([f"s_cmp_ge_u32 s{sD}, s{sDB}", f"s_cselect_b64 s[{sFLAG}:{sFLAG+1}], -1, 0"], "S", G(0), end - 1))
        R = []
        g0 = G(BG) + 1
        for j in range(3):
            R.append((f"s_add_u32 m0, s{sKM0}, {kslot*TILE}", f"buffer_load_dwordx4 v{vDV+j}, s[{sK}:{sK+3}], s{sKO} offen offset:{1024*j} {self.P.get('rf','')} lds", ("R", name)))
        vdst = (tm4 + 2) % 4
        for j in range(3):
            R.append((f"s_add_u32 m0, s{sVM0}, {vdst*TILE}", f"buffer_load_dwordx4 v{vDV+j}, s[{sV}:{sV+3}], s{sVO_} offen offset:{1024*j} {self.P.get('sf','') if name == 'P2N0s0' else self.P.get('rf','')} lds", ("R", name)))
        fixed = {G(BG): [f"NEEDV R:{name}", "NEED " + " ".join(f"v{pool(11)+r}" for r in range(4)), "s_barrier"]}
        stub = f"{name}_SLOW"
        tail = [f"s_or_b64 vcc, s[{sCMP}:{sCMP+1}], s[{sFLAG}:{sFLAG+1}]", f"s_cbranch_vccnz {stub}", f"{stub}B:"]
        self.ool.append([f"{stub}:",
                         f"  s_cmp_eq_u64 s[{sCMP}:{sCMP+1}], 0", f"  s_cbranch_scc1 {stub}_M",
                         f"  s_call_b64 s[{sRET}:{sRET+1}], RARE_{kind}_{par}",
                         f"{stub}_M:"] +
                        ([f"  s_cmp_eq_u32 s{sT}, 5", f"  s_cbranch_scc0 {stub}_N", f"  s_call_b64 s[{sRET}:{sRET+1}], INIT_A", f"{stub}_N:"] if initA else []) +
                        [f"  s_call_b64 s[{sRET}:{sRET+1}], MASK_{kind}",
                         f"  s_branch {stub}B"])
        waits = []
        for f in range(12):
            if not (pair and f % 2 == 1) and (base + f*nq) > 0: waits.append(G(f*nq) - 1)
        for d in range(12):
            if not (pair and d % 2 == 1): waits.append(G(pv(d)) - 1)
        extra = {}
        if pair:
            for f in range(0, 12, 2): extra[G(f*nq)] = [f"v{pool(f+1)+r}" for r in range(4)]
            for d in range(0, 12, 2): extra[G(pv(d))] = [f"v{pool(12+d+1)+r}" for r in range(4)]
        return dict(streams=[ks, vs, kn, sm, ck, sc], R=R, Rwin=(g0, end), fixed=fixed, tail=(end, tail), waits=waits, extra=extra, BG=G(BG))

    def body(self, kind, gt, H):
        name = f"{kind.upper()}{gt or 'N'}{H}"
        tms = ([0, 1] if H == 0 else [2, 3]) if kind == "p1" else [0, 1, 2, 3]
        if gt is None: tms = [1, 2] if H == 0 else [3]
        sps = [self.step_parts(kind, t) for t in tms]
        att = []; bases = []
        for sp in sps: bases.append(len(att)); att += sp["mf"]
        nA = len(att)
        PG = self.P.get("g", {})
        gm = []
        if gt:
            for j in range(24):
                g, x = divmod(j, 4)
                if gt == "K":
                    cp, T = divmod(g, 3); cc, sg = divmod(x, 2)
                    c = "0" if (T == 0 and sg == 0) else vq(GD + 4*cc)
                    gm.append(f"v_mfma_f32_16x16x32_bf16 {vq(GD+4*cc)}, {vq(GQ+4*(2*T+sg))}, {vq(GF+4*(j&1))}, {c}")
                else:
                    gg = 6*H + g; jb, cp = divmod(gg, 4)
                    c = "0" if cp == 0 else vq(ACC + 4*x)
                    gm.append(f"v_mfma_f32_16x16x32_bf16 {vq(ACC+4*x)}, {vq(GF+4*(j&1))}, {vq(GB+4*(g&1))}, {c}")
            a0 = PG.get("a0", 14); a1 = nA - PG.get("aend", 14)
            ins = [a0 + int(round(j*(a1 - a0)/23.0)) for j in range(24)]
            pos = PG.get("pos_" + kind)
            if pos:
                per = 24 // len(sps); nst = nA // len(sps)
                ins = [si*nst + pos[k] for si in range(len(sps)) for k in range(per)]
                ins = sorted(min(max(x, a0), a1) for x in ins)
                for k in range(1, 24):
                    if ins[k] <= ins[k-1]: ins[k] = ins[k-1] + 1
        else:
            ins = []
        mf = []; Fmap = {}; gpos = []
        jj = 0
        for a in range(nA):
            while jj < len(ins) and ins[jj] == a:
                gpos.append(len(mf)); mf.append(gm[jj]); jj += 1
            Fmap[a] = len(mf); mf.append(att[a])
        n = len(mf)
        F = lambda a: Fmap[a]
        streams = []; fixed = {}; busy = [0]*n; extra = {}; vmlist = []; tails = []
        for si, sp in enumerate(sps):
            r = self.step_streams(sp, bases[si], F, f"{name}s{si}", si == len(sps)-1)
            streams += r["streams"]
            for g, v in r["fixed"].items(): fixed.setdefault(g, []).extend(v)
            for g in r["waits"]: busy[g] += 1
            extra.update(r["extra"])
            lo, hi = r["Rwin"]
            if self.P.get("rspill", 1) and si + 1 < len(sps):
                spn = sps[si + 1]
                hi = F(bases[si + 1] + spn["P"].get("BG", spn["NQ"] - 2)) - 2 - self.P.get("rspill_margin", 0)
            nR = len(r["R"])
            for k, (m0, dma, tag) in enumerate(r["R"]):
                tgt = lo + (k + 0.5)*(hi - lo)/nR
                vmlist.append((tgt, lo, hi, m0, dma, tag, None))
            tails.append(r["tail"])
            if gt is None and self.P.get("mkt", 0) and (H == 1 or si >= 0):
                nt_ = self.P.get("mkt_n", {"0_0": 1, "0_1": 1, "1_0": 1}).get(f"{H}_{si}", 0)
                for k in range(nt_):
                    vmlist.append((hi - 0.05 + 0.01*k, lo, hi, f"s_mov_b32 m0, {DUMMY}", f"buffer_load_dword v{vTCH}, s[{sO}:{sO+3}], s{sB} offen {self.P.get('mkf','')} lds", ("X", name), None))
                    vmlist.append((hi - 0.045 + 0.01*k, lo, hi, None, None, None, f"s_add_u32 s{sB}, s{sB}, 8192"))
            if gt is None and H == 0 and si == 0:
                for k in range(6):
                    m0, so, dma = self.qa_dma(6 + k)
                    vmlist.append((hi - 0.9 + 0.1*k, lo, hi, [m0, so], dma, ("Q", name), None))
        LG = PG.get("LEAD", 7)
        if gt:
            gr = []
            GW = []
            for g in range(6):
                w = gpos[4*g] - LG - 3
                GW.append(w)
                fixed.setdefault(w, []).append(f"NEEDV G:{g}")
            for j in range(24):
                g, x = divmod(j, 4); slot = g % 3
                lo = (gpos[j-2] if j >= 2 else 0)
                if x < 2: lo = max(lo, GW[g])
                hi = max(gpos[j] - LG, lo + (1 if gt == "V" else 0))
                if gt == "K":
                    cc, sg = divmod(x, 2)
                    gr.append(Item(f"ds_read_b128 {vq(GF+4*(j&1))}, v{vKG+sg} offset:{slot*4096 + cc*2048}", "D", lo + (1 if x < 2 and lo == GW[g] else 0), hi))
                else:
                    r0 = GF + 4*(j&1)
                    l2 = lo + (1 if x < 2 and lo == GW[g] else 0)
                    gr.append(Item(f"ds_read_b64_tr_b16 v[{r0}:{r0+1}], v{vVG+x} offset:{slot*4096}", "T", l2, max(hi, l2)))
                    gr.append(Item(f"ds_read_b64_tr_b16 v[{r0+2}:{r0+3}], v{vVG+x} offset:{slot*4096+512}", "T", l2, max(hi, l2)))
                busy[gpos[j] - 1] += 1
            streams.append(gr)
            ix = []
            prevB = -1
            win = None
            if kind == "p1" and self.P.get("touch", 1):
                g0 = self.P.get("win_g0", 2)
                w0 = gpos[4*g0 - 1] + 1 + self.P.get("win_gs", 13)
                win = (w0, w0 + self.P.get("win_w", 64))
                vmlist.append((w0 + 0.1, w0, w0 + 1, f"s_mov_b32 m0, {DUMMY}", f"buffer_load_dword v{vTCH}, s[{sTS}:{sTS+3}], s{sTOFF} offen lds", ("X", name), None))
                vmlist.append((w0 + 0.2, w0, w0 + 2, None, f"buffer_load_dword v{vTCH}, s[{sMVS}:{sMVS+3}], s{sTOF2} offen lds", ("X", name), None))
                vmlist.append((w0 + 0.3, w0, win[1], None, None, None, f"s_add_u32 s{sTOFF}, s{sTOFF}, 49152"))
                vmlist.append((w0 + 0.4, w0, win[1], None, None, None, [f"s_add_u32 s{sTOF2}, s{sTOF2}, 32768", f"s_cmp_gt_u32 s{sB}, 5", f"s_cselect_b32 s{sTOF2}, 0x40000000, s{sTOF2}"]))
                nv = []
                for e in vmlist:
                    tgt, lo, hi, m0, dma, tag, sal = e
                    if tag and tag[0] == "R":
                        if lo <= win[0]: hi = min(hi, win[0] - 1);
                        else: lo = max(lo, win[1] + 1)
                        e = (tgt, lo, hi, m0, dma, tag, sal)
                    nv.append(e)
                vmlist = nv
                byw = {}
                for e in vmlist:
                    if e[5] and e[5][0] == "R": byw.setdefault(e[5][1], []).append(e)
                nv = []
                for e in vmlist:
                    if e[5] and e[5][0] == "R":
                        grp = byw[e[5][1]]; k = grp.index(e)
                        e = (e[1] + (k + 0.5)*(e[2] - e[1])/len(grp),) + e[1:]
                    elif e[6] and isinstance(e[6], str) and "s34, s34" in e[6].replace(f"s{sKOFF}", "s34"):
                        lo_, hi_ = e[1], e[2]
                        if lo_ <= win[0]: e = (win[0] - 0.5, lo_, hi_) + e[3:]
                    nv.append(e)
                vmlist = nv
            for g in range(6):
                gi = g + 2
                A_ = (gpos[4*g - 1] + 1) if g > 0 else 1
                if win and A_ > win[0] - self.P.get("win_gs", 13) + 1: A_ = max(A_, win[1] + 1 + (prevB + 1 - win[1] - 1 if prevB > win[1] else 0))
                if gt == "K":
                    cpi, Ti = divmod(gi, 3)
                    newidx = (Ti == 0); qoff = cpi*128
                else:
                    ggi = 6*H + gi
                    ji, cpi = divmod(ggi, 4); newidx = True; qoff = cpi*128
                so = ["0", f"s{sT1}", f"s{sT2}"][Ti] if gt == "K" else f"s{sVT+ji}"
                if newidx:
                    ilo = prevB + 1
                    if gt == "V" and cpi == 0:
                        ix.append(Item(f"v_add_u32 v{vIA}, s{sVI+ji}, v{vIA}", "V", ilo, ilo + 2)); ilo += 1
                    A_ = max(A_, ilo + PG.get("ILEAD", 6))
                    for p in range(4):
                        ix.append(Item(f"ds_read_b32 v{PAIR+2*p}, v{vIA} offset:{qoff + 32*p}", "I", ilo, A_ - PG.get("ILEAD", 6) + 1))
                B_ = min(A_ + PG.get("GSPAN", 20), n - 1)
                if win and A_ <= win[0]: B_ = min(B_, win[0] - 1)
                for p in range(4):
                    tgt = A_ + 1 + p*(B_ - A_ - 1)/4.0
                    vmlist.append((tgt, A_, B_, f"s_add_u32 m0, s{sGM0}, {(gi % 3)*4096 + p*1024}",
                                   f"buffer_load_dwordx4 v[{PAIR+2*p}:{PAIR+2*p+1}], s[{sG}:{sG+3}], {so} idxen offen {self.P.get('gf','')} lds", ("G", gi), None))
                prevB = B_
            adv = 256 if gt == "K" else 0
            if adv: ix.append(Item(f"v_add_u32 v{vIA}, {adv}, v{vIA}", "V", ix[-1].hi, n - 1, sep=1))
            streams.append(ix)
            if gt == "K":
                se = []
                for cp in range(2):
                    g = 3*cp + 2; u = 2*H + cp
                    for cc in range(2):
                        j = 4*g + 2*cc + 1
                        lo = gpos[j] + 4
                        hi = (gpos[4*(g+1) + 2*cc] - 1) if g < 5 else n - 1
                        se.append(Item(f"v_cndmask_b32 v{GX+cc}, v{GX+cc}, v{GD+4*cc+2*cc}, s[{sSEL+4*u}:{sSEL+4*u+1}]", "V", lo, hi))
                        se.append(Item(f"v_cndmask_b32 v{GX+cc}, v{GX+cc}, v{GD+4*cc+2*cc+1}, s[{sSEL+4*u+2}:{sSEL+4*u+3}]", "V", lo, hi))
                streams.append(se)
            else:
                bs = []
                for g in range(6):
                    gg = 6*H + g; jb, cp = divmod(gg, 4)
                    lo = gpos[4*(g-2) + 3] if g >= 2 else 0
                    hi = max(gpos[4*g] - LG, lo)
                    bs.append(Item(f"ds_read_b128 {vq(GB+4*(g&1))}, v{vPB+cp}", "D", lo, hi))
                    bs.append(Item(f"v_add_u32 v{vPB+cp}, s{sVP+jb+1}, v{vPB+cp}", "V", lo, min(hi + 12, n - 1)))
                streams.append(bs)
                st = []
                for g in range(6):
                    gg = 6*H + g; jb, cp = divmod(gg, 4)
                    if cp != 3: continue
                    for x in range(4):
                        lo = gpos[4*g + x] + 4
                        hi = (gpos[4*(g+1) + x] - 1) if g < 5 else n - 3
                        st.append(Item(f"v_cvt_pk_bf16_f32 v{OUTT+2*x}, v{ACC+4*x}, v{ACC+4*x+1}", "V", lo, hi))
                        st.append(Item(f"v_cvt_pk_bf16_f32 v{OUTT+2*x+1}, v{ACC+4*x+2}, v{ACC+4*x+3}", "V", lo, hi))
                        if x == 1 or x == 3:
                            k = x >> 1
                            st.append(Item(f"buffer_store_dwordx4 {vq(OUTT+4*k)}, v{vLIN}, s[{sW}:{sW+3}], s{sVO+jb} offen offset:{k*1024} {self.P.get('omf','')}", "G",
                                           lo, (hi + 8 if g < 5 else n - 1), sep=1, tag=("S", jb)))
                streams.append(st)
        vmlist.sort(key=lambda x: x[0])
        vm = []
        for tgt, lo, hi, m0, dma, tag, sal in vmlist:
            if sal: vm.append(Item(sal, "S", lo, n - 1)); continue
            if m0:
                vm.append(Item(m0, "S", max(lo - 1, 0), hi - 1, sep=0))
                vm.append(Item(dma, "M", lo, hi, sep=1, tag=tag))
            else:
                vm.append(Item(dma, "M", lo, hi, tag=tag))
        streams.append(vm)
        for g, v in fixed.items():
            busy[g] += len([x for x in v if not x.endswith(":") and not x.startswith("NEED ")])
        for e, tl in tails: busy[e] += 0
        items = optimize(n, streams, busy1=busy, name=name, seed=self.P.get("seed", 1), iters=self.P.get("iters", 150000),
                         mspace=self.P.get("mspace", 4), ldsw=self.P.get("ldsw", 1.0))
        for e, tl in tails: fixed.setdefault(e, [])
        seq = emit(mf, items, fixed)
        seq2 = []; mi = -1; tl = {e: t for e, t in tails}; pend = None
        for cls, line, tag in seq:
            if cls == "M" and line.startswith("v_mfma"):
                if pend: seq2 += [("F", l, None) for l in pend]; pend = None
                mi += 1
                if mi in tl: pend = tl[mi]
            seq2.append((cls, line, tag))
        if pend: seq2 += [("F", l, None) for l in pend]
        self.bodies[name] = dict(seq=seq2, extra=extra, kind=kind, gt=gt, H=H, nsteps=len(sps), name=name)
        return name

    def resolve_vm(self, name, preds):
        B = self.bodies[name]
        tr = vm_trace(B["seq"])
        nst = B["nsteps"]
        res = []
        for pos, (k, v) in enumerate(tr):
            if k != "mark": continue
            typ, arg = v.split(":")
            best = None
            for ptr in preds:
                full = ptr + tr[:pos]
                ops = [t for kk, t in full if kk == "op"]
                npre = len([1 for kk, t in ptr if kk == "op"])
                if typ == "G":
                    g = int(arg)
                    idxs = [i for i, t in enumerate(ops) if t and t[0] == "G" and ((i >= npre and t[1] == g and g >= 2) or (i < npre and g < 2 and t[1] == g + 6))]
                    if g < 2 and not idxs: N = 0; best = N if best is None else min(best, N); continue
                    last = max(idxs)
                else:
                    si = int(arg[-1])
                    rn = [(i, t[1]) for i, t in enumerate(ops) if t and t[0] == "R"]
                    order = []
                    for i, nm in rn:
                        key = (nm, i < npre)
                        if not order or order[-1][0] != key: order.append([key, i])
                        else: order[-1][1] = i
                    prior = [o for o in order if not (o[0][1] is False and int(o[0][0][-1]) >= si)]
                    if len(prior) < 2: N = 0; best = N if best is None else min(best, N); continue
                    last = prior[-2][1]
                N = len(ops) - 1 - last
                best = N if best is None else min(best, N)
            res.append(min(best, 63))
        return res

    def emit_body(self, name, preds):
        B = self.bodies[name]
        vmN = self.resolve_vm(name, preds)
        init = [[f"v{pool(f)+r}" for r in range(4)] for f in range(4)]
        lines, q = finalize(B["seq"], initial=init, extra=B["extra"], vmN=vmN)
        lines = fix_hazards(lines)
        ab = self.ab.split(",")
        if "nobar" in ab: lines = [l for l in lines if l.strip() != "s_barrier"]
        if "novm" in ab: lines = [l for l in lines if "vmcnt" not in l]
        if "nog" in ab: lines = [l for l in lines if "idxen" not in l]
        if "nor" in ab: lines = [l for l in lines if not (" lds" in l and "idxen" not in l)]
        if "nost" in ab: lines = [l for l in lines if "buffer_store" not in l]
        if "nolgkm" in ab: lines = [l for l in lines if "lgkmcnt" not in l]
        if "halfbar" in ab:
            out = []; k = 0
            for l in lines:
                if l.strip() == "s_barrier":
                    k += 1
                    if k % 2 == 1: continue
                out.append(l)
            lines = out
        if "nom0" in ab: lines = [l for l in lines if "m0," not in l]
        if "noI" in ab: lines = [l for l in lines if "ds_read_b32" not in l]
        if "noexp" in ab: lines = [l for l in lines if not l.strip().startswith("v_exp")]
        if "noval" in ab: lines = [l for l in lines if not (l.strip().startswith("v_") and not l.strip().startswith("v_mfma"))]
        if "nosal" in ab: lines = [l for l in lines if not (l.strip().startswith("s_add") or l.strip().startswith("s_cmp_ge") or l.strip().startswith("s_cselect")) or "s32" in l or "s66" in l or "s35" in l]
        if "nods" in ab: lines = [l for l in lines if not l.strip().startswith("ds_read")]
        if "nogds" in ab: lines = [l for l in lines if not (l.strip().startswith("ds_read") and any(f"v{r}" in l.split(",")[0] or f"v[{r}:" in l.split(",")[0] for r in list(range(PAIR, 256))))]
        if self.ab: lines = [l for l in lines if not l.strip().startswith("s_or_b64 vcc")]
        if self.ab: lines = [l.replace("s_cbranch_vccnz", "s_cbranch_scc1 ").replace("scc1  ", "scc1 ") if False else l for l in lines]
        if self.ab:
            out = []
            for l in lines:
                if l.strip().startswith("s_cbranch_vccnz"):
                    out.append(f"  s_mov_b64 vcc, s[{sFLAG}:{sFLAG+1}]"); out.append(l)
                else: out.append(l)
            lines = out
        print(f"[{name}] vmN={vmN}")
        return lines

    def rowmax(self, L, b, dst, tmp):
        s0, s1 = Sreg(0, b), Sreg(1, b)
        L.append(f"  v_max3_f32 v{dst}, v{s0}, v{s0+1}, v{s0+2}")
        L.append(f"  v_max3_f32 v{dst}, v{dst}, v{s0+3}, v{s1}")
        L.append(f"  v_max3_f32 v{dst}, v{dst}, v{s1+1}, v{s1+2}")
        L.append(f"  v_max_f32 v{dst}, v{dst}, v{s1+3}")
        L.append(f"  v_mov_b32 v{tmp}, v{dst}\n  s_nop 1\n  v_permlane16_swap_b32 v{dst}, v{tmp}\n  s_nop 1\n  v_max_f32 v{dst}, v{dst}, v{tmp}")
        L.append(f"  v_mov_b32 v{tmp}, v{dst}\n  s_nop 1\n  v_permlane32_swap_b32 v{dst}, v{tmp}\n  s_nop 1\n  v_max_f32 v{dst}, v{dst}, v{tmp}")
    def expcvt(self, L, b, par):
        for k in range(2):
            for h in range(2):
                s = Sreg(k, b) + 2*h
                L.append(f"  v_exp_f32 v{TMP}, v{s}\n  v_exp_f32 v{TMP+1}, v{s+1}\n  s_nop 0")
                L.append(f"  v_cvt_pk_bf16_f32 v{Preg(par,b)+2*k+h}, v{TMP}, v{TMP+1}")
    def routines(self):
        for kind in ("p1", "p2"):
            mb = [0, 1] if kind == "p1" else [2, 3]
            diag = sDA if kind == "p1" else sDB
            L = [f"MASK_{kind}:"]
            L.append(f"  s_sub_i32 s{sD}, s{sR1}, s{diag}\n  s_sub_i32 s{sD}, s{sD}, s{sWAVE}\n  s_lshl_b32 s{sD}, s{sD}, 5")
            L.append(f"  v_subrev_u32 v{TMP+7}, s{sD}, v{vX}")
            for kp in range(2):
                for bi, b in enumerate(mb):
                    for r in range(4):
                        L.append(f"  v_cmp_le_i32 s[{sMASK+2*r}:{sMASK+2*r+1}], {16*(kp-bi) + r}, v{TMP+7}")
                    dst = (NEGM + 4*b) if kp == 0 else (NEGM1 + 4*bi)
                    for r in range(4):
                        L.append(f"  v_cndmask_b32 v{dst+r}, v{vNINF}, v{MNEG+b}, s[{sMASK+2*r}:{sMASK+2*r+1}]")
            L.append(f"  s_nop 0\n  s_setpc_b64 s[{sRET}:{sRET+1}]")
            self.ool.append(L)
            qb = [0, 1, 2, 3] if kind == "p1" else [2, 3]
            for par in range(2):
                L = [f"RARE_{kind}_{par}:", "  s_nop 7\n  s_nop 7"]
                dl, al, t6, t7 = TMP+4, TMP+5, TMP+6, TMP+7
                for b in qb:
                    self.rowmax(L, b, dl, t6)
                    L.append(f"  v_ceil_f32 v{dl}, v{dl}")
                    L.append(f"  v_frexp_exp_i32_f32 v{t6}, v{L0+4*b}\n  v_add_u32 v{t6}, -12, v{t6}\n  v_cvt_f32_i32 v{t6}, v{t6}")
                    L.append(f"  v_max3_f32 v{dl}, v{dl}, v{t6}, 0")
                    L.append(f"  v_cvt_i32_f32 v{t6}, v{dl}\n  v_sub_u32 v{t6}, 0, v{t6}\n  v_ldexp_f32 v{al}, 1.0, v{t6}")
                    for k in range(2):
                        for r in range(4): L.append(f"  v_sub_f32 v{Sreg(k,b)+r}, v{Sreg(k,b)+r}, v{dl}")
                    for r in range(4): L.append(f"  v_sub_f32 v{NEGM+4*b+r}, v{NEGM+4*b+r}, v{dl}")
                    if b in mb:
                        for r in range(4): L.append(f"  v_sub_f32 v{NEGM1+4*mb.index(b)+r}, v{NEGM1+4*mb.index(b)+r}, v{dl}")
                    L.append(f"  v_sub_f32 v{MNEG+b}, v{MNEG+b}, v{dl}")
                    for d in range(12):
                        for r in range(4):
                            a = Oreg(b, d) + r
                            L.append(f"  v_accvgpr_read_b32 v{t6}, a{a}\n  s_nop 0\n  v_mul_f32 v{t6}, v{t6}, v{al}\n  s_nop 0\n  v_accvgpr_write_b32 a{a}, v{t6}")
                    self.expcvt(L, b, par)
                    L.append("  s_nop 1")
                    L.append(f"  v_mfma_f32_16x16x32_bf16 {vq(TMP)}, {vq(ONES)}, {vq(Preg(par,b))}, 0")
                    L.append("  s_nop 7\n  s_nop 1")
                    L.append(f"  v_mov_b32 v{t7}, 0x203\n  v_cmp_class_f32 vcc, v{L0+4*b}, v{t7}\n  v_mov_b32 v{t7}, 0x42800000\n  v_cmp_ge_f32 s[{sMASK}:{sMASK+1}], v{dl}, v{t7}\n  v_mul_f32 v{t6}, v{L0+4*b}, v{al}\n  s_nop 3\n  s_or_b64 vcc, vcc, s[{sMASK}:{sMASK+1}]\n  s_nop 1")
                    L.append(f"  v_cndmask_b32 v{t6}, v{t6}, v{TMP}, vcc")
                    for r in range(4): L.append(f"  v_mov_b32 v{L0+4*b+r}, v{t6}")
                L.append(f"  s_nop 3\n  s_setpc_b64 s[{sRET}:{sRET+1}]")
                self.ool.append(L)
        L = ["INIT_A:", "  s_nop 7\n  s_nop 7"]
        for b in (0, 1):
            dl, t6 = TMP+4, TMP+6
            self.rowmax(L, b, dl, t6)
            L.append(f"  v_ceil_f32 v{dl}, v{dl}")
            for k in range(2):
                for r in range(4): L.append(f"  v_sub_f32 v{Sreg(k,b)+r}, v{Sreg(k,b)+r}, v{dl}")
            L.append(f"  v_sub_f32 v{MNEG+b}, v{MNEG+b}, v{dl}")
            self.expcvt(L, b, 0)
            L.append("  s_nop 1")
            L.append(f"  v_mfma_f32_16x16x32_bf16 {vq(L0+4*b)}, {vq(ONES)}, {vq(Preg(0,b))}, 0")
        L.append(f"  s_nop 7\n  s_setpc_b64 s[{sRET}:{sRET+1}]")
        self.ool.append(L)
        def blk(k):
            k = min(k, 11)
            if self.P.get("vfull", 0) == 1: return (k // 4, k % 4)
            if self.P.get("vfull", 0) == 2: return [(0,0),(0,1),(0,2),(0,3),(1,0),(1,1),(2,0),(2,1),(1,2),(1,3),(2,2),(2,3)][k]
            h = k // 6; r = k % 6
            return (r >> 1, 2*h + (r & 1))
        for m in range(4):
            L = [f"VSET_{m}:"]
            for j in range(4): L.append(f"  s_mov_b32 s{sVT+j}, {blk(3*m+j)[0]*128}")
            for j in range(1, 4):
                dg = blk(3*m+j)[1] - blk(3*m+j-1)[1]
                L.append(f"  s_mov_b32 s{sVI+j}, {dg*512}\n  s_mov_b32 s{sVP+j}, {dg*256}")
            for j in range(3):
                T, gm = blk(3*m+j)
                base = sROWA if gm < 2 else sROWB
                L.append(f"  s_add_u32 s{sVO+j}, s{base}, {(gm & 1)*6144 + T*2048}")
            L.append(f"  s_setpc_b64 s[{sRET}:{sRET+1}]")
            self.ool.append(L)
        def cpq(gm):
            L = []
            for s in range(6):
                op = Qop(gm, s); base = int(op[2:op.index(':')])
                for r in range(4):
                    if op[0] == 'a': L.append(f"  v_accvgpr_read_b32 v{GQ+4*s+r}, a{base+r}")
                    else: L.append(f"  v_mov_b32 v{GQ+4*s+r}, v{base+r}")
            return L
        self.ool.append(["CPQ_0:"] + cpq(0) + [f"  s_nop 1\n  s_setpc_b64 s[{sRET}:{sRET+1}]"])
        for gm in range(4):
            fill = cpq(gm + 1) if gm < 3 else []
            def F(k=1):
                out = []
                for _ in range(k): out.append(fill.pop(0) if fill else "  s_nop 0")
                return out
            a, b, t0, t1 = GX, GX+1, TMP, TMP+1
            ctr = ["quad_perm:[1,0,3,2]", "quad_perm:[2,3,0,1]", "row_half_mirror"]
            L = [f"KEND_{gm}:"]
            L += F(2)
            L += [f"  v_mov_b32 v{t0}, v{a}", f"  v_mov_b32 v{t1}, v{b}"] + F(1)
            for c in ctr:
                L += [f"  v_max_f32_dpp v{t0}, v{t0}, v{t0} {c} row_mask:0xf bank_mask:0xf", f"  v_max_f32_dpp v{t1}, v{t1}, v{t1} {c} row_mask:0xf bank_mask:0xf"] + F(1)
            L += [f"  v_sub_f32 v{a}, v{a}, v{t0}", f"  v_sub_f32 v{b}, v{b}, v{t1}", f"  v_exp_f32 v{a}, v{a}", f"  v_exp_f32 v{b}, v{b}"] + F(1)
            L += [f"  v_mov_b32 v{t0}, v{a}", f"  v_mov_b32 v{t1}, v{b}"] + F(1)
            for c in ctr:
                L += [f"  v_add_f32_dpp v{t0}, v{t0}, v{t0} {c} row_mask:0xf bank_mask:0xf", f"  v_add_f32_dpp v{t1}, v{t1}, v{t1} {c} row_mask:0xf bank_mask:0xf"] + F(1)
            L += [f"  v_rcp_f32 v{t0}, v{t0}", f"  v_rcp_f32 v{t1}, v{t1}"] + F(1)
            L += [f"  v_mul_f32 v{t0}, s{sGG}, v{t0}", f"  v_mul_f32 v{t1}, s{sGG}, v{t1}", f"  v_mul_f32 v{a}, v{a}, v{t0}", f"  v_mul_f32 v{b}, v{b}, v{t1}",
                  f"  v_cvt_pk_bf16_f32 v{a}, v{a}, v{b}"] + F(1)
            L += [f"  ds_write_b16 v{vPW}, v{a} offset:{gm*256}", f"  ds_write_b16_d16_hi v{vPW}, v{a} offset:{gm*256+32}"]
            L += fill
            L += [f"  s_nop 1\n  s_setpc_b64 s[{sRET}:{sRET+1}]"]
            self.ool.append(L)

    def prologue(self):
        A = self.A
        A(f".globl {KNAME}\n.p2align 8\n.type {KNAME},@function\n{KNAME}:")
        A("  s_cmp_ge_u32 s2, 256\n  s_cbranch_scc1 AT_END")
        if self.instr: A("  s_memrealtime s[100:101]\n  s_memtime s[98:99]\n  s_waitcnt lgkmcnt(0)\n  v_mov_b32 v254, s98\n  v_mov_b32 v253, s100")
        A("  s_load_dwordx4 s[4:7], s[0:1], 0         ; q, k")
        A("  s_load_dwordx2 s[42:43], s[0:1], 16      ; v")
        A(f"  s_load_dwordx4 s[{sMK}:{sMK+3}], s[0:1], 24")
        A("  s_load_dwordx4 s[44:47], s[0:1], 40")
        A("  s_load_dwordx2 s[48:49], s[0:1], 56      ; out")
        A("  s_load_dwordx2 s[72:73], s[0:1], 72      ; ws")
        A(f"  v_and_b32 v1, 63, v0\n  v_lshrrev_b32 v0, 6, v0\n  s_nop 0\n  v_readfirstlane_b32 s{sWAVE}, v0")
        if self.instr:
            A(f"  s_nop 3\n  s_lshl_b32 s100, s{sWAVE}, 8\n  s_add_u32 s100, s100, {STAMPA}\n  v_mov_b32 v252, s100\n  ds_write_b32 v252, v254\n  ds_write_b32 v252, v253 offset:44")
        A(f"  s_and_b32 s3, s2, 7\n  s_lshr_b32 s96, s2, 3\n  s_and_b32 s{sI}, s96, 7\n  s_lshr_b32 s96, s96, 3\n  s_lshl_b32 s3, s3, 2\n  s_add_u32 s{sH}, s3, s96")
        A(f"  s_lshl_b32 s3, s{sI}, 2\n  s_sub_u32 s{sN}, 64, s3\n  s_mov_b32 s{sDA}, s3\n  s_sub_u32 s{sDB}, s{sN}, 4")
        A(f"  s_lshl_b32 s{sB1LAST}, s{sI}, 1\n  s_add_u32 s{sB1LAST}, s{sB1LAST}, 1\n  s_add_u32 s3, s{sI}, s{sH}\n  s_mul_i32 s96, s3, 43\n  s_lshr_b32 s96, s96, 7\n  s_mul_i32 s96, s96, 3\n  s_sub_u32 s3, s3, s96\n  s_add_u32 s3, s3, 12\n  s_add_u32 s96, s{sB1LAST}, 1\n  s_max_u32 s3, s3, s96\n  s_min_u32 s{sEPA}, s3, 15" + (f"\n  s_mov_b32 s{sEPA}, 15" if self.P.get('vfull', 0) == 1 else (f"\n  s_add_u32 s3, s{sI}, s{sH}\n  s_and_b32 s3, s3, 1\n  s_add_u32 s3, s3, 13\n  s_max_u32 s{sEPA}, s3, s{sB1LAST}" if self.P.get('vfull', 0) == 2 else "")))
        A(f"  s_mul_i32 s97, s{sH}, {HEAD}")
        A("  s_waitcnt lgkmcnt(0)")
        def srd(d, b, size=HEAD, sub=0):
            A(f"  s_add_u32 s{d}, s{b}, s97\n  s_addc_u32 s{d+1}, s{b+1}, 0")
            if sub: A(f"  s_sub_u32 s{d}, s{d}, {sub}\n  s_subb_u32 s{d+1}, s{d+1}, 0")
            A(f"  s_and_b32 s{d+1}, s{d+1}, 0xffff\n  s_mov_b32 s{d+2}, {size+sub}\n  s_mov_b32 s{d+3}, 0x20000")
        srd(sG, 4); srd(sK, 6); srd(sV, 42); srd(sO, 48); srd(sW, 72)
        for p in (sMK, sMV):
            A(f"  s_add_u32 s{p}, s{p}, s97\n  s_addc_u32 s{p+1}, s{p+1}, 0")
        A(f"  s_lshl_b32 s3, s{sH}, 16\n  s_add_u32 s{sTS}, s44, s3\n  s_addc_u32 s{sTS+1}, s45, 0\n  s_and_b32 s{sTS+1}, s{sTS+1}, 0xffff\n  s_mov_b32 s{sTS+2}, 65536\n  s_mov_b32 s{sTS+3}, 0x20000")
        A(f"  s_lshl_b32 s3, s{sH}, 1\n  s_and_b32 s96, s3, 0xfffffffc\n  s_add_u32 s46, s46, s96\n  s_addc_u32 s47, s47, 0\n  s_load_dword s96, s[46:47], 0")
        A("  v_lshrrev_b32 v16, 3, v1\n  v_and_b32 v17, 7, v1\n  v_and_b32 v18, 15, v1\n  v_lshrrev_b32 v19, 4, v1")
        for j in range(3):
            A(f"  v_add_u32 v20, {8*j}, v16\n  v_mul_u32_u24 v20, 0xAAAB, v20\n  v_lshrrev_b32 v20, 17, v20\n  v_and_b32 v20, 6, v20")
            A(f"  v_xor_b32 v20, v20, v17\n  v_lshlrev_b32 v20, 4, v20\n  v_lshl_add_u32 v{vDV+j}, v16, 7, v20")
        A(f"  v_lshlrev_b32 v{vLIN}, 4, v1")
        A(f"  s_lshl_b32 s3, s{sI}, 7\n  s_lshl_b32 s4, s{sWAVE}, 5\n  s_add_u32 s{sROWA}, s3, s4\n  s_sub_u32 s5, 1920, s3\n  s_add_u32 s{sROWB}, s5, s4")
        A(f"  s_lshl_b32 s3, s{sWAVE}, 11\n  s_add_u32 s6, s3, {IDX}\n  s_mov_b32 m0, s6\n  s_lshl_b32 s4, s{sROWA}, 5")
        A(f"  buffer_load_dwordx4 v{vLIN}, s[{sTS}:{sTS+3}], s4 offen {self.P.get('qf','')} lds")
        A(f"  s_add_u32 m0, s6, 1024\n  s_lshl_b32 s4, s{sROWB}, 5")
        A(f"  buffer_load_dwordx4 v{vLIN}, s[{sTS}:{sTS+3}], s4 offen {self.P.get('qf','')} lds")
        A(f"  s_mul_i32 s{sROWA}, s{sROWA}, 384\n  s_mul_i32 s{sROWB}, s{sROWB}, 384")
        if self.P.get("codepf", 1):
            A(f"  s_getpc_b64 s[44:45]\nL_CP:\n  s_sub_u32 s44, s44, L_CP-{KNAME}\n  s_subb_u32 s45, s45, 0\n  s_and_b32 s45, s45, 0xffff\n  s_mov_b32 s46, TILETAB-{KNAME}\n  s_mov_b32 s47, 0x20000")
            A(f"  s_lshr_b32 s3, s2, 3\n  s_lshl_b32 s3, s3, 12\n  s_lshl_b32 s5, s{sWAVE}, 10\n  s_add_u32 s3, s3, s5\n  v_and_b32 v20, 7, v1\n  v_lshlrev_b32 v20, 7, v20\n  s_mov_b32 m0, {DUMMY}\n  s_nop 0\n  buffer_load_dword v20, s[44:47], s3 offen lds")
        A(f"  s_getpc_b64 s[98:99]\nL_TT:\n  s_add_u32 s98, s98, TILETAB-L_TT\n  s_addc_u32 s99, s99, 0\n  s_lshl_b32 s3, s{sI}, 6\n  v_add_u32 v20, s3, v1\n  global_load_ubyte v{vSEQ}, v20, s[98:99]")
        A(f"  s_mov_b32 s7, {QAREA[0]}")
        for w in range(1, 4):
            A(f"  s_cmp_eq_u32 s{sWAVE}, {w}\n  s_cselect_b32 s7, {QAREA[w]}, s7")
        A(f"  s_mul_i32 s4, s{sWAVE}, 3072\n  s_add_u32 s{sKM0}, s4, {KR}\n  s_add_u32 s{sVM0}, s4, {VR}")
        if self.P.get("coop", 1):
            A(f"  s_and_b32 s5, s{sWAVE}, 1\n  s_cmp_eq_u32 s5, 1\n  s_cselect_b32 s{sTS}, s{sV}, s{sK}\n  s_cselect_b32 s{sTS+1}, s{sV+1}, s{sK+1}\n  s_mov_b32 s{sTS+2}, {HEAD}")
            A(f"  s_cmp_ge_u32 s{sWAVE}, 2\n  s_cselect_b32 s5, 64, 48\n  s_mul_i32 s3, s{sI}, s5\n  s_lshl_b32 s3, s3, 7")
            A(f"  s_cmp_ge_u32 s{sWAVE}, 2\n  s_cselect_b32 s98, 0, {32*TILE}\n  s_add_u32 s3, s3, s98")
            A(f"  v_lshlrev_b32 v{vTCH}, 7, v1\n  v_cmp_gt_u32 vcc, s5, v1\n  v_mov_b32 v20, 0x40000000\n  s_nop 0\n  v_cndmask_b32 v20, v20, v{vTCH}, vcc")
            A(f"  s_mov_b32 m0, {DUMMY}\n  s_nop 0\n  buffer_load_dword v20, s[{sTS}:{sTS+3}], s3 offen lds")
        self.stamp(48)
        D = []
        def tile(srdn, m0r, slot, off):
            for j in range(3):
                pre = [f"  s_add_u32 m0, s{m0r}, {slot*TILE}", f"  s_add_u32 s3, s4, {off}"] if j == 0 else []
                D.append(pre + [f"  buffer_load_dwordx4 v{vDV+j}, s[{srdn}:{srdn+3}], s3 offen offset:{1024*j} {self.P.get('sf','')} lds"])
        def qdma(b):
            base = sROWB if b >= 2 else sROWA
            lds = "s7" if b >= 2 else f"s{sGM0}"
            for half in range(2):
                for j in range(3):
                    pre = [f"  s_add_u32 m0, {lds}, {(b&1)*6144 + half*3072}", f"  s_add_u32 s3, s{base}, {(b&1)*6144 + half*3072}"] if j == 0 else []
                    D.append(pre + [f"  buffer_load_dwordx4 v{vDV+j}, s[{sG}:{sG+3}], s3 offen offset:{1024*j} {self.P.get('qf','')} lds"])
        A(f"  s_mul_i32 s{sGM0}, s{sWAVE}, 12288\n  s_add_u32 s{sGM0}, s{sGM0}, {GR}")
        qdma(2); qdma(3); tile(sK, sKM0, 0, 32*TILE); tile(sV, sVM0, 0, 32*TILE); tile(sK, sKM0, 1, 33*TILE)
        main = self.A
        B = Asm(); self.A = B; A = B
        A(f"  s_mov_b32 s{sWP}, s4")
        A(f"  v_and_b32 v20, 6, v18\n  v_xor_b32 v20, v20, v19\n  v_lshlrev_b32 v20, 4, v20\n  v_mul_u32_u24 v{vKA}, 384, v18\n  v_add_u32 v{vKA}, v{vKA}, v20\n  v_xor_b32 v{vKA+1}, 64, v{vKA}")
        A(f"  v_add_u32 v22, s7, v{vKA}\n  v_xor_b32 v23, 64, v22\n  v_add_u32 v24, s{sGM0}, v{vKA}\n  v_xor_b32 v25, 64, v24")
        for r in range(8): A(f"  v_mov_b32 v{Preg(1,0)+r}, 0")
        A(f"  v_mov_b32 v26, {hex(f2u(CSCALE))}\n  v_mov_b32 v27, {hex(f2u(CSCALE))}")
        A(f"  s_mov_b32 s{sC}, {hex(f2u(CSCALE))}\n  s_mov_b32 s{sHI}, 0xffff0000\n  s_mov_b32 s{sTHR}, 0x49800000\n  s_mov_b32 s{sT1}, 128\n  s_mov_b32 s{sT2}, 256")
        A(f"  v_mov_b32 v28, 0\n  v_mov_b32 v29, 0\n  v_mov_b32 v30, 0\n  v_mov_b32 v31, 0\n  v_add_u32 v20, {ZA}, v{vLIN}\n  ds_write_b128 v20, v[28:31]")
        for r in range(12): A(f"  v_mfma_f32_32x32x16_bf16 a[{16*r}:{16*r+15}], v[28:31], v[28:31], 0")
        A(f"  v_bfe_u32 v20, v1, 2, 2\n  v_lshl_add_u32 v20, v19, 2, v20")
        A(f"  v_mul_u32_u24 v{vVA}, 384, v20\n  v_and_b32 v20, 6, v20\n  v_bfe_u32 v21, v1, 1, 1\n  v_xor_b32 v20, v20, v21\n  v_lshl_add_u32 v{vVA}, v20, 4, v{vVA}")
        A(f"  v_and_b32 v20, 1, v1\n  v_lshl_add_u32 v{vVA}, v20, 3, v{vVA}\n  v_add_u32 v{vVA}, {VR}, v{vVA}")
        for x in range(1, 4): A(f"  v_xor_b32 v{vVA+x}, {32*x}, v{vVA}")
        A(f"  v_lshlrev_b32 v20, 2, v19\n  v_sub_u32 v{vX}, v18, v20\n  v_mov_b32 v{vNINF}, 0xff800000")
        A(f"  v_lshlrev_b32 v{vTCH}, 7, v1")
        A(f"  v_and_b32 v20, 2, v16\n  v_xor_b32 v20, v20, v17\n  v_lshlrev_b32 v20, 4, v20")
        for p in range(4):
            A(f"  v_mov_b32 v{PAIR+2*p+1}, v20" if p % 2 == 0 else f"  v_xor_b32 v{PAIR+2*p+1}, 64, v20")
        A(f"  v_and_b32 v20, 7, v18\n  v_lshrrev_b32 v21, 3, v18\n  v_lshlrev_b32 v{vKG}, 7, v20\n  v_lshl_add_u32 v{vKG}, v21, 10, v{vKG}")
        A(f"  v_and_b32 v20, 2, v20\n  v_xor_b32 v20, v20, v19\n  v_lshlrev_b32 v21, 2, v21\n  v_xor_b32 v20, v20, v21\n  v_lshl_add_u32 v{vKG}, v20, 4, v{vKG}")
        A(f"  v_add_u32 v{vKG}, s{sGM0}, v{vKG}\n  v_xor_b32 v{vKG+1}, 64, v{vKG}")
        A(f"  v_lshlrev_b32 v20, 6, v19\n  v_bfe_u32 v21, v1, 3, 1\n  v_lshl_add_u32 v20, v21, 4, v20\n  v_lshl_add_u32 v20, v17, 1, v20\n  s_lshl_b32 s5, s{sWAVE}, 10\n  s_add_u32 s5, s5, {PA}\n  v_add_u32 v{vPW}, s5, v20")
        for u in range(4):
            lo = 0xff << (16*u); hi = 0xff00 << (16*u)
            A(f"  s_mov_b32 s{sSEL+4*u}, {hex(lo & 0xffffffff)}\n  s_mov_b32 s{sSEL+4*u+1}, {hex(lo >> 32)}\n  s_mov_b32 s{sSEL+4*u+2}, {hex(hi & 0xffffffff)}\n  s_mov_b32 s{sSEL+4*u+3}, {hex(hi >> 32)}")
        for r in range(4): A(f"  v_mov_b32 v{ONES+r}, 0x3f803f80")
        for r in range(16): A(f"  v_mov_b32 v{L0+r}, 0\n  v_mov_b32 v{NEGM+r}, 0")
        for r in range(8): A(f"  v_mov_b32 v{NEGM1+r}, 0")
        for r in range(4): A(f"  v_mov_b32 v{MNEG+r}, 0")
        A(f"  v_lshlrev_b32 v1, 2, v16\n  v_add_u32 v{vIA}, s6, v1")
        A("  s_waitcnt lgkmcnt(0)")
        A(f"  s_lshl_b32 s5, s{sH}, 1\n  s_and_b32 s5, s5, 2\n  s_lshl_b32 s5, s5, 3\n  s_lshr_b32 s96, s96, s5\n  s_lshl_b32 s96, s96, 16")
        A(f"  v_mov_b32 v20, s96\n  v_mul_f32 v20, {hex(f2u(LOG2E))}, v20\n  v_exp_f32 v20, v20\n  s_nop 0\n  v_add_f32 v20, 1.0, v20\n  v_rcp_f32 v20, v20\n  s_nop 0\n  v_sub_f32 v21, 1.0, v20\n  v_readfirstlane_b32 s{sG1}, v20\n  s_nop 0\n  v_readfirstlane_b32 s{sGG}, v21")
        setup = [l for l in B.lines if l.strip()]
        self.A = main; A = main
        nset = 12
        per = -(-len(setup) // nset)
        sched_q = {13: (2, 5), 19: (3, 11)}
        pending = []
        for k, d in enumerate(D):
            for l in d: A(l)
            if k < nset:
                for l in setup[k*per:(k+1)*per]: A(l)
            if pending:
                for l in pending.pop(0): A(l)
            if k in sched_q:
                b, last = sched_q[k]
                for ch in pending:
                    for l in ch: A(l)
                A(f"  s_waitcnt vmcnt({k - last})")
                self.stamp(50 + b)
                reads, fr = self.qproc(b, 22 if b >= 2 else 24, 32)
                for l in reads: A(l)
                pending = fr
        for ch in pending:
            for l in ch: A(l)

    def qa_dma(self, k):
        b, r = divmod(k, 6); half, j = divmod(r, 3)
        off = b*6144 + half*3072
        return (f"s_add_u32 m0, s{sGM0}, {off}", f"s_add_u32 s{sQO}, s{sROWA}, {off}",
                f"buffer_load_dwordx4 v{vDV+j}, s[{sG}:{sG+3}], s{sQO} offen offset:{1024*j} {self.P.get('qf','')} lds")

    def qproc(self, b, areg, t):
        reads = [f"  ds_read_b128 {vq(POOL+16+4*(s%4) if False else POOL+4*s)}, v{areg+(s&1)} offset:{(b&1)*6144 + (s>>1)*128}" for s in range(6)]
        fr = []
        for s in range(6):
            L = [f"  s_waitcnt lgkmcnt({5-s})"]
            op = Qop(b, s); base = int(op[2:op.index(':')])
            for r in range(4):
                src = POOL + 4*s + r
                L += [f"  v_lshlrev_b32 v{t+2*r}, 16, v{src}", f"  v_and_b32 v{t+1+2*r}, s{sHI}, v{src}"]
            for r in range(4):
                L += [f"  v_pk_mul_f32 v[{t+2*r}:{t+1+2*r}], v[{t+2*r}:{t+1+2*r}], v[26:27]"]
            for r in range(4):
                L.append(f"  v_cvt_pk_bf16_f32 v{base+r if op[0] == 'v' else t+8+r}, v{t+2*r}, v{t+1+2*r}")
            if op[0] == 'a':
                for r in range(4): L.append(f"  v_accvgpr_write_b32 a{base+r}, v{t+8+r}")
            fr.append(L)
        return reads, fr

    def qproc_inplace(self, b):
        A = self.A
        ar = Sreg(0, 0); t = Sreg(1, 0)
        A(f"  v_mov_b32 v22, s{sC}\n  v_mov_b32 v23, s{sC}")
        for rnd in range(2):
            ss = [0, 1, 2, 3] if rnd == 0 else [4, 5]
            for k, s in enumerate(ss):
                A(f"  ds_read_b128 {vq(POOL+16+4*k)}, v{ar+(s&1)} offset:{(b&1)*6144 + (s>>1)*128}")
            for k, s in enumerate(ss):
                A(f"  s_waitcnt lgkmcnt({len(ss)-1-k})")
                op = Qop(b, s); base = int(op[2:op.index(':')])
                for r in range(4):
                    src = POOL + 16 + 4*k + r
                    A(f"  v_lshlrev_b32 v{t+2*r}, 16, v{src}\n  v_and_b32 v{t+1+2*r}, s{sHI}, v{src}")
                for r in range(4):
                    A(f"  v_pk_mul_f32 v[{t+2*r}:{t+1+2*r}], v[{t+2*r}:{t+1+2*r}], v[22:23]")
                for r in range(4):
                    A(f"  v_cvt_pk_bf16_f32 v{base+r if op[0] == 'v' else ar+2+r}, v{t+2*r}, v{t+1+2*r}")
                if op[0] == 'a':
                    for r in range(4): A(f"  v_accvgpr_write_b32 a{base+r}, v{ar+2+r}")

    def step0(self):
        A = self.A
        A(f"  s_mov_b32 s{sT}, 0")
        A("  s_waitcnt vmcnt(6)\n  s_barrier")
        A(f"  s_mov_b32 s{sR1}, 32\n  s_cmp_ge_u32 s{sR1}, s{sDB}\n  s_cbranch_scc0 S0_NM\n  s_call_b64 s[{sRET}:{sRET+1}], MASK_p2\nS0_NM:")
        A(f"  s_mov_b32 s{sR0}, 32\n  s_mov_b32 s{sR1}, 33\n  s_mov_b32 s{sR2}, 34\n  s_mov_b32 s{sR3}, 35\n  v_readlane_b32 s{sR4}, v{vSEQ}, 4")
        def tile(srdn, m0r, slot, tl):
            out = []
            for j in range(3):
                out.append([f"  s_add_u32 m0, s{m0r}, {slot*TILE}", (f"  s_add_u32 s3, s{sWP}, {tl*TILE}" if tl is not None else f"  s_nop 0"),
                            f"  buffer_load_dwordx4 v{vDV+j}, s[{srdn}:{srdn+3}], s3 offen offset:{1024*j} {self.P.get('sf','')} lds"])
            return out
        dm = tile(sV, sVM0, 1, 33) + tile(sK, sKM0, 2, 34) + tile(sK, sKM0, 3, 35)
        for k in range(2):
            for s in range(6):
                A(f"  ds_read_b128 {vq(POOL+4*s)}, v{vKA+(s&1)} offset:{k*6144 + (s>>1)*128}")
            for s in range(6):
                A(f"  s_waitcnt lgkmcnt({5-s})")
                for b in (2, 3):
                    c = self.cinit("p2", k, b) if s == 0 else vq(Sreg(k, b))
                    A(f"  v_mfma_f32_16x16x32_bf16 {vq(Sreg(k,b))}, {vq(POOL+4*s)}, {Qop(b,s)}, {c}")
                if dm and (s < 5):
                    for l in dm.pop(0): A(l)
        for d in dm:
            for l in d: A(l)
        A("  s_waitcnt vmcnt(9)\n  s_barrier")
        dm = tile(sV, sVM0, 2, 34)
        A(f"  s_mul_i32 s4, s{sR4}, {TILE}\n  s_add_u32 s4, s4, s{sWP}")
        for j in range(3):
            dm.append([f"  s_add_u32 m0, s{sKM0}, 0", "  s_nop 0", f"  buffer_load_dwordx4 v{vDV+j}, s[{sK}:{sK+3}], s4 offen offset:{1024*j} lds"])
        for k in range(6): dm.append(["  " + x for x in self.qa_dma(k)])
        for f in range(4): A("  " + self.kread(f, 1))
        L = []
        for b in (2, 3):
            self.rowmax(L, b, TMP+4, TMP+6)
            for k in range(2):
                for r in range(4): L.append(f"  v_sub_f32 v{Sreg(k,b)+r}, v{Sreg(k,b)+r}, v{TMP+4}")
            L.append(f"  v_sub_f32 v{MNEG+b}, 0, v{TMP+4}")
            for r in range(4): L.append(f"  v_sub_f32 v{NEGM+4*b+r}, 0, v{TMP+4}")
            for r in range(4): L.append(f"  v_sub_f32 v{NEGM1+4*(b-2)+r}, 0, v{TMP+4}")
            self.expcvt(L, b, 0)
        flat = [x for l in L for x in l.split("\n")]
        per = max(1, len(flat) // (len(dm) + 1))
        A("  s_nop 3")
        for k, l in enumerate(flat):
            A(l)
            if k % per == per - 1 and dm and not ("s_nop" in l or "v_mov_b32" in l or "permlane" in l or "v_exp" in l):
                for x in dm.pop(0): A(x)
        for d in dm:
            for x in d: A(x)
        A("  s_nop 1")
        for b in (2, 3):
            A(f"  v_mfma_f32_16x16x32_bf16 {vq(L0+4*b)}, {vq(ONES)}, {vq(Preg(0,b))}, {vq(L0+4*b)}")
        A(f"  s_mov_b32 s{sT}, 1")
        A(f"  s_cmp_ge_u32 s{sR1}, s{sDB}\n  s_cbranch_scc0 S1_NM\n  s_call_b64 s[{sRET}:{sRET+1}], MASK_p2\nS1_NM:")

    def gather_srd(self, ptr):
        A = self.A
        A(f"  s_mov_b32 s{sG}, s{ptr}\n  s_and_b32 s{sG+1}, s{ptr+1}, 0xffff\n  s_or_b32 s{sG+1}, s{sG+1}, 0x01800000\n  s_mov_b32 s{sG+2}, 2048\n  s_mov_b32 s{sG+3}, 0x20000")

    def prime(self, gt):
        A = self.A
        for gi in range(2):
            if gt == "K": Ti, qoff, newidx = gi, 0, gi == 0
            else: Ti, qoff, newidx = 0, gi*128, True
            so = ["0", f"s{sT1}", f"s{sT2}"][Ti]
            if newidx:
                for p in range(4): A(f"  ds_read_b32 v{PAIR+2*p}, v{vIA} offset:{qoff + 32*p}")
                A("  s_waitcnt lgkmcnt(0)")
            for p in range(4):
                A(f"  s_add_u32 m0, s{sGM0}, {gi*4096 + p*1024}\n  s_nop 0")
                A(f"  buffer_load_dwordx4 v[{PAIR+2*p}:{PAIR+2*p+1}], s[{sG}:{sG+3}], {so} idxen offen lds")

    def softmax8(self):
        A = self.A
        a, b, t0, t1 = GX, GX+1, TMP, TMP+1
        ctr = ["quad_perm:[1,0,3,2]", "quad_perm:[2,3,0,1]", "row_half_mirror"]
        A(f"  v_mov_b32 v{t0}, v{a}\n  v_mov_b32 v{t1}, v{b}\n  s_nop 0")
        for c in ctr:
            A(f"  v_max_f32_dpp v{t0}, v{t0}, v{t0} {c} row_mask:0xf bank_mask:0xf\n  v_max_f32_dpp v{t1}, v{t1}, v{t1} {c} row_mask:0xf bank_mask:0xf\n  s_nop 0")
        A(f"  v_sub_f32 v{a}, v{a}, v{t0}\n  v_sub_f32 v{b}, v{b}, v{t1}\n  v_exp_f32 v{a}, v{a}\n  v_exp_f32 v{b}, v{b}\n  s_nop 0")
        A(f"  v_mov_b32 v{t0}, v{a}\n  v_mov_b32 v{t1}, v{b}\n  s_nop 0")
        for c in ctr:
            A(f"  v_add_f32_dpp v{t0}, v{t0}, v{t0} {c} row_mask:0xf bank_mask:0xf\n  v_add_f32_dpp v{t1}, v{t1}, v{t1} {c} row_mask:0xf bank_mask:0xf\n  s_nop 0")
        A(f"  v_rcp_f32 v{t0}, v{t0}\n  v_rcp_f32 v{t1}, v{t1}\n  s_nop 0\n  v_mul_f32 v{t0}, s{sGG}, v{t0}\n  v_mul_f32 v{t1}, s{sGG}, v{t1}")
        A(f"  v_mul_f32 v{a}, v{a}, v{t0}\n  v_mul_f32 v{b}, v{b}, v{t1}\n  v_cvt_pk_bf16_f32 v{a}, v{a}, v{b}")
        A(f"  v_lshrrev_b32 v{t0}, 4, v{vLIN}          ; lane")
        A(f"  v_lshrrev_b32 v{t1}, 4, v{t0}\n  v_lshlrev_b32 v{t1}, 6, v{t1}           ; G*64")
        A(f"  v_bfe_u32 v{TMP+2}, v{t0}, 3, 1\n  v_lshl_add_u32 v{t1}, v{TMP+2}, 4, v{t1}\n  v_and_b32 v{t0}, 7, v{t0}\n  v_lshl_add_u32 v{t1}, v{t0}, 1, v{t1}")
        A(f"  s_lshl_b32 s3, s{sWAVE}, 10\n  s_lshr_b32 s4, s{sB}, 1\n  s_lshl_b32 s4, s4, 8\n  s_add_u32 s3, s3, s4\n  s_add_u32 s3, s3, {PA}\n  v_add_u32 v{t1}, s3, v{t1}")
        A(f"  ds_write_b16 v{t1}, v{a}\n  ds_write_b16_d16_hi v{t1}, v{a} offset:32")

    def vphase_setup(self):
        A = self.A
        t = TMP
        A(f"  v_lshrrev_b32 v{t}, 4, v{vLIN}          ; lane")
        A(f"  v_lshrrev_b32 v{t+1}, 4, v{t}           ; G\n  v_bfe_u32 v{t+2}, v{t}, 2, 2          ; r")
        A(f"  v_lshlrev_b32 v{vVG}, 10, v{t+1}\n  v_lshl_add_u32 v{vVG}, v{t+2}, 7, v{vVG}")
        A(f"  v_and_b32 v{t+2}, 2, v{t+2}\n  v_bfe_u32 v{t+3}, v{t}, 1, 1\n  v_xor_b32 v{t+2}, v{t+2}, v{t+3}\n  v_and_b32 v{t+3}, 1, v{t+1}\n  v_lshlrev_b32 v{t+3}, 2, v{t+3}\n  v_xor_b32 v{t+2}, v{t+2}, v{t+3}")
        A(f"  v_lshl_add_u32 v{vVG}, v{t+2}, 4, v{vVG}\n  v_and_b32 v{t+2}, 1, v{t}\n  v_lshl_add_u32 v{vVG}, v{t+2}, 3, v{vVG}\n  v_add_u32 v{vVG}, s{sGM0}, v{vVG}")
        for x in range(1, 4): A(f"  v_xor_b32 v{vVG+x}, {32*x}, v{vVG}")
        A(f"  v_and_b32 v{t+2}, 15, v{t}\n  v_sub_u32 v{t+3}, v{t+2}, v{t+1}\n  s_lshl_b32 s3, s{sWAVE}, 10\n  s_add_u32 s3, s3, {PA}")
        A(f"  v_lshlrev_b32 v{t+4}, 4, v{t+2}\n  v_add_u32 v{t+4}, s3, v{t+4}\n  v_mov_b32 v{t+5}, {ZA}")
        for c in range(4):
            A(f"  v_cmp_eq_u32 vcc, {4*c}, v{t+3}\n  s_nop 1\n  v_cndmask_b32 v{vPB+c}, v{t+5}, v{t+4}, vcc")
        A(f"  s_call_b64 s[{sRET}:{sRET+1}], VSET_0")

    def vphase_early(self):
        A = self.A
        t = TMP
        A(f"  v_lshrrev_b32 v{t}, 7, v{vLIN}\n  v_lshlrev_b32 v{t}, 2, v{t}\n  s_lshl_b32 s3, s{sWAVE}, 11\n  s_add_u32 s3, s3, {IDX}\n  v_add_u32 v{vIA}, s3, v{t}")
        self.gather_srd(sMVS)
        self.prime("V")

    def drain(self, betas, par, slot):
        A = self.A
        seq = []
        for d in range(12):
            r = POOL + 16 + (d % 4)*4
            if d >= 4:
                for b in betas:
                    seq.append(("M", f"v_mfma_f32_16x16x32_bf16 {aq(Oreg(b,d-4))}, {vq(r)}, {vq(Preg(par,b))}, {aq(Oreg(b,d-4))}", None))
            seq.append(("T", f"ds_read_b64_tr_b16 v[{r}:{r+1}], v{vVA+(d&3)} offset:{slot*TILE + (d>>2)*128}", None))
            seq.append(("T", f"ds_read_b64_tr_b16 v[{r+2}:{r+3}], v{vVA+(d&3)} offset:{slot*TILE + 6144 + (d>>2)*128}", None))
        for d in range(8, 12):
            r = POOL + 16 + (d % 4)*4
            for b in betas:
                seq.append(("M", f"v_mfma_f32_16x16x32_bf16 {aq(Oreg(b,d))}, {vq(r)}, {vq(Preg(par,b))}, {aq(Oreg(b,d))}", None))
        lines, _ = finalize(seq)
        for l in lines: A(l)

    def epi_checks(self, nm):
        A = self.A
        if self.P.get("vfull", 0) == 1: return
        A(f"  s_cmp_eq_u32 s{sB}, s{sEPA}\n  s_cbranch_scc0 {nm}_NE\n  s_call_b64 s[{sEPR}:{sEPR+1}], EPI_A\n{nm}_NE:")
        if self.P.get("vfull", 0) or not self.P.get("ompf", 1): return
        A(f"  s_cmp_eq_u32 s{sPH}, 2\n  s_cbranch_scc0 {nm}_NF")
        A(f"  s_add_u32 s3, s{sB}, 1\n  s_cmp_eq_u32 s3, s{sEPA}\n  s_cbranch_scc0 {nm}_NG\n  s_call_b64 s[{sRET}:{sRET+1}], OML_A\n{nm}_NG:")
        A(f"  s_cmp_eq_u32 s{sB}, 14\n  s_cbranch_scc0 {nm}_NF\n  s_call_b64 s[{sRET}:{sRET+1}], OML_B\n{nm}_NF:")

    OMR = [QV + 4*k for k in range(8)] + [Preg(0, 0), Preg(0, 1), Preg(1, 0), Preg(1, 1)]
    def omload(self, rowreg, quads):
        A = self.A
        A(f"  s_add_u32 s3, s{rowreg}, 4096\n  s_add_u32 s6, s{rowreg}, 8192")
        for qd in quads:
            sreg, off = (f"s{rowreg}", qd*1024) if qd < 4 else (("s3", (qd-4)*1024) if qd < 8 else ("s6", (qd-8)*1024))
            A(f"  buffer_load_dwordx4 {vq(self.OMR[qd])}, v{vLIN}, s[{sW}:{sW+3}], {sreg} offen offset:{off} {self.P.get('olf','')}")

    def epilogue(self, betas, rowreg, units, nload_after):
        A = self.A
        OMR = self.OMR
        X = Sreg(0, 0); ST = Sreg(1, 0); WA = TMP; RA = TMP + 4
        A(f"  v_lshrrev_b32 v{X}, 4, v{vLIN}\n  v_and_b32 v{X+1}, 15, v{X}\n  v_lshrrev_b32 v{X+2}, 4, v{X}")
        A(f"  v_lshrrev_b32 v{X+3}, 1, v{X+2}\n  v_and_b32 v{X+4}, 7, v{X+1}\n  v_xor_b32 v{X+3}, v{X+3}, v{X+4}\n  v_lshlrev_b32 v{X+3}, 4, v{X+3}")
        A(f"  v_lshl_add_u32 v{WA}, v{X+1}, 7, v{X+3}\n  v_and_b32 v{X+3}, 1, v{X+2}\n  v_lshl_add_u32 v{WA}, v{X+3}, 3, v{WA}\n  s_add_u32 s5, s{sGM0}, 8192\n  v_add_u32 v{WA}, s5, v{WA}")
        for x in range(1, 4): A(f"  v_xor_b32 v{WA+x}, {32*x}, v{WA}")
        A(f"  v_lshrrev_b32 v{X+3}, 3, v{X}\n  v_and_b32 v{X+4}, 7, v{X}\n  v_xor_b32 v{X+5}, v{X+4}, v{X+3}\n  v_lshlrev_b32 v{X+5}, 4, v{X+5}\n  v_lshl_add_u32 v{RA}, v{X+3}, 7, v{X+5}\n  v_add_u32 v{RA}, s5, v{RA}")
        A(f"  v_mul_u32_u24 v{RA+1}, 384, v{X+3}\n  v_lshl_add_u32 v{RA+1}, v{X+4}, 4, v{RA+1}")
        for bi, b in enumerate(betas):
            A(f"  v_rcp_f32 v{RA+2+bi}, v{L0+4*b}")
        A("  s_nop 0")
        for bi, b in enumerate(betas):
            A(f"  v_mul_f32 v{RA+2+bi}, s{sG1}, v{RA+2+bi}")
        nst = 0
        def flush(u):
            bi, T = units[u]; buf = (u & 1)*2048
            A(f"  ds_read_b128 {vq(ST)}, v{RA} offset:{buf}\n  ds_read_b128 {vq(ST+4)}, v{RA} offset:{buf+1024}")
            A(f"  s_add_u32 s6, s{rowreg}, {bi*6144 + T*128}\n  s_add_u32 s7, s6, 3072")
        def store(u):
            fl = self.P.get('ostf', '')
            if "noos" in self.ab:
                A("  s_waitcnt lgkmcnt(0)"); return
            A(f"  buffer_store_dwordx4 {vq(ST)}, v{RA+1}, s[{sO}:{sO+3}], s6 offen {fl}")
            A(f"  buffer_store_dwordx4 {vq(ST+4)}, v{RA+1}, s[{sO}:{sO+3}], s7 offen {fl}")
        for u, (bi, T) in enumerate(units):
            b = betas[bi]; f = RA + 2 + bi; buf = (u & 1)*2048
            A(f"  s_waitcnt vmcnt({nload_after[u] + (0 if 'noos' in self.ab else max(0, 2*(u-1)))})")
            for x in range(4):
                d = 4*T + x
                for h in range(2):
                    j = 2*d + h
                    om = OMR[6*bi + j // 4] + j % 4; a = Oreg(b, d) + 2*h
                    A(f"  v_accvgpr_read_b32 v{X}, a{a}\n  v_accvgpr_read_b32 v{X+1}, a{a+1}\n  v_lshlrev_b32 v{X+2}, 16, v{om}\n  v_and_b32 v{X+3}, s{sHI}, v{om}")
                    A(f"  v_fma_f32 v{X}, v{X}, v{f}, v{X+2}\n  v_fma_f32 v{X+1}, v{X+1}, v{f}, v{X+3}\n  v_cvt_pk_bf16_f32 v{X+4+2*(x&1)+h}, v{X}, v{X+1}")
                A(f"  ds_write_b64 v{WA+x}, v[{X+4+2*(x&1)}:{X+5+2*(x&1)}] offset:{buf}")
                if x == 1 and u >= 1:
                    A("  s_waitcnt lgkmcnt(2)")
                    flush(u - 1)
                if x == 3 and u >= 1:
                    A("  s_waitcnt lgkmcnt(2)")
                    store(u - 1)
        A("  s_waitcnt lgkmcnt(0)")
        flush(5)
        A("  s_waitcnt lgkmcnt(0)")
        store(5)

    def emit_epi_a(self):
        A = self.A
        A("EPI_A:\n  s_nop 7")
        self.stamp(5)
        A(f"  s_bitcmp1_b32 s{sOMF}, 0\n  s_cbranch_scc1 EPI_A1\n  s_call_b64 s[{sRET}:{sRET+1}], OML_A\nEPI_A1:")
        self.epilogue([0, 1], sROWA, [(bi, T) for bi in range(2) for T in range(3)], [10, 8, 6, 4, 2, 0])
        self.stamp(6)
        A(f"  s_setpc_b64 s[{sEPR}:{sEPR+1}]")
        A("OML_A:")
        self.omload(sROWA, range(12))
        A(f"  s_or_b32 s{sOMF}, s{sOMF}, 1\n  s_setpc_b64 s[{sRET}:{sRET+1}]")
        A("OML_B:")
        self.omload(sROWB, [0, 1, 2, 3, 6, 7, 8, 9])
        A(f"  s_or_b32 s{sOMF}, s{sOMF}, 2\n  s_setpc_b64 s[{sRET}:{sRET+1}]")

    def final_loads(self):
        A = self.A
        regs = [S0 + 4*k for k in range(8)] + [P0 + 4*k for k in range(4)] + [Preg(1, 0), Preg(1, 1)] + [NEGM + 4*k for k in range(4)] + [QV + 4*k for k in range(6)]
        self.FU = [(b, T) for T in range(3) for b in range(4)]
        self.FOM = {}
        A(f"  s_add_u32 s3, s{sROWA}, 4096\n  s_add_u32 s4, s{sROWA}, 8192\n  s_add_u32 s5, s{sROWB}, 4096\n  s_add_u32 s6, s{sROWB}, 8192")
        for u, (b, T) in enumerate(self.FU):
            for k in range(2):
                qd = (b & 1)*6 + 2*T + k
                base = [f"s{sROWA}", "s3", "s4"] if b < 2 else [f"s{sROWB}", "s5", "s6"]
                r = regs[2*u + k]; self.FOM[(b, 2*T + k)] = r
                A(f"  buffer_load_dwordx4 {vq(r)}, v{vLIN}, s[{sW}:{sW+3}], {base[qd // 4]} offen offset:{(qd % 4)*1024} {self.P.get('olf','')}")

    def final_epilogue(self):
        A = self.A
        X = 200; ST = 208; WA = 216; RA = 220; FR = 224
        A(f"  v_lshrrev_b32 v{X}, 4, v{vLIN}\n  v_and_b32 v{X+1}, 15, v{X}\n  v_lshrrev_b32 v{X+2}, 4, v{X}")
        A(f"  v_lshrrev_b32 v{X+3}, 1, v{X+2}\n  v_and_b32 v{X+4}, 7, v{X+1}\n  v_xor_b32 v{X+3}, v{X+3}, v{X+4}\n  v_lshlrev_b32 v{X+3}, 4, v{X+3}")
        A(f"  v_lshl_add_u32 v{WA}, v{X+1}, 7, v{X+3}\n  v_and_b32 v{X+3}, 1, v{X+2}\n  v_lshl_add_u32 v{WA}, v{X+3}, 3, v{WA}\n  v_add_u32 v{WA}, s{sGM0}, v{WA}")
        for x in range(1, 4): A(f"  v_xor_b32 v{WA+x}, {32*x}, v{WA}")
        A(f"  v_lshrrev_b32 v{X+3}, 3, v{X}\n  v_and_b32 v{X+4}, 7, v{X}\n  v_xor_b32 v{X+5}, v{X+4}, v{X+3}\n  v_lshlrev_b32 v{X+5}, 4, v{X+5}\n  v_lshl_add_u32 v{RA}, v{X+3}, 7, v{X+5}\n  v_add_u32 v{RA}, s{sGM0}, v{RA}")
        A(f"  v_mul_u32_u24 v{RA+1}, 384, v{X+3}\n  v_lshl_add_u32 v{RA+1}, v{X+4}, 4, v{RA+1}")
        for b in range(4): A(f"  v_rcp_f32 v{FR+b}, v{L0+4*b}")
        A("  s_nop 0")
        for b in range(4): A(f"  v_mul_f32 v{FR+b}, s{sG1}, v{FR+b}")
        units = self.FU; n = len(units)
        fl = self.P.get('ostf', '')
        def flush(u):
            b, T = units[u]; buf = (u % 3)*2048
            A(f"  ds_read_b128 {vq(ST)}, v{RA} offset:{buf}\n  ds_read_b128 {vq(ST+4)}, v{RA} offset:{buf+1024}")
            A(f"  s_add_u32 s6, s{sROWA if b < 2 else sROWB}, {(b&1)*6144 + T*128}\n  s_add_u32 s7, s6, 3072")
        def store(u):
            A(f"  buffer_store_dwordx4 {vq(ST)}, v{RA+1}, s[{sO}:{sO+3}], s6 offen {fl}")
            A(f"  buffer_store_dwordx4 {vq(ST+4)}, v{RA+1}, s[{sO}:{sO+3}], s7 offen {fl}")
        for u, (b, T) in enumerate(units):
            f = FR + b; buf = (u % 3)*2048
            A(f"  s_waitcnt vmcnt({(2*n - 2 - 2*u) + max(0, 2*(u-1))})")
            for x in range(4):
                d = 4*T + x
                for h in range(2):
                    j = 2*d + h
                    om = self.FOM[(b, j // 4)] + j % 4; a = Oreg(b, d) + 2*h
                    A(f"  v_accvgpr_read_b32 v{X}, a{a}\n  v_accvgpr_read_b32 v{X+1}, a{a+1}\n  v_lshlrev_b32 v{X+2}, 16, v{om}\n  v_and_b32 v{X+3}, s{sHI}, v{om}")
                    A(f"  v_fma_f32 v{X}, v{X}, v{f}, v{X+2}\n  v_fma_f32 v{X+1}, v{X+1}, v{f}, v{X+3}\n  v_cvt_pk_bf16_f32 v{X+4+2*(x&1)+h}, v{X}, v{X+1}")
                A(f"  ds_write_b64 v{WA+x}, v[{X+4+2*(x&1)}:{X+5+2*(x&1)}] offset:{buf}")
                if x == 1 and u >= 1:
                    A("  s_waitcnt lgkmcnt(2)"); flush(u - 1)
                if x == 3 and u >= 1:
                    A("  s_waitcnt lgkmcnt(2)"); store(u - 1)
        A("  s_waitcnt lgkmcnt(0)"); flush(n - 1)
        A("  s_waitcnt lgkmcnt(0)"); store(n - 1)

    def build(self):
        A = self.A
        self.routines()
        names = []
        na = self.body("p2", None, 0); nb = self.body("p2", None, 1)
        for kind in ("p1", "p2"):
            for gt in ("K", "V"):
                for H in (0, 1): names.append(self.body(kind, gt, H))
        tr = {nm: vm_trace(self.bodies[nm]["seq"]) for nm in self.bodies}
        op = lambda t, k: [("op", t)]*k
        prime_tr = op(("G", 6), 4) + op(("G", 7), 4)
        pre = op(("R", "pre0"), 6) + op(("R", "pre1"), 9) + op(("Q", "q"), 6)
        preds = {
            na: [pre], nb: [tr[na] + prime_tr],
            "P1K0": [tr["P1K1"], tr[na] + prime_tr + tr[nb]],
            "P1K1": [tr["P1K0"]],
            "P1V0": [tr["P1V1"]],
            "P1V1": [tr["P1V0"]],
            "P2K0": [tr["P2K1"], tr["P1K1"]],
            "P2K1": [tr["P2K0"]],
            "P2V0": [tr["P2V1"], tr["P1V1"]],
            "P2V1": [tr["P2V0"]],
        }
        self.prologue()
        self.stamp(1)
        self.step0()
        self.stamp(2)
        if self.P.get("mkt", 0):
            A(f"  s_mov_b32 s{sO}, s{sMK}\n  s_and_b32 s{sO+1}, s{sMK+1}, 0xffff\n  s_mov_b32 s{sO+2}, {HEAD}\n  s_mov_b32 s{sO+3}, 0x20000\n  s_mul_i32 s{sB}, s{sI}, 98304\n  s_mul_i32 s5, s{sWAVE}, 24576\n  s_add_u32 s{sB}, s{sB}, s5")
        for l in self.emit_body(na, preds[na]): A(l)
        self.stamp(52)
        ops = [t for k, t in tr[na] if k == "op"]
        lastq = max(i for i, t in enumerate(ops) if t and t[0] == "Q")
        A(f"  s_waitcnt vmcnt({len(ops) - 1 - lastq}) lgkmcnt(0)\n  v_add_u32 v{Sreg(0,0)}, s{sGM0}, v{vKA}\n  v_xor_b32 v{Sreg(0,0)+1}, 64, v{Sreg(0,0)}")
        self.stamp(53)
        for b in (0, 1):
            self.qproc_inplace(b)
        self.gather_srd(sMK)
        A(f"  s_mov_b32 s{sMVS}, s{sMV}\n  s_and_b32 s{sMVS+1}, s{sMV+1}, 0xffff\n  s_mov_b32 s{sMVS+2}, {HEAD}\n  s_mov_b32 s{sMVS+3}, 0x20000")
        A(f"  s_mul_i32 s{sTOF2}, s{sI}, 98304\n  s_mul_i32 s5, s{sWAVE}, 24576\n  s_add_u32 s{sTOF2}, s{sTOF2}, s5\n  s_mov_b32 s{sTOFF}, 0")
        self.prime("K")
        A(f"  s_call_b64 s[{sRET}:{sRET+1}], CPQ_0")
        self.stamp(49)
        for l in self.emit_body(nb, preds[nb]): A(l)
        A(f"  s_call_b64 s[{sRET}:{sRET+1}], MASK_p1")
        A(f"  s_mov_b32 s{sB}, 0\n  s_mov_b32 s{sPH}, 1\n  s_mov_b32 s{sOMF}, 0")
        self.stamp(3)
        A("  s_branch P1K0")
        for nm in names:
            B = self.bodies[nm]
            A(f".p2align 6\n{nm}:")
            self.stamp_dyn(16)
            for l in self.emit_body(nm, preds[nm]): A(l)
            self.stamp_dyn(32)
            kind, gt, H = B["kind"], B["gt"], B["H"]
            K = kind.upper()
            if gt == "K" and self.P.get("mvt", 2) == 2:
                A(f"  s_add_u32 s3, s{sB}, s{sI}\n  s_and_b32 s3, s3, 1\n  s_cmp_lg_u32 s3, 0\n  s_cbranch_scc1 {nm}_NT")
                A(f"  s_cmp_lt_u32 s{sB}, 1\n  s_cbranch_scc1 {nm}_NT\n  s_cmp_ge_u32 s{sTOFF}, 3\n  s_cbranch_scc1 {nm}_NT")
                A(f"  s_mov_b32 m0, {DUMMY}\n  s_nop 0\n  buffer_load_dword v{vTCH}, s[{sMVS}:{sMVS+3}], s{sTOF2} offen {self.P.get('tf','')} lds\n  s_add_u32 s{sTOF2}, s{sTOF2}, 8192\n  s_add_u32 s{sTOFF}, s{sTOFF}, 1")
                A(f"{nm}_NT:")
            if self.P.get("mvt", 2) == 1:
                tb = self.P.get("mvt_b", [7, 8, 10]); mk = self.P.get("mvt_mask", 3)
                A(f"  s_and_b32 s3, s{sI}, {mk}\n  s_add_u32 s3, s3, s{sB}")
                A(f"  s_cmp_eq_u32 s3, {tb[0]}\n  s_cbranch_scc1 {nm}_DT\n  s_cmp_eq_u32 s3, {tb[1]}\n  s_cbranch_scc1 {nm}_DT\n  s_cmp_eq_u32 s3, {tb[2]}\n  s_cbranch_scc0 {nm}_NT")
                A(f"{nm}_DT:\n  s_mov_b32 m0, {DUMMY}\n  v_mul_u32_u24 v{TMP}, 3, v{vTCH}\n  buffer_load_dword v{TMP}, s[{sMVS}:{sMVS+3}], s{sTOF2} offen {self.P.get('tf','')} lds\n  s_add_u32 s{sTOF2}, s{sTOF2}, 128")
                A(f"{nm}_NT:")
            if H == 0:
                if gt == "V" and kind == "p2":
                    self.epi_checks(nm)
                A(f"  s_add_u32 s{sB}, s{sB}, 1\n  s_branch {K}{gt}1")
                continue
            if gt == "K":
                A(f"  s_cmp_eq_u32 s{sB}, 7\n  s_cbranch_scc0 {nm}_NVE\n  s_call_b64 s[{sRET2}:{sRET2+1}], VEARLY\n{nm}_NVE:")
                for gm in range(4):
                    A(f"  s_cmp_eq_u32 s{sB}, {2*gm+1}\n  s_cbranch_scc0 {nm}_NK{gm}\n  s_call_b64 s[{sRET}:{sRET+1}], KEND_{gm}\n{nm}_NK{gm}:")
            else:
                for m in range(1, 4):
                    A(f"  s_cmp_eq_u32 s{sB}, {7 + 2*m}\n  s_cbranch_scc0 {nm}_NV{m}\n  s_call_b64 s[{sRET}:{sRET+1}], VSET_{m}\n{nm}_NV{m}:")
            if kind == "p1":
                A(f"  s_cmp_eq_u32 s{sB}, s{sB1LAST}\n  s_cbranch_scc0 {nm}_NP")
                self.stamp(4)
                self.drain([0, 1], 1, 3)
                A(f"  s_call_b64 s[{sRET}:{sRET+1}], MASK_p2\n  s_mov_b32 s{sPH}, 2")
                A(f"{nm}_NP:")
            if gt == "V":
                self.epi_checks(nm)
                A(f"  s_cmp_eq_u32 s{sB}, 15\n  s_cbranch_scc1 FINISH")
                A(f"  s_add_u32 s{sB}, s{sB}, 1")
                if kind == "p1": A(f"  s_cmp_eq_u32 s{sPH}, 2\n  s_cbranch_scc1 P2V0")
                A(f"  s_branch {K}V0")
            else:
                A(f"  s_add_u32 s{sB}, s{sB}, 1\n  s_cmp_eq_u32 s{sB}, 8\n  s_cbranch_scc1 SWITCH")
                if kind == "p1": A(f"  s_cmp_eq_u32 s{sPH}, 2\n  s_cbranch_scc1 P2K0")
                A(f"  s_branch {K}K0")
        A("SWITCH:")
        self.stamp(7)
        self.vphase_setup()
        A("  s_waitcnt vmcnt(0) lgkmcnt(0)")
        A(f"  s_cmp_eq_u32 s{sPH}, 2\n  s_cbranch_scc1 P2V0\n  s_branch P1V0")
        if self.P.get("vfull", 0) != 1: self.emit_epi_a()
        self.emit_rest_marker = True
        A("VEARLY:")
        self.vphase_early()
        A(f"  s_setpc_b64 s[{sRET2}:{sRET2+1}]")
        A("FINISH:")
        self.stamp(8)
        if self.P.get("mkt", 0):
            A(f"  s_load_dwordx2 s[4:5], s[0:1], 56\n  s_mul_i32 s6, s{sH}, {HEAD}\n  s_waitcnt lgkmcnt(0)\n  s_add_u32 s{sO}, s4, s6\n  s_addc_u32 s{sO+1}, s5, 0\n  s_and_b32 s{sO+1}, s{sO+1}, 0xffff\n  s_mov_b32 s{sO+2}, {HEAD}\n  s_mov_b32 s{sO+3}, 0x20000")
        if self.P.get("vfull", 0) == 1:
            self.final_loads()
            self.drain([2, 3], 1, 3)
            A("  s_nop 7")
            self.stamp(9)
            self.final_epilogue()
        else:
            A(f"  s_bitcmp1_b32 s{sOMF}, 1\n  s_cbranch_scc1 FIN1\n  s_call_b64 s[{sRET}:{sRET+1}], OML_B\nFIN1:")
            self.omload(sROWB, [4, 5, 10, 11])
            self.drain([2, 3], 1, 3)
            A("  s_nop 7")
            self.stamp(9)
            self.epilogue([2, 3], sROWB, [(0, 0), (0, 1), (1, 0), (1, 1), (0, 2), (1, 2)], [10, 8, 6, 4, 2, 0])
        if self.instr:
            A("  s_waitcnt vmcnt(0)")
            self.stamp(10)
            A("  s_memrealtime s[98:99]\n  s_load_dwordx2 s[4:5], s[0:1], 72\n  s_waitcnt lgkmcnt(0)")
            A(f"  s_lshl_b32 s100, s{sWAVE}, 8\n  s_add_u32 s100, s100, {STAMPA}\n  v_mov_b32 v2, s100\n  v_mov_b32 v3, s98\n  ds_write_b32 v2, v3 offset:48\n  s_getreg_b32 s3, hwreg(HW_REG_XCC_ID)\n  v_mov_b32 v3, s3\n  ds_write_b32 v2, v3 offset:52")
            A(f"  v_lshrrev_b32 v4, 2, v{vLIN}\n  v_add_u32 v5, s100, v4\n  s_waitcnt lgkmcnt(0)\n  ds_read_b32 v6, v5\n  s_waitcnt lgkmcnt(0)")
            A("  s_add_u32 s4, s4, 0x8000000\n  s_addc_u32 s5, s5, 0")
            A(f"  s_lshl_b32 s3, s2, 2\n  s_add_u32 s3, s3, s{sWAVE}\n  s_lshl_b32 s3, s3, 8\n  v_add_u32 v2, s3, v4")
            if self.P.get("dbg", 0):
                A("  s_load_dwordx2 s[6:7], s[0:1], 64\n  s_waitcnt lgkmcnt(0)")
                A(f"  s_lshl_b32 s100, s{sWAVE}, 8\n  s_add_u32 s100, s100, {STAMPA}\n  v_mov_b32 v2, s100\n  ds_read_b32 v8, v2 offset:44\n  ds_read_b32 v9, v2 offset:48\n  s_waitcnt lgkmcnt(0)")
                A("  v_not_b32 v8, v8\n  v_mov_b32 v3, 0\n  s_mov_b64 exec, 1\n  global_atomic_umax v3, v8, s[6:7]\n  global_atomic_umax v3, v9, s[6:7] offset:4\n  s_mov_b64 exec, -1")
                A(f"  s_cmp_eq_u32 s2, {self.P.get('dbgwg', 0)}\n  s_cbranch_scc0 DBG_SKIP\n  s_cmp_eq_u32 s{sWAVE}, 0\n  s_cbranch_scc0 DBG_SKIP")
                A(f"  v_lshrrev_b32 v10, 2, v{vLIN}\n  v_lshrrev_b32 v10, 2, v10\n  v_add_u32 v11, 1, v10\n  v_lshlrev_b32 v11, 2, v11\n  v_add_u32 v11, s100, v11\n  ds_read_b32 v12, v11\n  ds_read_b32 v14, v2\n  s_waitcnt lgkmcnt(0)\n  v_sub_u32 v12, v12, v14")
                A("  v_lshlrev_b32 v10, 2, v10\n  s_mov_b64 exec, 0x3ff\n  global_store_dword v10, v12, s[6:7] offset:8\n  s_mov_b64 exec, -1\nDBG_SKIP:")
            else:
                A("  global_store_dword v2, v6, s[4:5]")
        A("AT_END:\n  s_endpgm")
        for blk in self.ool:
            for l in blk: A(l)
        import tileorder
        pm = self.P.get("perm", 2)
        if pm == 0: order = {i: [32, 33, 34, 35] + list(range(4*i + 4)) + [x for x in range(4*i + 4, 64 - 4*i) if not 32 <= x < 36] for i in range(8)}
        elif pm == 6: order, _ = tileorder.solve6(margin=self.P.get("margin", 2.0), buf=self.P.get("buf", 3), buf1=self.P.get("buf1", 2), common=self.P.get("common", 0))
        elif pm == 5: order, _ = tileorder.solve5(margin=self.P.get("margin", 2.0), buf=self.P.get("buf", 3))
        elif pm == 4: order, _ = tileorder.solve4(mode=self.P.get("convoy", "rot"))
        else: order, _ = tileorder.solve3(margin=self.P.get("margin", 2.0), quota=tuple(self.P.get("quota", (12, 10, 6))), pick=self.P.get("pick", "new"))
        A(".p2align 6\n.type TILETAB,@object\nTILETAB:")
        for i in range(8):
            row = order[i] + [255]*(64 - len(order[i]))
            A("  .byte " + ", ".join(str(x) for x in row))
        A(".size TILETAB, 512")
        return A

def desc(name, vgpr, accum, sgpr=102):
    return f""".section .rodata,"a"
.p2align 6
.amdhsa_kernel {name}
  .amdhsa_next_free_vgpr {vgpr}
  .amdhsa_next_free_sgpr {sgpr}
  .amdhsa_accum_offset {accum}
  .amdhsa_group_segment_fixed_size 0
  .amdhsa_kernarg_size 80
  .amdhsa_user_sgpr_count 2
  .amdhsa_user_sgpr_kernarg_segment_ptr 1
  .amdhsa_system_sgpr_workgroup_id_x 1
.end_amdhsa_kernel
"""
HDR = """; Memory-augmented causal attention (Memorizing Transformer block), hand-scheduled for gfx950.
; 16x16x32 bf16 MFMA, kNN memory attention (LDS-DMA row gather) interleaved in the same instruction stream.
; @launch grid=(256,1,1) block=(256,1,1) lds=163840
.amdgcn_target "amdgcn-amd-amdhsa--gfx950"
.text
"""
if __name__ == "__main__":
    instr = "instr" in sys.argv
    params = {"touch": 0, "coop": 0, "ostf": "sc1", "omf": "sc1", "iters": 600000, "qf": "nt", "vfull": 1, "perm": 6, "buf": 3, "common": 4}; tag = ""; ab = ""
    for a in sys.argv[1:]:
        if a.startswith("P="): params.update(json.loads(a[2:]))
        if a.startswith("tag="): tag = a[4:]
        if a.startswith("ab="): ab = a[3:]
    g = Gen(instr, params, ab)
    A = g.build()
    full = HDR + A.text() + desc(KNAME, 512, 256)
    fn = f"fused{'_i' if instr else ''}{tag}.s"
    open(fn, "w").write(full)
    print(fn, "bytes", len(full))
```
